```python
import torch

def _softmax(x, axis=-1):
    return torch.softmax(x, dim=axis)
def _gelu(x):
    return torch.nn.functional.gelu(x, approximate="tanh")
def _silu(x):
    return torch.nn.functional.silu(x)
def _sigmoid(x):
    return torch.sigmoid(x)
def _layernorm(x, axis=-1, eps=1e-5):
    m = x.mean(dim=axis, keepdim=True)
    v = x.var(dim=axis, keepdim=True, unbiased=False)
    return (x - m) / torch.sqrt(v + eps)
def _scatter_add(tgt, idx, src, axis=0):
    return tgt.clone().index_add_(axis, idx, src)
def _segment_sum(src, seg, n):
    out = torch.zeros((n,) + src.shape[1:], dtype=src.dtype)
    return out.index_add_(0, seg, src)
def _pad(x, pw):
    flat = tuple(v for pair in reversed(pw) for v in pair)
    return torch.nn.functional.pad(x, flat)

kernel_name = 'parallel_sum__linear_kernel_hedgehog__glu_gated_reglu__prompt'

def setup_inputs():

    _w = (lambda a: (lambda t: t.to(torch.bfloat16) if t.is_floating_point() else t)(torch.as_tensor(a)))
    def _A_setup():
        B, S, D, H = 1, 2048, 1024, 32
        Dh = D // H
        return {
            "x": _w((lambda *s: torch.randn(*s, dtype=torch.bfloat16) * 0.05)(B, S, D)),
            "wqkv": _w((lambda *s: torch.randn(*s, dtype=torch.bfloat16) * 0.2)(D, 3 * D)),
            "w_phi": _w((lambda *s: torch.randn(*s, dtype=torch.bfloat16) * 0.2)(H, Dh, Dh) * (Dh ** -0.5)),
            "wo": _w((lambda *s: torch.randn(*s, dtype=torch.bfloat16) * 0.05)(D, D)),
        }
    _A_in = _A_setup()

    def _B_setup():
        B, S, D, F = 1, 2048, 1024, 3584
        return {
            "x": _w((lambda *s: torch.randn(*s, dtype=torch.bfloat16) * 0.05)(B, S, D)),
            "W_gate": _w((lambda *s: torch.randn(*s, dtype=torch.bfloat16) * 0.4)(D, F) * (2.0 / D) ** 0.5),
            "W_up": _w((lambda *s: torch.randn(*s, dtype=torch.bfloat16) * 0.4)(D, F) * (2.0 / D) ** 0.5),
            "W_down": _w((lambda *s: torch.randn(*s, dtype=torch.bfloat16) * 0.4)(F, D) * (1.0 / F) ** 0.5),
        }
    _B_in = _B_setup()

    return {
        "A_x": _A_in["x"],
        "A_wqkv": _A_in["wqkv"],
        "A_w_phi": _A_in["w_phi"],
        "A_wo": _A_in["wo"],
        "B_x": _B_in["x"],
        "B_W_gate": _B_in["W_gate"],
        "B_W_up": _B_in["W_up"],
        "B_W_down": _B_in["W_down"],
    }

def reference(A_x, A_wqkv, A_w_phi, A_wo, B_x, B_W_gate, B_W_up, B_W_down):
    def _A_ref(x, wqkv, w_phi, wo):
        B, S, D = x.shape
        H = 32; Dh = D // H
        qkv = (lambda x, *d: x.permute(*d))((x @ wqkv).reshape(B, S, 3, H, Dh), 2, 0, 3, 1, 4)
        q, k, v = qkv[0], qkv[1], qkv[2]
        pq = torch.einsum("bhsd,hdf->bhsf", q, w_phi)
        pk = torch.einsum("bhsd,hdf->bhsf", k, w_phi)
        phi_q = torch.concatenate([_softmax(pq, axis=-1), _softmax(-pq, axis=-1)], axis=-1)
        phi_k = torch.concatenate([_softmax(pk, axis=-1), _softmax(-pk, axis=-1)], axis=-1)
        kv = torch.einsum("bhsf,bhsd->bhfd", phi_k, v)
        z  = torch.einsum("bhsf->bhf", phi_k)
        num = torch.einsum("bhqf,bhfd->bhqd", phi_q, kv)
        den = torch.einsum("bhqf,bhf->bhq", phi_q, z)[..., None] + 1e-6
        o = num / den
        return (lambda x, *d: x.permute(*d))(o, 0, 2, 1, 3).reshape(B, S, D) @ wo

    def _B_ref(x, W_gate, W_up, W_down):
        gate = torch.einsum("bsd,df->bsf", x, W_gate)
        up = torch.einsum("bsd,df->bsf", x, W_up)
        gate = gate * (lambda x, dt: x.to(dt))(gate > 0, gate.dtype)
        h = gate * up
        return torch.einsum("bsf,fd->bsd", h, W_down)

    x = A_x
    xn = _layernorm(x, axis=-1)
    return x + _A_ref(xn, A_wqkv, A_w_phi, A_wo) + _B_ref(xn, B_W_gate, B_W_up, B_W_down)
```

```python
import sys, os
sys.path.insert(0, os.path.dirname(os.path.abspath(__file__)))
from dsl import *

HEADER = """; Hedgehog linear attention + ReGLU MLP block (x + attn(LN x) + mlp(LN x)), hand-written gfx950 assembly
"""

def assemble(parts, out):
    L = [HEADER.rstrip()]
    for _, _, ll in parts:
        L.append(ll)
    L.append('.amdgcn_target "amdgcn-amd-amdhsa--gfx950"')
    L.append(".text")
    bad = False
    for k, _, _ in parts:
        pr = check_kernel(k)
        for p in pr:
            print("HAZARD", p)
            bad = True
        L.append(k.text())
    L.append("L_code_end:")
    L.append('.section .rodata,"a"')
    for k, d, _ in parts:
        L.append(".p2align 6")
        L.append(d)
    open(out, "w").write("\n".join(L) + "\n")
    return not bad
```

```python
import re

NAME = "parallel_sum__linear_kernel_hedgehog__glu_gated_reglu__prompt"


class Kern:
    def __init__(self, label):
        self.label = label
        self.L = []

    def __call__(self, s):
        for ln in s.split("\n"):
            ln = ln.strip()
            if ln:
                self.L.append(ln)

    def lab(self, name):
        self.L.append(name + ":")

    def nop(self, n):
        while n > 0:
            k = min(n, 16)
            self.L.append(f"s_nop {k-1}")
            n -= k

    def text(self):
        out = [f".globl {self.label}", ".p2align 8", f".type {self.label},@function", f"{self.label}:"]
        for ln in self.L:
            out.append(ln if ln.endswith(":") else "  " + ln)
        return "\n".join(out) + "\n"


def vr(i, n=1, p="v"):
    return f"{p}{i}" if n == 1 else f"{p}[{i}:{i+n-1}]"


def ar(i, n=1):
    return vr(i, n, "a")


def sr(i, n=1):
    return vr(i, n, "s")


def descriptor(label, vgprs, accum, sgprs=102):
    return f""".amdhsa_kernel {label}
  .amdhsa_next_free_vgpr {vgprs}
  .amdhsa_next_free_sgpr {sgprs}
  .amdhsa_accum_offset {accum}
  .amdhsa_group_segment_fixed_size 0
  .amdhsa_kernarg_size 88
  .amdhsa_user_sgpr_count 2
  .amdhsa_user_sgpr_kernarg_segment_ptr 1
  .amdhsa_system_sgpr_workgroup_id_x 1
  .amdhsa_float_denorm_mode_32 3
  .amdhsa_float_denorm_mode_16_64 3
.end_amdhsa_kernel
"""


REG_RE = re.compile(r"(?<![\w.])(-?\|?)([vas])(\d+)\b|(?<![\w.])([vas])\[(\d+):(\d+)\]|\b(vcc|exec|m0|scc)\b")
TRANS = ("v_exp_f32", "v_log_f32", "v_rcp_f32", "v_rsq_f32", "v_sqrt_f32", "v_sin_f32", "v_cos_f32", "v_rcp_iflag_f32")


def regs_of(op):
    out = set()
    op = op.strip()
    m = re.fullmatch(r"-?\|?(?:abs\()?([vas])(\d+)\)?\|?", op)
    if m:
        out.add((m.group(1), int(m.group(2))))
        return out
    m = re.fullmatch(r"-?([vas])\[(\d+):(\d+)\]", op)
    if m:
        for i in range(int(m.group(2)), int(m.group(3)) + 1):
            out.add((m.group(1), i))
        return out
    if op == "vcc":
        out.add(("s", "vcc"))
    elif op in ("vcc_lo", "vcc_hi"):
        out.add(("s", "vcc"))
    elif op == "exec":
        out.add(("s", "exec"))
    elif op == "m0":
        out.add(("s", "m0"))
    return out


def split_ops(rest):
    ops = []
    depth = 0
    cur = ""
    for ch in rest:
        if ch == "[":
            depth += 1
        if ch == "]":
            depth -= 1
        if ch == "," and depth == 0:
            ops.append(cur.strip())
            cur = ""
        else:
            cur += ch
    if cur.strip():
        ops.append(cur.strip())
    res = []
    for i, o in enumerate(ops):
        parts = o.split()
        res.append(parts[0])
        mods = parts[1:]
        if i == len(ops) - 1:
            res_mods = mods
    return res, (res_mods if ops else [])


class Ins:
    __slots__ = ("txt", "op", "kind", "rd", "wr", "ws", "passes", "mods", "srcC", "srcAB", "data")

    def __init__(self, txt):
        self.txt = txt
        t = txt.split(";")[0].strip()
        sp = t.split(None, 1)
        self.op = sp[0]
        rest = sp[1] if len(sp) > 1 else ""
        ops, mods = split_ops(rest) if rest else ([], [])
        self.mods = mods
        op = self.op
        self.rd, self.wr = set(), set()
        self.ws = 1
        self.passes = 0
        self.srcC = set()
        self.srcAB = set()
        self.data = set()
        R = [regs_of(o) for o in ops]
        if op == "s_nop":
            self.kind = "nop"
            self.ws = int(ops[0], 0) + 1
        elif op.startswith("v_mfma"):
            self.kind = "mfma"
            self.passes = 8 if "32x32x16" in op else 4
            self.wr = R[0]
            self.srcAB = R[1] | R[2]
            self.srcC = R[3]
            self.rd = self.srcAB | self.srcC
        elif op.startswith("v_"):
            self.kind = "valu"
            if op.startswith("v_cmp"):
                self.wr = R[0]
                if op.startswith("v_cmpx"):
                    self.wr |= {("s", "exec")}
                for r in R[1:]:
                    self.rd |= r
            elif op.startswith("v_permlane") and "swap" in op:
                self.wr = R[0] | R[1]
                self.rd = R[0] | R[1]
            elif op.startswith("v_readfirstlane") or op.startswith("v_readlane"):
                self.wr = R[0]
                for r in R[1:]:
                    self.rd |= r
            elif op.startswith(("v_add_co", "v_sub_co", "v_addc_co", "v_subb_co", "v_subrev_co")):
                self.wr = R[0] | R[1]
                for r in R[2:]:
                    self.rd |= r
            else:
                self.wr = R[0]
                for r in R[1:]:
                    self.rd |= r
                if op.startswith(("v_fmac", "v_dot2c", "v_pk_fmac", "v_mac")) or "_dpp" in op or op.startswith("v_writelane"):
                    self.rd |= R[0]
                if op.startswith("v_cndmask") and len(ops) == 3:
                    self.rd.add(("s", "vcc"))
        elif op.startswith(("buffer_", "global_", "flat_")):
            self.kind = "vmem"
            if op.startswith(("buffer_inv", "buffer_wbl2")):
                pass
            elif "lds" in mods or op.startswith("global_load_lds"):
                for r in R:
                    self.rd |= r
                self.rd.add(("s", "m0"))
            elif "_load" in op:
                self.wr = R[0]
                for r in R[1:]:
                    self.rd |= r
            elif "_store" in op:
                for r in R:
                    self.rd |= r
                self.data = R[0] if op.startswith("buffer") else R[1]
            elif "atomic" in op:
                for r in R:
                    self.rd |= r
                if "sc0" in mods:
                    self.wr = R[0]
        elif op.startswith("ds_"):
            self.kind = "ds"
            if op.startswith(("ds_read", "ds_bpermute", "ds_permute", "ds_swizzle")):
                self.wr = R[0]
                for r in R[1:]:
                    self.rd |= r
            else:
                for r in R:
                    self.rd |= r
        elif op.startswith("s_"):
            self.kind = "salu"
            if op.startswith(("s_cmp", "s_cbranch", "s_branch", "s_waitcnt", "s_barrier", "s_endpgm", "s_sleep", "s_setprio", "s_bitcmp")):
                for r in R:
                    self.rd |= r
            else:
                if R:
                    self.wr = R[0]
                for r in R[1:]:
                    self.rd |= r
                if "saveexec" in op:
                    self.wr |= {("s", "exec")}
        else:
            raise ValueError("unknown instr: " + txt)


def is_v(r):
    return r[0] in ("v", "a")


def check_trace(tr, name=""):
    probs = []
    n = len(tr)
    LOOK = 24
    for i, c in enumerate(tr):
        if c.kind in ("nop",):
            continue
        dist = 0
        j = i - 1
        while j >= 0 and dist < LOOK:
            p = tr[j]
            need = 0
            why = ""
            if p.kind == "valu":
                wv = {r for r in p.wr if is_v(r)}
                wsg = {r for r in p.wr if not is_v(r)}
                if c.kind == "mfma" and (wv & c.rd):
                    need, why = 2, "VALU write -> MFMA read"
                if c.kind == "valu" and c.op.startswith("v_permlane") and (wv & c.rd):
                    need, why = max(need, 2), "VALU write -> permlane"
                if c.kind == "valu" and "_dpp" in c.op and (wv & c.rd):
                    need, why = max(need, 2), "VALU write -> DPP"
                if c.kind == "valu" and c.op.startswith(("v_readfirstlane", "v_readlane")) and (wv & c.rd):
                    need, why = max(need, 1), "VALU write -> readlane"
                if p.op.startswith(TRANS) and c.kind in ("valu",) and not c.op.startswith(TRANS) and (wv & c.rd):
                    need, why = max(need, 1), "trans -> VALU"
                if p.op.startswith(TRANS) and c.kind in ("mfma",) and (wv & c.rd):
                    need, why = max(need, 2), "trans -> MFMA"
                if wsg and c.kind == "vmem" and (wsg & c.rd):
                    need, why = max(need, 5), "VALU sgpr write -> VMEM read"
                if wsg and c.kind == "valu" and (wsg & c.rd):
                    if c.op.startswith(("v_readlane", "v_writelane")):
                        need, why = max(need, 4), "VALU sgpr -> lane select"
                    else:
                        need, why = max(need, 2), "VALU sgpr write -> VALU const read"
                if ("s", "exec") in p.wr and c.kind == "mfma":
                    need, why = max(need, 4), "VALU exec write -> MFMA"
            if p.kind == "mfma":
                d = p.wr
                lat = {4: 8, 8: 12}[p.passes]
                if c.kind == "mfma":
                    if d & c.srcAB:
                        need, why = lat, "MFMA D -> MFMA A/B"
                    if d & c.srcC and (c.srcC != d or c.passes != p.passes):
                        need, why = max(need, {4: 6, 8: 10}[p.passes]), "MFMA D -> MFMA C overlap"
                    if (d & c.wr) and not (c.srcC == d):
                        need, why = max(need, lat), "MFMA D -> MFMA D WAW (conservative)"
                elif c.kind in ("valu", "vmem", "ds"):
                    if d & (c.rd | c.wr):
                        need, why = lat, "MFMA D -> VALU/VMEM/DS"
                if c.kind == "valu" and (p.srcC & c.wr):
                    need, why = max(need, {4: 3, 8: 7}[p.passes]), "MFMA srcC WAR"
            if p.kind == "vmem" and p.data and len(p.data) >= 3 and c.kind in ("valu", "mfma", "ds") and (p.data & c.wr):
                need, why = max(need, 2), "wide store data WAR"
            if p.kind == "salu" and ("s", "m0") in p.wr and c.kind == "vmem" and ("s", "m0") in c.rd:
                need, why = max(need, 1), "m0 write -> LDS DMA"
            if p.kind == "salu" and ("s", "exec") in p.wr and c.kind == "valu" and c.op.startswith("v_permlane"):
                need, why = max(need, 1), "exec write -> permlane (pad)"
            if need > dist:
                probs.append(f"{name}: [{why}] need {need} have {dist}: '{p.txt}' -> '{c.txt}'")
            dist += p.ws
            j -= 1
    return probs


def check_kernel(k):
    lines = k.L
    labels = {ln[:-1]: i for i, ln in enumerate(lines) if ln.endswith(":")}
    ins = [None if ln.endswith(":") else Ins(ln) for ln in lines]
    probs = set()

    def trace(skip=None, loop=None):
        tr = []
        i = 0
        looped = set()
        while i < len(lines):
            x = ins[i]
            if x is None:
                i += 1
                continue
            tr.append(x)
            if x.op.startswith(("s_cbranch", "s_branch")):
                tgt = labels[x.txt.split()[1]]
                if tgt > i:
                    if x.op == "s_branch" or skip == i:
                        i = tgt
                        continue
                else:
                    if i not in looped:
                        looped.add(i)
                        i = tgt
                        continue
            if x.op == "s_endpgm":
                break
            i += 1
        return tr

    for p in check_trace(trace(), k.label):
        probs.add(p)
    for i, x in enumerate(ins):
        if x is not None and x.op.startswith("s_cbranch"):
            tgt = labels[x.txt.split()[1]]
            if tgt > i:
                for p in check_trace(trace(skip=i), k.label):
                    probs.add(p)
    return sorted(probs)
```

```python
from dsl import *

XN_OFF = 0
A2_OFF = 4 << 20
PHIQ_OFF = 24 << 20
KVP_OFF = 32 << 20
ZP_OFF = 35 << 20


def srd(k, s, ptr, size, off=0):
    if off:
        k(f"s_add_u32 s{s}, s{ptr}, {off}")
        k(f"s_addc_u32 s{s+1}, s{ptr+1}, 0")
    else:
        k(f"s_mov_b32 s{s}, s{ptr}")
        k(f"s_mov_b32 s{s+1}, s{ptr+1}")
    k(f"s_mov_b32 s{s+2}, {size}")
    k(f"s_mov_b32 s{s+3}, 0x00020000")


def xreduce_add(k, a, b, op="v_add_f32"):
    k(f"v_mov_b32 v{b}, v{a}")
    k.nop(2)
    k(f"v_permlane16_swap_b32 v{a}, v{b}")
    k.nop(1)
    k(f"{op} v{a}, v{a}, v{b}")
    k(f"v_mov_b32 v{b}, v{a}")
    k.nop(2)
    k(f"v_permlane32_swap_b32 v{a}, v{b}")
    k.nop(1)
    k(f"{op} v{a}, v{a}, v{b}")


def gen_k1():
    k = Kern("k1_ln_kernel")
    k("s_cmp_ge_u32 s2, 128")
    k("s_cbranch_scc1 L_k1_end")
    k("s_load_dwordx2 s[4:5], s[0:1], 0")
    k("s_load_dwordx2 s[6:7], s[0:1], 80")
    k("v_and_b32 v1, 63, v0")
    k("v_lshrrev_b32 v2, 6, v0")
    k("v_and_b32 v3, 15, v1")
    k("v_lshrrev_b32 v4, 4, v1")
    k("v_lshlrev_b32 v5, 11, v3")
    k("v_lshl_add_u32 v5, v4, 4, v5")
    k("v_lshl_add_u32 v5, v2, 8, v5")
    k("s_lshl_b32 s16, s2, 15")
    k("s_waitcnt lgkmcnt(0)")
    srd(k, 8, 4, 4194304)
    srd(k, 12, 6, 4194304, XN_OFF)
    for i in range(4):
        k(f"buffer_load_dwordx4 v[{16+4*i}:{19+4*i}], v5, s[8:11], s16 offen offset:{64*i}")
    k("v_lshlrev_b32 v6, 4, v1")
    k("v_lshl_add_u32 v6, v2, 14, v6")
    k("s_lshr_b32 s17, s2, 2")
    k("s_lshl_b32 s17, s17, 17")
    k("s_and_b32 s18, s2, 3")
    k("s_lshl_b32 s18, s18, 10")
    k("s_add_u32 s17, s17, s18")
    k("s_add_u32 s18, s17, 4096")
    k("s_add_u32 s19, s17, 8192")
    k("s_add_u32 s20, s17, 12288")
    k("v_lshlrev_b32 v7, 5, v3")
    k("v_lshl_add_u32 v8, v2, 2, v7")
    k("s_mov_b32 s21, 0xffff0000")
    k("s_waitcnt vmcnt(0)")
    for i in range(16):
        k(f"v_lshlrev_b32 v{32+2*i}, 16, v{16+i}")
        k(f"v_and_b32 v{33+2*i}, s21, v{16+i}")
    k("v_pk_add_f32 v[10:11], v[32:33], v[34:35]")
    k("v_pk_add_f32 v[12:13], v[36:37], v[38:39]")
    for i in range(4, 16, 2):
        k(f"v_pk_add_f32 v[10:11], v[10:11], v[{32+2*i}:{33+2*i}]")
        k(f"v_pk_add_f32 v[12:13], v[12:13], v[{34+2*i}:{35+2*i}]")
    k("v_pk_add_f32 v[10:11], v[10:11], v[12:13]")
    k("v_add_f32 v10, v10, v11")
    xreduce_add(k, 10, 11)
    k("ds_write_b32 v8, v10")
    k("s_waitcnt lgkmcnt(0)")
    k("s_barrier")
    k("ds_read_b128 v[64:67], v7")
    k("ds_read_b128 v[68:71], v7 offset:16")
    k("s_waitcnt lgkmcnt(0)")
    k("v_pk_add_f32 v[64:65], v[64:65], v[66:67]")
    k("v_pk_add_f32 v[68:69], v[68:69], v[70:71]")
    k("v_pk_add_f32 v[64:65], v[64:65], v[68:69]")
    k("v_add_f32 v64, v64, v65")
    k("v_mul_f32 v64, 0xba800000, v64")
    for i in range(16):
        k(f"v_pk_add_f32 v[{32+2*i}:{33+2*i}], v[{32+2*i}:{33+2*i}], v[64:65] op_sel_hi:[1,0]")
    k("v_pk_mul_f32 v[10:11], v[32:33], v[32:33]")
    k("v_pk_mul_f32 v[12:13], v[34:35], v[34:35]")
    for i in range(2, 16, 2):
        k(f"v_pk_fma_f32 v[10:11], v[{32+2*i}:{33+2*i}], v[{32+2*i}:{33+2*i}], v[10:11]")
        k(f"v_pk_fma_f32 v[12:13], v[{34+2*i}:{35+2*i}], v[{34+2*i}:{35+2*i}], v[12:13]")
    k("v_pk_add_f32 v[10:11], v[10:11], v[12:13]")
    k("v_add_f32 v10, v10, v11")
    xreduce_add(k, 10, 11)
    k("ds_write_b32 v8, v10 offset:512")
    k("s_waitcnt lgkmcnt(0)")
    k("s_barrier")
    k("ds_read_b128 v[64:67], v7 offset:512")
    k("ds_read_b128 v[68:71], v7 offset:528")
    k("s_waitcnt lgkmcnt(0)")
    k("v_pk_add_f32 v[64:65], v[64:65], v[66:67]")
    k("v_pk_add_f32 v[68:69], v[68:69], v[70:71]")
    k("v_pk_add_f32 v[64:65], v[64:65], v[68:69]")
    k("v_add_f32 v64, v64, v65")
    k("v_mov_b32 v65, 0x3727c5ac")
    k("v_fmac_f32 v65, 0x3a800000, v64")
    k("v_rsq_f32 v64, v65")
    k.nop(1)
    for i in range(16):
        k(f"v_pk_mul_f32 v[{32+2*i}:{33+2*i}], v[{32+2*i}:{33+2*i}], v[64:65] op_sel_hi:[1,0]")
    for i in range(16):
        k(f"v_cvt_pk_bf16_f32 v{16+i}, v{32+2*i}, v{33+2*i}")
    k.nop(2)
    for i in range(4):
        b = 16 + 4 * i
        k(f"v_permlane16_swap_b32 v{b}, v{b+2}")
        k(f"v_permlane16_swap_b32 v{b+1}, v{b+3}")
    k.nop(2)
    for i in range(4):
        b = 16 + 4 * i
        k(f"v_permlane32_swap_b32 v{b}, v{b+2}")
        k(f"v_permlane32_swap_b32 v{b+1}, v{b+3}")
    for i in range(4):
        b = 16 + 4 * i
        k(f"buffer_store_dwordx4 v[{b}:{b+3}], v6, s[12:15], s{17+i} offen")
    k.lab("L_k1_end")
    k("s_endpgm")
    return k, descriptor("k1_ln_kernel", 72, 72), "; @launch kernel=k1_ln_kernel grid=(128,1,1) block=(512,1,1) lds=1024"
```

```python
from dsl import *
from k1 import srd, XN_OFF, A2_OFF, PHIQ_OFF, KVP_OFF, ZP_OFF

STAGE = 20480
RING = 5
NB = 10
DBG_OFF = 64 << 20
WPHI_OFF = STAGE * RING

V_TOK = 1
V_DMA = 2
V_AQ0, V_AQ1, V_AG = 7, 8, 9
ACC_V0 = 16
A_TOK = 80
A_WF = 144
NAGPR = A_WF + 4 * NB

S_XN = 8
S_W = 12
S_SOFF = 32
S_SSTR = 37
S_TOFF = 42
S_RING = 43
S_RLIM = 44
S_RD = 45
S_CNT = 46
S_WAVE = 47
S_J = 48
S_R = 49
S_DELTA = 50
S_T0 = 51
S_NEG = 66
S_POS = 67
S_C1 = 68
S_C2 = 69


def acc(n, t):
    if t < 3:
        return vr(ACC_V0 + 80 * t + 4 * n, 4)
    return ar(4 * n, 4)


def tok(setn, t):
    return ar(A_TOK + 16 * setn + 4 * t, 4)


def wf(n):
    return A_WF + 4 * (n % NB)


def frag_reads(n):
    b = wf(n)
    out = []
    for t in range(2):
        if n < 6:
            m, hf = n >> 1, n & 1
            a = V_AQ1 if hf else V_AQ0
            off = t * 3072 + m * 64
        else:
            u, isu = (n - 6) >> 1, (n - 6) & 1
            a = V_AG
            off = 6144 + isu * 7168 + t * 3584 + u * 32
        out.append(f"ds_read_b64_tr_b16 {ar(b + 2 * t, 2)}, v{a} offset:{off}")
    return out


def mfma(n, t, setn):
    w = ar(wf(n), 4)
    x = tok(setn, t)
    c = acc(n, t)
    if n in (4, 5):
        return f"v_mfma_f32_16x16x32_bf16 {c}, {x}, {w}, {c}"
    return f"v_mfma_f32_16x16x32_bf16 {c}, {w}, {x}, {c}"


def dma(i):
    return [f"s_add_u32 m0, s{S_RING}, {i * 1024}",
            f"buffer_load_dwordx4 v{V_DMA + i}, s[{S_W + 4 * i}:{S_W + 4 * i + 3}], s{S_SOFF + i} offen lds",
            f"s_add_u32 s{S_SOFF + i}, s{S_SOFF + i}, s{S_SSTR + i}"]


def ring_adv():
    return [f"s_cmp_eq_u32 s{S_RING}, s{S_RLIM}",
            f"s_cselect_b32 s{S_T0}, s{S_NEG}, s{S_POS}",
            f"s_add_u32 s{S_RING}, s{S_RING}, s{S_T0}"]


def tokload(setn, t):
    return [f"buffer_load_dwordx4 {tok(setn, t)}, v{V_TOK}, s[{S_XN}:{S_XN + 3}], s{S_TOFF} offen offset:{1024 * t}"]


def prologue(k, D):
    k("s_cmp_ge_u32 s2, 256")
    k("s_cbranch_scc1 L_k2_end")
    k("s_load_dwordx2 s[4:5], s[0:1], 8")
    k("s_load_dwordx2 s[6:7], s[0:1], 40")
    k("s_load_dwordx2 s[60:61], s[0:1], 48")
    k("s_load_dwordx2 s[62:63], s[0:1], 80")
    k("s_load_dwordx2 s[64:65], s[0:1], 16")
    k("v_lshrrev_b32 v10, 6, v0")
    k("v_and_b32 v0, 63, v0")
    k("s_and_b32 s51, s2, 7")
    k("v_readfirstlane_b32 s47, v10")
    k("s_lshr_b32 s52, s2, 3")
    k("s_and_b32 s53, s52, 3")
    k("s_lshl_b32 s48, s51, 2")
    k("s_add_u32 s48, s48, s53")
    k("s_lshr_b32 s49, s52, 2")
    k(f"v_lshlrev_b32 v{V_TOK}, 4, v0")
    k("s_waitcnt lgkmcnt(0)")
    k("s_lshl_b32 s51, s49, 2")
    k("s_add_u32 s51, s51, s47")
    k("s_lshl_b32 s51, s51, 17")
    k(f"s_add_u32 s{S_XN}, s62, s51")
    k(f"s_addc_u32 s{S_XN+1}, s63, 0")
    k(f"s_mov_b32 s{S_XN+2}, 131072")
    k(f"s_mov_b32 s{S_XN+3}, 0x00020000")
    k(f"s_mov_b32 s{S_C1}, 7340032")
    k(f"s_mov_b32 s{S_C2}, {32*7168}")
    k(f"s_mov_b32 s{S_NEG}, {(-STAGE*(RING-1)) & 0xffffffff}")
    k(f"s_mov_b32 s{S_POS}, {STAGE}")
    k("s_mul_i32 s54, s47, 5")
    k("s_mul_i32 s55, s48, 224")
    k("s_lshl_b32 s56, s48, 6")
    for i in range(5):
        S = S_W + 4 * i
        k(f"s_add_u32 s51, s54, {i}")
        k("s_cmp_lt_u32 s51, 13")
        k(f"s_cselect_b32 s{S}, s6, s60")
        k(f"s_cselect_b32 s{S+1}, s7, s61")
        k("s_cselect_b32 s52, 6, 13")
        k("s_cmp_lt_u32 s51, 6")
        k(f"s_cselect_b32 s{S}, s4, s{S}")
        k(f"s_cselect_b32 s{S+1}, s5, s{S+1}")
        k(f"s_cselect_b32 s{S+2}, 6291456, s{S_C1}")
        k(f"s_mov_b32 s{S+3}, 0x00020000")
        k("s_cselect_b32 s52, 0, s52")
        k(f"s_cselect_b32 s{S_SSTR+i}, {32*6144}, s{S_C2}")
        k("s_cselect_b64 s[58:59], -1, 0")
        k("s_sub_u32 s51, s51, s52")
        k("s_lshl_b32 s51, s51, 6")
        k("v_add_u32 v10, s51, v0")
        k("v_mul_u32_u24 v11, 4682, v10")
        k("v_lshrrev_b32 v11, 16, v11")
        k("v_mul_u32_u24 v12, 14, v11")
        k("v_sub_u32 v12, v10, v12")
        k("v_mul_u32_u24 v11, 7168, v11")
        k("v_lshl_add_u32 v11, v12, 4, v11")
        k("v_add_u32 v11, s55, v11")
        k("v_mul_u32_u24 v12, 5462, v10")
        k("v_lshrrev_b32 v12, 16, v12")
        k("v_mul_u32_u24 v13, 12, v12")
        k("v_sub_u32 v13, v10, v13")
        k("v_lshrrev_b32 v14, 2, v13")
        k("v_and_b32 v13, 3, v13")
        k("v_lshrrev_b32 v15, 1, v12")
        k("v_and_b32 v15, 2, v15")
        k("v_xor_b32 v13, v13, v15")
        k("v_mul_u32_u24 v12, 6144, v12")
        k("v_lshl_add_u32 v12, v14, 11, v12")
        k("v_lshl_add_u32 v12, v13, 4, v12")
        k("v_add_u32 v12, s56, v12")
        k(f"v_cndmask_b32 v{V_DMA+i}, v11, v12, s[58:59]")
        k(f"s_mov_b32 s{S_SOFF+i}, 0")
    k(f"s_lshl_b32 s{S_RING}, s54, 10")
    k(f"s_add_u32 s{S_RLIM}, s{S_RING}, {STAGE*(RING-1)}")
    k(f"s_mov_b32 s{S_RD}, 0")
    k(f"s_mov_b32 s{S_TOFF}, 0")
    k("s_lshl_b32 s51, s48, 11")
    k("s_add_u32 s56, s64, s51")
    k("s_addc_u32 s57, s65, 0")
    k("s_mov_b32 s58, 2048")
    k("s_mov_b32 s59, 0x00020000")
    k(f"s_mov_b32 m0, {WPHI_OFF}")
    k("s_nop 0")
    k(f"buffer_load_dwordx4 v{V_TOK}, s[56:59], 0 offen lds")
    k(f"buffer_load_dwordx4 v{V_TOK}, s[56:59], 0 offen offset:1024 lds")
    for st in range(4):
        for i in range(5):
            a, b, c = dma(i)
            k(a); k("s_nop 0"); k(b); k(c)
        for x in ring_adv():
            k(x)
        if st >= 1:
            for t in range(4):
                k(tokload(st - 1, t)[0])
            k(f"s_add_u32 s{S_TOFF}, s{S_TOFF}, 4096")
    k("v_lshrrev_b32 v10, 4, v0")
    k("v_bfe_u32 v11, v0, 2, 2")
    k("v_and_b32 v12, 3, v0")
    k("v_lshl_add_u32 v13, v10, 2, v11")
    k(f"v_mul_u32_u24 v{V_AG}, 224, v13")
    k(f"v_lshl_add_u32 v{V_AG}, v12, 3, v{V_AG}")
    k(f"v_mul_u32_u24 v{V_AQ0}, 192, v13")
    k("v_and_b32 v14, 1, v12")
    k(f"v_lshl_add_u32 v{V_AQ0}, v14, 3, v{V_AQ0}")
    k("v_lshrrev_b32 v14, 1, v12")
    k(f"v_lshl_add_u32 v{V_AQ0}, v14, 4, v{V_AQ0}")
    k("v_and_b32 v14, 1, v10")
    k(f"v_lshl_add_u32 v{V_AQ1}, v14, 5, 0")
    k(f"v_xor_b32 v15, 32, v{V_AQ1}")
    k(f"v_add_u32 v15, v15, v{V_AQ0}")
    k(f"v_add_u32 v{V_AQ0}, v{V_AQ1}, v{V_AQ0}")
    k(f"v_mov_b32 v{V_AQ1}, v15")
    for i in range(ACC_V0, 256):
        k(f"v_mov_b32 v{i}, 0")
    for i in range(80):
        k(f"v_accvgpr_write_b32 a{i}, 0")
    k("s_waitcnt vmcnt(27)")
    k("s_barrier")
    for n in range(D):
        for x in frag_reads(n):
            k(x)


def step(k, setn, D, sched=None):
    k("s_waitcnt vmcnt(18)")
    k("s_barrier")
    fill = {m: [] for m in range(80)}
    for n in range(20):
        nn = n + D
        rd = frag_reads(nn % 20)
        fill[4 * n + 0].append(rd[0])
        fill[4 * n + 2].append(rd[1])
    for i in range(5):
        a, b, c = dma(i)
        m = 4 * (2 * i + 1)
        fill[m + 1].append(a)
        fill[m + 3].append(b)
        fill[m + 5].append(c)
    ra = ring_adv()
    fill[45].append(ra[0]); fill[45].append(ra[1]); fill[47].append(ra[2])
    for t in range(4):
        fill[4 * (12 + 2 * t) + 1].append(tokload((setn + 3) % 4, t)[0])
    fill[79].append(f"s_add_u32 s{S_TOFF}, s{S_TOFF}, 4096")
    fill[31].append(f"s_cmp_eq_u32 s{S_RD}, {STAGE*(RING-1)}")
    fill[31].append(f"s_cselect_b32 s{S_DELTA}, s{S_NEG}, s{S_POS}")
    fill[35].append(f"s_add_u32 s{S_RD}, s{S_RD}, s{S_DELTA}")
    fill[37].append(f"v_add_u32 v{V_AQ0}, s{S_DELTA}, v{V_AQ0}")
    fill[39].append(f"v_add_u32 v{V_AQ1}, s{S_DELTA}, v{V_AQ1}")
    g = 20 - D
    fill[4 * (19 - D) + 3].append(f"v_add_u32 v{V_AG}, s{S_DELTA}, v{V_AG}")
    for n in range(20):
        k(f"s_waitcnt lgkmcnt({2 * (D - 1)})")
        for t in range(4):
            m = 4 * n + t
            k(mfma(n, t, setn))
            for x in fill[m]:
                k(x)


def debug_epilogue(k):
    k("s_waitcnt vmcnt(0) lgkmcnt(0)")
    k.nop(16)
    k("s_lshl_b32 s51, s2, 2")
    k("s_add_u32 s51, s51, s47")
    k("s_mul_i32 s51, s51, 81920")
    k(f"s_add_u32 s8, s62, {DBG_OFF}")
    k("s_addc_u32 s9, s63, 0")
    k("s_add_u32 s8, s8, s51")
    k("s_addc_u32 s9, s9, 0")
    k("s_mov_b32 s10, 81920")
    k("s_mov_b32 s11, 0x00020000")
    k("s_mov_b32 s52, 0")
    for n in range(20):
        for t in range(4):
            k(f"buffer_store_dwordx4 {acc(n, t)}, v{V_TOK}, s[8:11], s52 offen")
            k("s_add_u32 s52, s52, 1024")


STAMP_OFF = 60 << 20
def stamp(k, i):
    k(f"s_memtime s[{80+4*i}:{81+4*i}]")
    k(f"s_memrealtime s[{82+4*i}:{83+4*i}]")
    k("s_waitcnt lgkmcnt(0)")

def stamp_store(k, n, wsreg=62, kid=0):
    k(f"s_add_u32 s8, s{wsreg}, {STAMP_OFF + kid * 65536}")
    k(f"s_addc_u32 s9, s{wsreg+1}, 0")
    k("s_mov_b32 s10, 65536")
    k("s_mov_b32 s11, 0x00020000")
    k("s_lshl_b32 s51, s2, 8")
    k("v_mov_b32 v10, s51")
    k("v_cmp_eq_u32 vcc, 0, v0")
    k(f"s_and_saveexec_b64 s[52:53], vcc")
    k("s_cmp_eq_u32 s47, 0")
    k("s_cbranch_scc0 L_nostamp")
    for i in range(n):
        k(f"v_mov_b32 v11, s{80+4*i}")
        k(f"v_mov_b32 v12, s{82+4*i}")
        k(f"buffer_store_dword v11, v10, s[8:11], 0 offen offset:{8*i}")
        k(f"buffer_store_dword v12, v10, s[8:11], 0 offen offset:{8*i+4}")
    k.lab("L_nostamp")
    k("s_mov_b64 exec, s[52:53]")

def gen_k2(D=4, debug=False, epilogue=None, stamps=False, stepfn=None):
    k = Kern("k2_gemm1_kernel")
    if stamps:
        stamp(k, 0)
    prologue(k, D)
    if stamps:
        stamp(k, 1)
        k("s_nop 0")
        for n in range(D):
            pass
    k(f"s_mov_b32 s{S_CNT}, 0")
    k.lab("L_k2_loop")
    for s in range(4):
        (stepfn or step)(k, s, D)
    k(f"s_add_u32 s{S_CNT}, s{S_CNT}, 1")
    k(f"s_cmp_lt_u32 s{S_CNT}, 8")
    k("s_cbranch_scc1 L_k2_loop")
    if stamps:
        stamp(k, 2)
    if debug:
        debug_epilogue(k)
    elif epilogue:
        epilogue(k)
    if stamps:
        k("s_waitcnt vmcnt(0)")
        stamp(k, 3)
        stamp_store(k, 4)
    k.lab("L_k2_end")
    k("s_endpgm")
    nv = 256 + NAGPR
    return k, descriptor("k2_gemm1_kernel", nv, 256), f"; @launch kernel=k2_gemm1_kernel grid=(256,1,1) block=(256,1,1) lds={STAGE*RING + 4096}"
```

```python
from dsl import *
from k1 import XN_OFF, A2_OFF, PHIQ_OFF, KVP_OFF, ZP_OFF
import k2
from k2 import V_TOK, WPHI_OFF, S_WAVE, S_J, S_R

A2_TT = 144 * 1024
LOG2E = 0x3fb8aa3b
QB = [16, 96, 176, 200]
XR = [40, 48, 56, 64]
ER = [120, 128, 136, 144]
ST = [72, 76, 80, 84]
WP0, WP1, SEL0, SEL1, ONES = 224, 228, 232, 236, 240
S_L2E = 74
S_SRD = 8
S_SRD2 = 12


def h_part(k):
    k(f"s_add_u32 s8, s62, {A2_OFF}")
    k("s_addc_u32 s9, s63, 0")
    k(f"s_mov_b32 s10, {128 * A2_TT}")
    k("s_mov_b32 s11, 0x00020000")
    k(f"s_lshl_b32 s52, s{S_R}, 4")
    k(f"s_lshl_b32 s53, s{S_WAVE}, 2")
    k("s_add_u32 s52, s52, s53")
    k(f"s_mul_i32 s53, s{S_J}, 7")
    k("s_lshr_b32 s53, s53, 1")
    k("s_add_u32 s53, s53, 32")
    k("s_lshl_b32 s53, s53, 10")
    k(f"s_mul_i32 s54, s52, {A2_TT}")
    k("s_add_u32 s54, s54, s53")

    def compute(G0, H, srcs):
        for u in range(7):
            G, U = srcs[u]
            for jj in range(4):
                k(f"v_max_f32 v{G+jj}, 0, v{G+jj}")
            k(f"v_pk_mul_f32 v[{G}:{G+1}], v[{G}:{G+1}], v[{U}:{U+1}]")
            k(f"v_pk_mul_f32 v[{G+2}:{G+3}], v[{G+2}:{G+3}], v[{U+2}:{U+3}]")
            k(f"v_cvt_pk_bf16_f32 v{H+2*u}, v{G}, v{G+1}")
            k(f"v_cvt_pk_bf16_f32 v{H+2*u+1}, v{G+2}, v{G+3}")

    def stores(H, t):
        k(f"s_bitcmp1_b32 s{S_J}, 0")
        k(f"s_cbranch_scc1 L_hodd{t}")
        k(f"buffer_store_dwordx4 v[{H}:{H+3}], v{V_TOK}, s[8:11], s54 offen")
        k(f"buffer_store_dwordx4 v[{H+4}:{H+7}], v{V_TOK}, s[8:11], s54 offen offset:1024")
        k(f"buffer_store_dwordx4 v[{H+8}:{H+11}], v{V_TOK}, s[8:11], s54 offen offset:2048")
        k(f"buffer_store_dwordx2 v[{H+12}:{H+13}], v{V_TOK}, s[8:11], s54 offen offset:3072")
        k(f"s_branch L_hdone{t}")
        k.lab(f"L_hodd{t}")
        k(f"buffer_store_dwordx2 v[{H}:{H+1}], v{V_TOK}, s[8:11], s54 offen offset:8")
        k(f"buffer_store_dwordx4 v[{H+2}:{H+5}], v{V_TOK}, s[8:11], s54 offen offset:1024")
        k(f"buffer_store_dwordx4 v[{H+6}:{H+9}], v{V_TOK}, s[8:11], s54 offen offset:2048")
        k(f"buffer_store_dwordx4 v[{H+10}:{H+13}], v{V_TOK}, s[8:11], s54 offen offset:3072")
        k.lab(f"L_hdone{t}")
        k(f"s_add_u32 s54, s54, {A2_TT}")

    for t in range(3):
        base = 16 + 80 * t
        srcs = [(base + 24 + 8 * u, base + 28 + 8 * u) for u in range(7)]
        compute(base + 24, base + 24, srcs)
        stores(base + 24, t)
    H = 40
    srcs = []
    for u in range(5):
        for q in range(8):
            k(f"v_accvgpr_read_b32 v{56+8*u+q}, a{24+8*u+q}")
        srcs.append((56 + 8 * u, 60 + 8 * u))
    for u in range(5, 7):
        for q in range(8):
            k(f"v_accvgpr_read_b32 v{136+8*(u-5)+q}, a{24+8*u+q}")
        srcs.append((136 + 8 * (u - 5), 140 + 8 * (u - 5)))
    compute(None, H, srcs)
    stores(H, 3)
    for q in range(24):
        k(f"v_accvgpr_read_b32 v{200+q}, a{q}")


def consts(k):
    k("v_lshrrev_b32 v10, 4, v0")
    k("v_bfe_u32 v11, v0, 2, 2")
    k("v_and_b32 v12, 3, v0")
    k("v_lshl_add_u32 v13, v10, 2, v11")
    k("v_lshlrev_b32 v13, 6, v13")
    k("v_lshl_add_u32 v13, v12, 3, v13")
    k(f"v_add_u32 v13, {WPHI_OFF}, v13")
    for ft, W in ((0, WP0), (1, WP1)):
        for t in range(2):
            k(f"ds_read_b64_tr_b16 v[{W+2*t}:{W+2*t+1}], v13 offset:{t*1024 + ft*32}")
    k("v_and_b32 v12, 15, v0")
    k("v_lshlrev_b32 v11, 2, v10")
    k("v_sub_u32 v12, v12, v11")
    k("v_mov_b32 v14, 0x3f80")
    k("v_mov_b32 v15, 0x3f800000")
    for rg, (dl, dh) in enumerate(((0, 1), (2, 3))):
        k(f"v_cmp_eq_u32 vcc, {dl}, v12")
        k.nop(2)
        k(f"v_cndmask_b32 v{SEL0+rg}, 0, v14, vcc")
        k(f"v_cmp_eq_u32 vcc, {dh}, v12")
        k.nop(2)
        k(f"v_cndmask_b32 v{SEL0+rg}, v{SEL0+rg}, v15, vcc")
    k(f"v_mov_b32 v{SEL0+2}, 0")
    k(f"v_mov_b32 v{SEL0+3}, 0")
    k(f"v_mov_b32 v{SEL1}, 0")
    k(f"v_mov_b32 v{SEL1+1}, 0")
    k(f"v_mov_b32 v{SEL1+2}, v{SEL0}")
    k(f"v_mov_b32 v{SEL1+3}, v{SEL0+1}")
    for q in range(4):
        k(f"v_mov_b32 v{ONES+q}, 0x3f803f80")
    k(f"s_mov_b32 s{S_L2E}, {LOG2E}")
    k(f"s_mov_b32 s{S_L2E+1}, {LOG2E}")
    k(f"s_mov_b32 s{S_L2E+2}, {LOG2E | 0x80000000}")
    k(f"s_mov_b32 s{S_L2E+3}, {LOG2E | 0x80000000}")
    k("s_waitcnt lgkmcnt(0)")


def features(k, o):
    for t in range(4):
        b = QB[t] + o
        for q in range(4):
            k(f"v_cvt_pk_bf16_f32 v{b+q}, v{b+2*q}, v{b+2*q+1}")
    k.nop(1)
    for t in range(4):
        b = QB[t] + o
        X = XR[t]
        k(f"v_mfma_f32_16x16x32_bf16 v[{X}:{X+3}], v[{WP0}:{WP0+3}], v[{b}:{b+3}], 0")
        k(f"v_mfma_f32_16x16x32_bf16 v[{X+4}:{X+7}], v[{WP1}:{WP1+3}], v[{b}:{b+3}], 0")
    k.nop(2)
    for t in range(4):
        X, a, b = XR[t], ST[t], ST[t] + 1
        if t == 0:
            k.nop(2)
        k(f"v_max3_f32 v{a}, v{X}, v{X+1}, v{X+2}")
        k(f"v_max3_f32 v{b}, -v{X}, -v{X+1}, -v{X+2}")
        k(f"v_max3_f32 v{a}, v{a}, v{X+3}, v{X+3}")
        k(f"v_max3_f32 v{b}, v{b}, -v{X+3}, -v{X+3}")
        if t == 0:
            k.nop(2)
    for t in range(4):
        X, a, b = XR[t], ST[t], ST[t] + 1
        k(f"v_max3_f32 v{a}, v{a}, v{X+4}, v{X+5}")
        k(f"v_max3_f32 v{b}, v{b}, -v{X+4}, -v{X+5}")
        k(f"v_max3_f32 v{a}, v{a}, v{X+6}, v{X+7}")
        k(f"v_max3_f32 v{b}, v{b}, -v{X+6}, -v{X+7}")
    for t in range(4):
        a, b = ST[t], ST[t] + 1
        k(f"v_permlane16_swap_b32 v{a}, v{b}")
    for t in range(4):
        a, b, c = ST[t], ST[t] + 1, ST[t] + 2
        k(f"v_max_f32 v{a}, v{a}, v{b}")
        k(f"v_mov_b32 v{c}, v{a}")
    for t in range(4):
        a, c = ST[t], ST[t] + 2
        if t == 3:
            k.nop(1)
        k(f"v_permlane32_swap_b32 v{a}, v{c}")
    for t in range(4):
        a, b, c = ST[t], ST[t] + 1, ST[t] + 2
        k(f"v_max_f32 v{a}, v{a}, v{c}")
        k(f"v_mov_b32 v{c}, v{a}")
    for t in range(4):
        a, c = ST[t], ST[t] + 2
        if t == 3:
            k.nop(1)
        k(f"v_permlane16_swap_b32 v{a}, v{c}")
    for t in range(4):
        a, c = ST[t], ST[t] + 2
        k(f"v_mul_f32 v{a}, s{S_L2E+2}, v{a}")
        k(f"v_mul_f32 v{c}, s{S_L2E+2}, v{c}")
    for t in range(4):
        X, E, a, c = XR[t], ER[t], ST[t], ST[t] + 2
        for q in range(0, 8, 2):
            k(f"v_pk_fma_f32 v[{E+q}:{E+q+1}], v[{X+q}:{X+q+1}], s[{S_L2E+2}:{S_L2E+3}], v[{c}:{c+1}] op_sel_hi:[1,1,0]")
        for q in range(0, 8, 2):
            k(f"v_pk_fma_f32 v[{X+q}:{X+q+1}], v[{X+q}:{X+q+1}], s[{S_L2E}:{S_L2E+1}], v[{a}:{a+1}] op_sel_hi:[1,1,0]")
    for t in range(4):
        X, E = XR[t], ER[t]
        for q in range(8):
            k(f"v_exp_f32 v{X+q}, v{X+q}")
            k(f"v_exp_f32 v{E+q}, v{E+q}")
    for t in range(4):
        X, E = XR[t], ER[t]
        for q in range(4):
            k(f"v_cvt_pk_bf16_f32 v{X+q}, v{X+2*q}, v{X+2*q+1}")
        for q in range(4):
            k(f"v_cvt_pk_bf16_f32 v{E+q}, v{E+2*q}, v{E+2*q+1}")


def q_part(k):
    features(k, 0)
    k(f"s_add_u32 s12, s62, {PHIQ_OFF}")
    k("s_addc_u32 s13, s63, 0")
    k(f"s_mov_b32 s14, {8 << 20}")
    k("s_mov_b32 s15, 0x00020000")
    k(f"s_lshl_b32 s53, s{S_J}, 18")
    k("s_lshl_b32 s55, s52, 11")
    k("s_add_u32 s53, s53, s55")
    for t in range(4):
        X, E = XR[t], ER[t]
        k(f"buffer_store_dwordx4 v[{X}:{X+3}], v{V_TOK}, s[12:15], s53 offen")
        k(f"buffer_store_dwordx4 v[{E}:{E+3}], v{V_TOK}, s[12:15], s53 offen offset:1024")
        if t < 3:
            k("s_add_u32 s53, s53, 2048")
    k.nop(2)


def KV(s, ft, dt):
    i = s * 4 + ft * 2 + dt
    return [16, 96, 176][i // 4] + 4 * (i % 4) if i < 8 else None


def tileaddr(i):
    return QB[i // 4] + 4 * (i % 4)


def k_part(k):
    features(k, 8)
    first = True
    for p in range(2):
        t0, t1 = 2 * p, 2 * p + 1
        TT = {t0: 72, t1: 152}
        for t in (t0, t1):
            X, E, T = XR[t], ER[t], TT[t]
            for s, src in ((0, X), (1, E)):
                o = T + 12 * s
                k(f"v_mfma_f32_16x16x32_bf16 v[{o+8}:{o+11}], v[{src}:{src+3}], v[{ONES}:{ONES+3}], 0")
                k(f"v_mfma_f32_16x16x32_bf16 v[{o}:{o+3}], v[{src}:{src+3}], v[{SEL0}:{SEL0+3}], 0")
                k(f"v_mfma_f32_16x16x32_bf16 v[{o+4}:{o+7}], v[{src}:{src+3}], v[{SEL1}:{SEL1+3}], 0")
        VF = 244
        for dt in range(2):
            a0 = QB[t0] + 16 + 4 * dt
            a1 = QB[t1] + 16 + 4 * dt
            k(f"v_cvt_pk_bf16_f32 v{VF+4*dt}, v{a0}, v{a0+1}")
            k(f"v_cvt_pk_bf16_f32 v{VF+4*dt+1}, v{a0+2}, v{a0+3}")
            k(f"v_cvt_pk_bf16_f32 v{VF+4*dt+2}, v{a1}, v{a1+1}")
            k(f"v_cvt_pk_bf16_f32 v{VF+4*dt+3}, v{a1+2}, v{a1+3}")
        for t in (t0, t1):
            T = TT[t]
            for s in range(2):
                o = T + 12 * s
                for q in range(4):
                    k(f"v_rcp_f32 v{o+8+q}, v{o+8+q}")
        k.nop(1)
        PK = XR[t0]
        for ti, t in enumerate((t0, t1)):
            T = TT[t]
            for s in range(2):
                o = T + 12 * s
                for ft in range(2):
                    a = o + 4 * ft
                    k(f"v_pk_mul_f32 v[{a}:{a+1}], v[{a}:{a+1}], v[{o+8}:{o+9}]")
                    k(f"v_pk_mul_f32 v[{a+2}:{a+3}], v[{a+2}:{a+3}], v[{o+10}:{o+11}]")
        for ti, t in enumerate((t0, t1)):
            T = TT[t]
            for s in range(2):
                o = T + 12 * s
                for ft in range(2):
                    a = o + 4 * ft
                    d = PK + 8 * s + 4 * ft + 2 * ti
                    k(f"v_cvt_pk_bf16_f32 v{d}, v{a}, v{a+1}")
                    k(f"v_cvt_pk_bf16_f32 v{d+1}, v{a+2}, v{a+3}")
        k.nop(2)
        for s in range(2):
            for ft in range(2):
                A = PK + 8 * s + 4 * ft
                for dt in range(2):
                    c = tileaddr(s * 4 + ft * 2 + dt)
                    src = "0" if p == 0 else f"v[{c}:{c+3}]"
                    k(f"v_mfma_f32_16x16x32_bf16 v[{c}:{c+3}], v[{A}:{A+3}], v[{VF+4*dt}:{VF+4*dt+3}], {src}")
                c = tileaddr(8 + s * 2 + ft)
                src = "0" if p == 0 else f"v[{c}:{c+3}]"
                k(f"v_mfma_f32_16x16x32_bf16 v[{c}:{c+3}], v[{A}:{A+3}], v[{ONES}:{ONES+3}], {src}")
    k.nop(8)
    k(f"s_mul_i32 s53, s{S_WAVE}, 12288")
    k(f"v_add_u32 v10, s53, v{V_TOK}")
    for i in range(12):
        c = tileaddr(i)
        k(f"ds_write_b128 v10, v[{c}:{c+3}] offset:{i*1024}")
    k("s_waitcnt lgkmcnt(0)")
    k("s_barrier")
    k(f"s_lshr_b32 s53, s{S_WAVE}, 1")
    k("s_lshl_b32 s53, s53, 2")
    k(f"s_and_b32 s55, s{S_WAVE}, 1")
    k("s_add_u32 s53, s53, s55")
    k("s_lshl_b32 s53, s53, 10")
    k(f"v_add_u32 v10, s53, v{V_TOK}")
    k(f"s_add_u32 s53, s{S_WAVE}, 8")
    k("s_lshl_b32 s53, s53, 10")
    k(f"v_add_u32 v11, s53, v{V_TOK}")
    R = 40
    for ww in range(4):
        k(f"ds_read_b128 v[{R+12*ww}:{R+12*ww+3}], v10 offset:{ww*12288}")
        k(f"ds_read_b128 v[{R+12*ww+4}:{R+12*ww+7}], v10 offset:{ww*12288+2048}")
        k(f"ds_read_b128 v[{R+12*ww+8}:{R+12*ww+11}], v11 offset:{ww*12288}")
    k(f"s_lshl_b32 s53, s{S_J}, 3")
    k(f"s_add_u32 s53, s53, s{S_R}")
    k(f"s_add_u32 s8, s62, {KVP_OFF}")
    k("s_addc_u32 s9, s63, 0")
    k(f"s_mov_b32 s10, {2 << 20}")
    k("s_mov_b32 s11, 0x00020000")
    k(f"s_add_u32 s12, s62, {ZP_OFF}")
    k("s_addc_u32 s13, s63, 0")
    k(f"s_mov_b32 s14, {64 << 10}")
    k("s_mov_b32 s15, 0x00020000")
    k("s_lshl_b32 s55, s53, 13")
    k(f"s_lshl_b32 s56, s{S_WAVE}, 11")
    k("s_add_u32 s55, s55, s56")
    k("s_lshl_b32 s56, s53, 8")
    k(f"s_lshl_b32 s57, s{S_WAVE}, 6")
    k("s_add_u32 s56, s56, s57")
    k("v_lshrrev_b32 v12, 4, v0")
    k("v_lshlrev_b32 v12, 4, v12")
    k("s_waitcnt lgkmcnt(0)")
    for q in range(0, 12, 2):
        k(f"v_pk_add_f32 v[{R+q}:{R+q+1}], v[{R+q}:{R+q+1}], v[{R+12+q}:{R+13+q}]")
        k(f"v_pk_add_f32 v[{R+24+q}:{R+25+q}], v[{R+24+q}:{R+25+q}], v[{R+36+q}:{R+37+q}]")
    for q in range(0, 12, 2):
        k(f"v_pk_add_f32 v[{R+q}:{R+q+1}], v[{R+q}:{R+q+1}], v[{R+24+q}:{R+25+q}]")
    k(f"buffer_store_dwordx4 v[{R}:{R+3}], v{V_TOK}, s[8:11], s55 offen")
    k(f"buffer_store_dwordx4 v[{R+4}:{R+7}], v{V_TOK}, s[8:11], s55 offen offset:1024")
    k("s_mov_b32 exec_lo, 0x00010001")
    k("s_mov_b32 exec_hi, 0x00010001")
    k(f"buffer_store_dwordx4 v[{R+8}:{R+11}], v12, s[12:15], s56 offen")
    k("s_mov_b64 exec, -1")


def epilogue(k):
    k("s_waitcnt vmcnt(0) lgkmcnt(0)")
    k("s_barrier")
    k.nop(8)
    h_part(k)
    consts(k)
    q_part(k)
    k_part(k)
```

```python
from dsl import *
from k1 import XN_OFF, A2_OFF, PHIQ_OFF, KVP_OFF, ZP_OFF
import k2

A2_TT = 144 * 1024
STAGE = 16384
RING = 5
NB = 8
D = 6
SCR = STAGE * RING

V_L16 = 1
V_DMA = 2
V_RD = 6
V_TOK = 10
V_POLL = 12
V_OUT = 13
V_CNTA = 14
T0, T1, T2 = 252, 253, 254
ACC = 16
XRES = 48
A_TOK = 0
A_WF = 128
NAGPR = 160

S_A2 = 8
S_W = 12
S_WOFF = 16
S_TOFF = 17
S_RING = 18
S_RLIM = 19
S_RD = 20
S_DELTA = 21
S_IT = 22
S_WAVE = 23
S_NEG, S_POS = 24, 25
S_WOLO, S_WOHI, S_WOSZ = 26, 27, 28
S_WDN = 29
S_T = 30
S_RB, S_CT = 31, 32
S_CNT = 36
S_CNTOFF = 40
S_OUT = 44
S_BIG = 48


def acc(t, f):
    return ACC + 4 * (4 * t + f)


def tok(setn, t, ks):
    return ar(A_TOK + 32 * setn + 4 * (4 * t + ks), 4)


def wf(n):
    return A_WF + 4 * (n % NB)


def frag_reads(n):
    ks, f = (n % 16) >> 2, n & 3
    b = wf(n)
    return [f"ds_read_b64_tr_b16 {ar(b + 2 * t, 2)}, v{V_RD + f} offset:{ks * 4096 + t * 2048}" for t in range(2)]


def dma(i):
    return [f"s_add_u32 m0, s{S_RING}, {i * 1024}",
            f"buffer_load_dwordx4 v{V_DMA + i}, s[{S_W}:{S_W + 3}], s{S_WOFF} offen lds"]


def w_adv():
    return [[f"s_add_u32 s{S_WOFF}, s{S_WOFF}, {128 * 2048}"],
            [f"s_cmp_eq_u32 s{S_WOFF}, s{S_WDN}",
             f"s_cselect_b32 s{S_W}, s{S_WOLO}, s{S_W}",
             f"s_cselect_b32 s{S_W + 1}, s{S_WOHI}, s{S_W + 1}",
             f"s_cselect_b32 s{S_W + 2}, s{S_WOSZ}, s{S_W + 2}",
             f"s_cselect_b32 s{S_WOFF}, 0, s{S_WOFF}"],
            [f"s_cmp_eq_u32 s{S_RING}, s{S_RLIM}",
             f"s_cselect_b32 s{S_T}, s{S_NEG}, s{S_POS}",
             f"s_add_u32 s{S_RING}, s{S_RING}, s{S_T}"]]


def tokload(setn, t, ks):
    return f"buffer_load_dwordx4 {tok(setn, t, ks)}, v{V_TOK + t}, s[{S_A2}:{S_A2 + 3}], s{S_TOFF} offen offset:{1024 * ks} sc1"


def t_adv():
    return [[f"s_add_u32 s{S_TOFF}, s{S_TOFF}, 4096"],
            [f"s_cmp_eq_u32 s{S_TOFF}, {32768}", f"s_cselect_b32 s{S_TOFF}, s{S_BIG}, s{S_TOFF}"],
            [f"s_cmp_eq_u32 s{S_TOFF}, {A2_TT}", f"s_cselect_b32 s{S_TOFF}, 0, s{S_TOFF}"]]


def o_prologue(k):
    H, RP = 50, 51
    k(f"s_and_b32 s{H}, s2, 31")
    k(f"s_lshr_b32 s{RP}, s2, 5")
    for s, off, size in ((52, KVP_OFF, 2 << 20), (56, ZP_OFF, 64 << 10), (60, PHIQ_OFF, 8 << 20)):
        k(f"s_add_u32 s{s}, s6, {off}")
        k(f"s_addc_u32 s{s+1}, s7, 0")
        k(f"s_mov_b32 s{s+2}, {size}")
        k(f"s_mov_b32 s{s+3}, 0x00020000")
    k(f"s_lshl_b32 s64, s{H}, 16")
    k(f"s_lshl_b32 s65, s{S_WAVE}, 11")
    k("s_add_u32 s64, s64, s65")
    KR = 64
    for r in range(8):
        k(f"buffer_load_dwordx4 v[{KR+8*r}:{KR+8*r+3}], v{V_L16}, s[52:55], s64 offen")
        k(f"buffer_load_dwordx4 v[{KR+8*r+4}:{KR+8*r+7}], v{V_L16}, s[52:55], s64 offen offset:1024")
        if r < 7:
            k("s_add_u32 s64, s64, 8192")
    ZR = 128
    k(f"v_lshrrev_b32 v{T0}, 4, v0")
    k(f"v_lshlrev_b32 v{T0}, 4, v{T0}")
    k(f"s_lshl_b32 s64, s{H}, 11")
    k(f"s_lshl_b32 s65, s{S_WAVE}, 6")
    k("s_add_u32 s64, s64, s65")
    for r in range(8):
        k(f"buffer_load_dwordx4 v[{ZR+4*r}:{ZR+4*r+3}], v{T0}, s[56:59], s64 offen offset:{256*r}")
    ER = 160
    k(f"s_lshl_b32 s64, s{H}, 18")
    k(f"s_lshl_b32 s65, s{RP}, 4")
    k(f"s_lshl_b32 s66, s{S_WAVE}, 2")
    k("s_add_u32 s65, s65, s66")
    k("s_lshl_b32 s66, s65, 11")
    k("s_add_u32 s64, s64, s66")
    for t in range(4):
        k(f"buffer_load_dwordx4 v[{ER+8*t}:{ER+8*t+3}], v{V_L16}, s[60:63], s64 offen")
        k(f"buffer_load_dwordx4 v[{ER+8*t+4}:{ER+8*t+7}], v{V_L16}, s[60:63], s64 offen offset:1024")
        if t < 3:
            k("s_add_u32 s64, s64, 2048")
    return H, RP, KR, ZR, ER


def o_compute(k, H, RP, KR, ZR, ER, nyounger):
    k(f"s_waitcnt vmcnt({min(63, 8 + nyounger)})")
    for q in range(0, 8, 2):
        for r in (1, 2, 3):
            pass
    for r in range(0, 8, 2):
        for q in range(0, 8, 2):
            a = KR + 8 * r + q
            k(f"v_pk_add_f32 v[{a}:{a+1}], v[{a}:{a+1}], v[{a+8}:{a+9}]")
        for q in range(0, 4, 2):
            a = ZR + 4 * r + q
            k(f"v_pk_add_f32 v[{a}:{a+1}], v[{a}:{a+1}], v[{a+4}:{a+5}]")
    for r in range(0, 8, 4):
        for q in range(0, 8, 2):
            a = KR + 8 * r + q
            k(f"v_pk_add_f32 v[{a}:{a+1}], v[{a}:{a+1}], v[{a+16}:{a+17}]")
        for q in range(0, 4, 2):
            a = ZR + 4 * r + q
            k(f"v_pk_add_f32 v[{a}:{a+1}], v[{a}:{a+1}], v[{a+8}:{a+9}]")
    for q in range(0, 8, 2):
        a = KR + q
        k(f"v_pk_add_f32 v[{a}:{a+1}], v[{a}:{a+1}], v[{a+32}:{a+33}]")
    for q in range(0, 4, 2):
        a = ZR + q
        k(f"v_pk_add_f32 v[{a}:{a+1}], v[{a}:{a+1}], v[{a+16}:{a+17}]")
    for q in range(4):
        k(f"v_cvt_pk_bf16_f32 v{KR+q}, v{KR+2*q}, v{KR+2*q+1}")
    k(f"s_lshl_b32 s64, s{S_WAVE}, 10")
    k(f"s_add_u32 s64, s64, {SCR}")
    k(f"v_add_u32 v{T1}, s64, v{V_L16}")
    k(f"ds_write_b128 v{T1}, v[{KR}:{KR+3}]")
    k(f"s_lshl_b32 s64, s{S_WAVE}, 6")
    k(f"s_add_u32 s64, s64, {SCR + 4096}")
    k(f"v_add_u32 v{T2}, s64, v{T0}")
    k(f"ds_write_b128 v{T2}, v[{ZR}:{ZR+3}]")
    k("s_waitcnt lgkmcnt(0)")
    k("s_barrier")
    KA = 64
    k(f"v_add_u32 v{T1}, {SCR}, v{V_L16}")
    for i in range(4):
        k(f"ds_read_b128 v[{KA+4*i}:{KA+4*i+3}], v{T1} offset:{1024*i}")
    ZZ = 80
    k(f"v_add_u32 v{T2}, {SCR + 4096}, v{T0}")
    for i in range(4):
        k(f"ds_read_b128 v[{ZZ+4*i}:{ZZ+4*i+3}], v{T2} offset:{64*i}")
    k(f"v_and_b32 v{T0}, 3, v0")
    k("s_waitcnt lgkmcnt(0)")
    ZA = 96
    k(f"v_cmp_eq_u32 vcc, 0, v{T0}")
    k(f"v_cmp_eq_u32 s[74:75], 1, v{T0}")
    k("v_mov_b32 v15, 0x3f803f80")
    for s in range(2):
        for ft in range(2):
            z = ZZ + 4 * (2 * s + ft)
            k(f"v_cvt_pk_bf16_f32 v{z}, v{z}, v{z+1}")
            k(f"v_cvt_pk_bf16_f32 v{z+1}, v{z+2}, v{z+3}")
    for s in range(2):
        for ft in range(2):
            z = ZZ + 4 * (2 * s + ft)
            for q in range(2):
                d = ZA + 4 * s + 2 * ft + q
                k(f"v_cndmask_b32 v{d}, 0, v{z+q}, vcc")
                k(f"v_cndmask_b32 v{d}, v{d}, v15, s[74:75]")
    k(f"s_waitcnt vmcnt({min(63, nyounger)})")
    k.nop(1)
    NR = 104
    NR = 192
    OF = 104
    k(f"s_mul_i32 s64, s65, {A2_TT}")
    k(f"s_lshl_b32 s66, s{H}, 10")
    k("s_add_u32 s64, s64, s66")
    k("v_mov_b32 v15, 0x358637bd")
    for pair in range(2):
        for ti in range(2):
            t = 2 * pair + ti
            b = NR + 24 * ti
            for s in range(2):
                E = ER + 8 * t + 4 * s
                k(f"v_mfma_f32_16x16x32_bf16 v[{b+16+4*s}:{b+19+4*s}], v[{ZA+4*s}:{ZA+4*s+3}], v[{E}:{E+3}], 0")
            for s in range(2):
                E = ER + 8 * t + 4 * s
                for dt in range(2):
                    A = KA + 4 * (2 * s + dt)
                    o = b + 8 * s + 4 * dt
                    k(f"v_mfma_f32_16x16x32_bf16 v[{o}:{o+3}], v[{A}:{A+3}], v[{E}:{E+3}], 0")
        k.nop(4)
        for ti in range(2):
            b = NR + 24 * ti
            k(f"v_rcp_f32 v{b+17}, v{b+17}")
            k(f"v_rcp_f32 v{b+21}, v{b+21}")
        k.nop(1)
        for ti in range(2):
            b = NR + 24 * ti
            k(f"v_fma_f32 v{b+18}, v{b+16}, v{b+17}, v15")
            k(f"v_fma_f32 v{b+18}, v{b+20}, v{b+21}, v{b+18}")
        for ti in range(2):
            b = NR + 24 * ti
            k(f"v_rcp_f32 v{b+18}, v{b+18}")
        k.nop(3)
        for ti in range(2):
            b = NR + 24 * ti
            k(f"v_mul_f32 v{b+16}, v{b+17}, v{b+18}")
            k(f"v_mul_f32 v{b+20}, v{b+21}, v{b+18}")
        for ti in range(2):
            b = NR + 24 * ti
            for q in range(0, 8, 2):
                k(f"v_pk_mul_f32 v[{b+q}:{b+q+1}], v[{b+q}:{b+q+1}], v[{b+16}:{b+17}] op_sel_hi:[1,0]")
            for q in range(0, 8, 2):
                k(f"v_pk_fma_f32 v[{b+q}:{b+q+1}], v[{b+8+q}:{b+9+q}], v[{b+20}:{b+21}], v[{b+q}:{b+q+1}] op_sel_hi:[1,0,1]")
        for ti in range(2):
            b = NR + 24 * ti
            o = OF + 4 * ti + 8 * pair
            for q in range(4):
                k(f"v_cvt_pk_bf16_f32 v{o+q}, v{b+2*q}, v{b+2*q+1}")
            k(f"buffer_store_dwordx4 v[{o}:{o+3}], v{V_L16}, s[{S_A2}:{S_A2+3}], s64 offen sc1")
            k(f"s_add_u32 s64, s64, {A2_TT}")
    k("s_waitcnt vmcnt(0)")
    k("s_barrier")
    k(f"s_cmp_eq_u32 s{S_WAVE}, 0")
    k("s_cbranch_scc0 L_k3_nopub")
    k(f"s_lshl_b32 s64, s{RP}, 5")
    k(f"v_mov_b32 v{T1}, s64")
    k("v_mov_b32 v15, 1")
    k("s_mov_b64 exec, 1")
    k(f"buffer_atomic_add v15, v{T1}, s[{S_CNT}:{S_CNT+3}], 0 offen")
    k("s_mov_b64 exec, -1")
    k.lab("L_k3_nopub")


def prologue(k):
    k("s_cmp_ge_u32 s2, 256")
    k("s_cbranch_scc1 L_k3_end")
    k("s_load_dwordx2 s[4:5], s[0:1], 56")
    k("s_load_dwordx2 s[6:7], s[0:1], 80")
    k(f"s_load_dwordx2 s[{S_WOLO}:{S_WOHI}], s[0:1], 24")
    k("s_load_dwordx2 s[42:43], s[0:1], 72")
    k("s_load_dwordx2 s[34:35], s[0:1], 0")
    k(f"s_load_dwordx2 s[{S_OUT}:{S_OUT+1}], s[0:1], 64")
    k("v_lshrrev_b32 v13, 6, v0")
    k("v_and_b32 v0, 63, v0")
    k(f"v_lshlrev_b32 v{V_L16}, 4, v0")
    k(f"v_readfirstlane_b32 s{S_WAVE}, v13")
    k("s_and_b32 s50, s2, 7")
    k("s_lshr_b32 s51, s2, 3")
    k("s_lshr_b32 s52, s50, 1")
    k("s_lshl_b32 s52, s52, 2")
    k("s_lshr_b32 s53, s51, 3")
    k(f"s_add_u32 s{S_RB}, s52, s53")
    k("s_and_b32 s52, s50, 1")
    k("s_lshl_b32 s52, s52, 3")
    k("s_and_b32 s53, s51, 7")
    k(f"s_add_u32 s{S_CT}, s52, s53")
    k("s_waitcnt lgkmcnt(0)")
    k(f"s_add_u32 s{S_A2}, s6, {A2_OFF}")
    k(f"s_addc_u32 s{S_A2+1}, s7, 0")
    k(f"s_mov_b32 s{S_A2+2}, {128 * A2_TT}")
    k(f"s_mov_b32 s{S_A2+3}, 0x00020000")
    k(f"s_mov_b32 s{S_W}, s4")
    k(f"s_mov_b32 s{S_W+1}, s5")
    k(f"s_mov_b32 s{S_W+2}, 7340032")
    k(f"s_mov_b32 s{S_W+3}, 0x00020000")
    k(f"s_mov_b32 s{S_CNT}, s42")
    k(f"s_mov_b32 s{S_CNT+1}, s43")
    k(f"s_mov_b32 s{S_CNT+2}, 256")
    k(f"s_mov_b32 s{S_CNT+3}, 0x00020000")
    k(f"s_mov_b32 s{S_OUT+2}, 4194304")
    k(f"s_mov_b32 s{S_OUT+3}, 0x00020000")
    k(f"s_mov_b32 s{S_WOSZ}, 2097152")
    k(f"s_mov_b32 s{S_WDN}, 7340032")
    k(f"s_mov_b32 s{S_NEG}, {(-STAGE * (RING - 1)) & 0xffffffff}")
    k(f"s_mov_b32 s{S_POS}, {STAGE}")
    k(f"s_mov_b32 s{S_BIG}, 0x40000000")
    H, RP, KR, ZR, ER = o_prologue(k)
    k("v_lshrrev_b32 v13, 3, v0")
    k("v_bfe_u32 v14, v0, 1, 2")
    k("v_bfe_u32 v15, v0, 4, 2")
    k("v_xor_b32 v14, v14, v15")
    k("v_lshlrev_b32 v14, 5, v14")
    k("v_and_b32 v15, 1, v0")
    k("v_lshl_add_u32 v14, v15, 4, v14")
    k("v_lshl_add_u32 v14, v13, 11, v14")
    k(f"s_lshl_b32 s64, s{S_CT}, 7")
    k(f"s_lshl_b32 s66, s{S_WAVE}, 16")
    k("s_add_u32 s64, s64, s66")
    k(f"v_add_u32 v{V_DMA}, s64, v14")
    for i in range(1, 4):
        k(f"v_add_u32 v{V_DMA+i}, {i*16384}, v{V_DMA}")
    k(f"s_lshl_b32 s64, s{S_RB}, 3")
    k(f"s_lshl_b32 s66, s{S_WAVE}, 1")
    k("s_add_u32 s64, s64, s66")
    k(f"s_mul_i32 s66, s64, {A2_TT}")
    k(f"v_add_u32 v{V_TOK}, s66, v{V_L16}")
    k(f"v_add_u32 v{V_TOK+1}, {A2_TT}, v{V_TOK}")
    k("v_and_b32 v13, 15, v0")
    k("v_lshlrev_b32 v13, 11, v13")
    k("v_lshrrev_b32 v14, 4, v0")
    k("v_lshl_add_u32 v13, v14, 3, v13")
    k("s_lshl_b32 s66, s64, 15")
    k(f"s_lshl_b32 s67, s{S_CT}, 7")
    k("s_add_u32 s66, s66, s67")
    k("v_add_u32 v13, s66, v13")
    k("s_mov_b32 s68, s34")
    k("s_mov_b32 s69, s35")
    k("s_mov_b32 s70, 4194304")
    k("s_mov_b32 s71, 0x00020000")
    k("s_mov_b32 s72, 32768")
    for t in range(2):
        for f in range(4):
            r = XRES + 2 * (4 * t + f)
            so = "0" if t == 0 else "s72"
            k(f"buffer_load_dwordx2 v[{r}:{r+1}], v13, s[68:71], {so} offen offset:{32*f}")
    nx = 8
    k(f"s_lshl_b32 s{S_RING}, s{S_WAVE}, 12")
    k(f"s_add_u32 s{S_RLIM}, s{S_RING}, {STAGE*(RING-1)}")
    k(f"s_mov_b32 s{S_RD}, 0")
    k(f"s_mov_b32 s{S_WOFF}, 0")
    k(f"s_mov_b32 s{S_TOFF}, 32768")
    n = 0
    for st in range(4):
        for i in range(4):
            a, b = dma(i)
            k(a); k("s_nop 0"); k(b); n += 1
        for grp in w_adv():
            for x in grp:
                k(x)
        if st >= 1:
            for t in range(2):
                for ks in range(4):
                    k(tokload(st - 1, t, ks)); n += 1
            for grp in t_adv():
                for x in grp:
                    k(x)
    k("v_lshrrev_b32 v240, 4, v0")
    k("v_bfe_u32 v241, v0, 2, 2")
    k("v_lshl_add_u32 v242, v240, 2, v241")
    k("v_bfe_u32 v240, v242, 1, 2")
    k("v_lshlrev_b32 v240, 5, v240")
    k("v_and_b32 v241, 3, v0")
    k("v_lshlrev_b32 v241, 3, v241")
    k("v_lshl_add_u32 v241, v242, 7, v241")
    for u in range(4):
        k(f"v_xor_b32 v242, {u*32}, v240")
        k(f"v_add_u32 v{V_RD+u}, v242, v241")
    k(f"s_lshr_b32 s64, s{S_RB}, 1")
    k("s_lshl_b32 s64, s64, 5")
    k(f"v_mov_b32 v{V_CNTA}, s64")
    for i in range(ACC, ACC + 32):
        k(f"v_mov_b32 v{i}, 0")
    o_compute(k, H, RP, KR, ZR, ER, nx + n)
    for n in range(D):
        for x in frag_reads(n):
            k(x)


def stage(k, setn, sub):
    k("s_waitcnt vmcnt(24)")
    k("s_barrier")
    if sub == 1:
        k(f"s_cmp_eq_u32 s{S_IT}, 6")
        k("s_cbranch_scc0 L_k3_nochk")
        k.lab("L_k3_chk")
        k(f"v_readfirstlane_b32 s{S_T}, v{V_POLL}")
        k.nop(1)
        k(f"s_cmp_ge_u32 s{S_T}, 32")
        k("s_cbranch_scc1 L_k3_nochk")
        k("s_sleep 2")
        k(f"buffer_load_dword v{V_POLL}, v{V_CNTA}, s[{S_CNT}:{S_CNT+3}], 0 offen sc1")
        k("s_waitcnt vmcnt(0)")
        k("s_branch L_k3_chk")
        k.lab("L_k3_nochk")
    fill = {m: [] for m in range(32)}
    for n in range(16):
        rd = frag_reads(n + D)
        fill[2 * n].append(rd[0])
        fill[2 * n + 1].append(rd[1])
    for i in range(4):
        a, b = dma(i)
        fill[1 + 2 * i].append(a)
        fill[2 + 2 * i].append(b)
    wa = w_adv()
    fill[9] += wa[0]; fill[10] += wa[1]; fill[11] += wa[2]
    j = 0
    for t in range(2):
        for ks in range(4):
            fill[12 + 2 * j].append(tokload((setn + 3) % 4, t, ks)); j += 1
    ta = t_adv()
    fill[28] += ta[0]; fill[29] += ta[1]; fill[30] += ta[2]
    if sub == 2:
        fill[27].append(f"buffer_load_dword v{V_POLL}, v{V_CNTA}, s[{S_CNT}:{S_CNT+3}], 0 offen sc1")
    fill[13].append(f"s_cmp_eq_u32 s{S_RD}, {STAGE*(RING-1)}")
    fill[13].append(f"s_cselect_b32 s{S_DELTA}, s{S_NEG}, s{S_POS}")
    fill[15].append(f"s_add_u32 s{S_RD}, s{S_RD}, s{S_DELTA}")
    for f in range(4):
        fill[2 * (6 + f) + 1 + 2 * 2].append(f"v_add_u32 v{V_RD+f}, s{S_DELTA}, v{V_RD+f}")
    for n in range(16):
        k(f"s_waitcnt lgkmcnt({2*(D-1)})")
        ks, f = n >> 2, n & 3
        for t in range(2):
            c = acc(t, f)
            k(f"v_mfma_f32_16x16x32_bf16 v[{c}:{c+3}], {ar(wf(n), 4)}, {tok(setn, t, ks)}, v[{c}:{c+3}]")
            for x in fill[2 * n + t]:
                k(x)


def epilogue(k):
    k("s_waitcnt vmcnt(0) lgkmcnt(0)")
    k.nop(8)
    for t in range(2):
        for f in range(4):
            c = acc(t, f)
            x = XRES + 2 * (4 * t + f)
            k(f"v_lshlrev_b32 v64, 16, v{x}")
            k(f"v_and_b32 v65, 0xffff0000, v{x}")
            k(f"v_lshlrev_b32 v66, 16, v{x+1}")
            k(f"v_and_b32 v67, 0xffff0000, v{x+1}")
            k(f"v_pk_add_f32 v[{c}:{c+1}], v[{c}:{c+1}], v[64:65]")
            k(f"v_pk_add_f32 v[{c+2}:{c+3}], v[{c+2}:{c+3}], v[66:67]")
            k(f"v_cvt_pk_bf16_f32 v{c}, v{c}, v{c+1}")
            k(f"v_cvt_pk_bf16_f32 v{c+1}, v{c+2}, v{c+3}")
            so = "0" if t == 0 else "s72"
            k(f"buffer_store_dwordx2 v[{c}:{c+1}], v{V_OUT}, s[{S_OUT}:{S_OUT+3}], {so} offen offset:{32*f}")


def gen_k3(stamps=False):
    k = Kern("k3_gemm2_kernel")
    if stamps:
        stamp(k, 0)
    prologue(k)
    if stamps:
        stamp(k, 1)
    k(f"s_mov_b32 s{S_IT}, 0")
    k.lab("L_k3_loop")
    for s_ in range(4):
        stage(k, s_, s_)
    k(f"s_add_u32 s{S_IT}, s{S_IT}, 1")
    k(f"s_cmp_lt_u32 s{S_IT}, 9")
    k("s_cbranch_scc1 L_k3_loop")
    if stamps:
        stamp(k, 2)
    epilogue(k)
    if stamps:
        k("s_waitcnt vmcnt(0)")
        stamp(k, 3)
        stamp_store(k)
    k.lab("L_k3_end")
    k("s_endpgm")
    return k, descriptor("k3_gemm2_kernel", 256 + NAGPR, 256), f"; @launch kernel=k3_gemm2_kernel grid=(256,1,1) block=(256,1,1) lds={SCR + 8192}"


STAMP_OFF = 60 << 20
def stamp(k, i):
    k(f"s_memtime s[{80+4*i}:{81+4*i}]")
    k(f"s_memrealtime s[{82+4*i}:{83+4*i}]")
    k("s_waitcnt lgkmcnt(0)")


def stamp_store(k, n=4, kid=1):
    k(f"s_add_u32 s8, s6, {STAMP_OFF + kid * 65536}")
    k("s_addc_u32 s9, s7, 0")
    k("s_mov_b32 s10, 65536")
    k("s_mov_b32 s11, 0x00020000")
    k("s_lshl_b32 s51, s2, 8")
    k("v_mov_b32 v64, s51")
    k("v_cmp_eq_u32 vcc, 0, v0")
    k("s_and_saveexec_b64 s[52:53], vcc")
    k(f"s_cmp_eq_u32 s{S_WAVE}, 0")
    k("s_cbranch_scc0 L_k3_nostamp")
    for i in range(n):
        k(f"v_mov_b32 v65, s{80+4*i}")
        k(f"v_mov_b32 v66, s{82+4*i}")
        k(f"buffer_store_dword v65, v64, s[8:11], 0 offen offset:{8*i}")
        k(f"buffer_store_dword v66, v64, s[8:11], 0 offen offset:{8*i+4}")
    k.lab("L_k3_nostamp")
    k("s_mov_b64 exec, s[52:53]")
```

```python
import sys
from build import *
import k1, k2, k2e, k3g as k3
stamps = "--stamps" in sys.argv
out = [a for a in sys.argv[1:] if not a.startswith("--")]
out = out[0] if out else "parallel_sum__linear_kernel_hedgehog__glu_gated_reglu__prompt.s"
ok = assemble([k1.gen_k1(), k2.gen_k2(stamps=stamps, epilogue=k2e.epilogue), k3.gen_k3(stamps=stamps)], out)
print("hazards ok:", ok, "->", out)
```

```python
from dsl import *

XN_OFF = 0
A2_OFF = 4 << 20
PHIQ_OFF = 24 << 20
KVP_OFF = 32 << 20
ZP_OFF = 35 << 20
FLG_OFF = 36 << 20
XCH_OFF = 40 << 20


def srd(k, s, ptr, size, off=0):
    if off:
        k(f"s_add_u32 s{s}, s{ptr}, {off}")
        k(f"s_addc_u32 s{s+1}, s{ptr+1}, 0")
    else:
        k(f"s_mov_b32 s{s}, s{ptr}")
        k(f"s_mov_b32 s{s+1}, s{ptr+1}")
    k(f"s_mov_b32 s{s+2}, {size}")
    k(f"s_mov_b32 s{s+3}, 0x00020000")


def xreduce_add(k, a, b, op="v_add_f32"):
    k(f"v_mov_b32 v{b}, v{a}")
    k.nop(2)
    k(f"v_permlane16_swap_b32 v{a}, v{b}")
    k.nop(1)
    k(f"{op} v{a}, v{a}, v{b}")
    k(f"v_mov_b32 v{b}, v{a}")
    k.nop(2)
    k(f"v_permlane32_swap_b32 v{a}, v{b}")
    k.nop(1)
    k(f"{op} v{a}, v{a}, v{b}")


def gen_k1():
    k = Kern("k1_ln_kernel")
    k("s_cmp_ge_u32 s2, 128")
    k("s_cbranch_scc1 L_k1_end")
    k("s_load_dwordx2 s[4:5], s[0:1], 0")
    k("s_load_dwordx2 s[6:7], s[0:1], 80")
    k("v_and_b32 v1, 63, v0")
    k("v_lshrrev_b32 v2, 6, v0")
    k("v_and_b32 v3, 15, v1")
    k("v_lshrrev_b32 v4, 4, v1")
    k("v_lshlrev_b32 v5, 11, v3")
    k("v_lshl_add_u32 v5, v4, 4, v5")
    k("v_lshl_add_u32 v5, v2, 8, v5")
    k("s_lshl_b32 s16, s2, 15")
    k("s_waitcnt lgkmcnt(0)")
    srd(k, 8, 4, 4194304)
    srd(k, 12, 6, 4194304, XN_OFF)
    for i in range(4):
        k(f"buffer_load_dwordx4 v[{16+4*i}:{19+4*i}], v5, s[8:11], s16 offen offset:{64*i}")
    k(f"s_add_u32 s24, s6, {FLG_OFF}")
    k("s_addc_u32 s25, s7, 0")
    k(f"s_mov_b32 s26, {64 << 10}")
    k("s_mov_b32 s27, 0x00020000")
    k("s_lshl_b32 s28, s2, 9")
    k("v_lshlrev_b32 v9, 2, v0")
    k("v_mov_b32 v10, 0")
    k("v_cmp_gt_u32 vcc, 128, v0")
    k("s_and_saveexec_b64 s[30:31], vcc")
    k("s_cbranch_execz L_k1_nz")
    k("buffer_store_dword v10, v9, s[24:27], s28 offen")
    k.lab("L_k1_nz")
    k("s_mov_b64 exec, s[30:31]")
    k("v_lshlrev_b32 v6, 4, v1")
    k("v_lshl_add_u32 v6, v2, 14, v6")
    k("s_lshr_b32 s17, s2, 2")
    k("s_lshl_b32 s17, s17, 17")
    k("s_and_b32 s18, s2, 3")
    k("s_lshl_b32 s18, s18, 10")
    k("s_add_u32 s17, s17, s18")
    k("s_add_u32 s18, s17, 4096")
    k("s_add_u32 s19, s17, 8192")
    k("s_add_u32 s20, s17, 12288")
    k("v_lshlrev_b32 v7, 5, v3")
    k("v_lshl_add_u32 v8, v2, 2, v7")
    k("s_mov_b32 s21, 0xffff0000")
    k("s_waitcnt vmcnt(0)")
    for i in range(16):
        k(f"v_lshlrev_b32 v{32+2*i}, 16, v{16+i}")
        k(f"v_and_b32 v{33+2*i}, s21, v{16+i}")
    k("v_pk_add_f32 v[10:11], v[32:33], v[34:35]")
    k("v_pk_add_f32 v[12:13], v[36:37], v[38:39]")
    for i in range(4, 16, 2):
        k(f"v_pk_add_f32 v[10:11], v[10:11], v[{32+2*i}:{33+2*i}]")
        k(f"v_pk_add_f32 v[12:13], v[12:13], v[{34+2*i}:{35+2*i}]")
    k("v_pk_add_f32 v[10:11], v[10:11], v[12:13]")
    k("v_add_f32 v10, v10, v11")
    xreduce_add(k, 10, 11)
    k("ds_write_b32 v8, v10")
    k("s_waitcnt lgkmcnt(0)")
    k("s_barrier")
    k("ds_read_b128 v[64:67], v7")
    k("ds_read_b128 v[68:71], v7 offset:16")
    k("s_waitcnt lgkmcnt(0)")
    k("v_pk_add_f32 v[64:65], v[64:65], v[66:67]")
    k("v_pk_add_f32 v[68:69], v[68:69], v[70:71]")
    k("v_pk_add_f32 v[64:65], v[64:65], v[68:69]")
    k("v_add_f32 v64, v64, v65")
    k("v_mul_f32 v64, 0xba800000, v64")
    for i in range(16):
        k(f"v_pk_add_f32 v[{32+2*i}:{33+2*i}], v[{32+2*i}:{33+2*i}], v[64:65] op_sel_hi:[1,0]")
    k("v_pk_mul_f32 v[10:11], v[32:33], v[32:33]")
    k("v_pk_mul_f32 v[12:13], v[34:35], v[34:35]")
    for i in range(2, 16, 2):
        k(f"v_pk_fma_f32 v[10:11], v[{32+2*i}:{33+2*i}], v[{32+2*i}:{33+2*i}], v[10:11]")
        k(f"v_pk_fma_f32 v[12:13], v[{34+2*i}:{35+2*i}], v[{34+2*i}:{35+2*i}], v[12:13]")
    k("v_pk_add_f32 v[10:11], v[10:11], v[12:13]")
    k("v_add_f32 v10, v10, v11")
    xreduce_add(k, 10, 11)
    k("ds_write_b32 v8, v10 offset:512")
    k("s_waitcnt lgkmcnt(0)")
    k("s_barrier")
    k("ds_read_b128 v[64:67], v7 offset:512")
    k("ds_read_b128 v[68:71], v7 offset:528")
    k("s_waitcnt lgkmcnt(0)")
    k("v_pk_add_f32 v[64:65], v[64:65], v[66:67]")
    k("v_pk_add_f32 v[68:69], v[68:69], v[70:71]")
    k("v_pk_add_f32 v[64:65], v[64:65], v[68:69]")
    k("v_add_f32 v64, v64, v65")
    k("v_mov_b32 v65, 0x3727c5ac")
    k("v_fmac_f32 v65, 0x3a800000, v64")
    k("v_rsq_f32 v64, v65")
    k.nop(1)
    for i in range(16):
        k(f"v_pk_mul_f32 v[{32+2*i}:{33+2*i}], v[{32+2*i}:{33+2*i}], v[64:65] op_sel_hi:[1,0]")
    for i in range(16):
        k(f"v_cvt_pk_bf16_f32 v{16+i}, v{32+2*i}, v{33+2*i}")
    k.nop(2)
    for i in range(4):
        b = 16 + 4 * i
        k(f"v_permlane16_swap_b32 v{b}, v{b+2}")
        k(f"v_permlane16_swap_b32 v{b+1}, v{b+3}")
    k.nop(2)
    for i in range(4):
        b = 16 + 4 * i
        k(f"v_permlane32_swap_b32 v{b}, v{b+2}")
        k(f"v_permlane32_swap_b32 v{b+1}, v{b+3}")
    for i in range(4):
        b = 16 + 4 * i
        k(f"buffer_store_dwordx4 v[{b}:{b+3}], v6, s[12:15], s{17+i} offen")
    k.lab("L_k1_end")
    k("s_endpgm")
    return k, descriptor("k1_ln_kernel", 72, 72), "; @launch kernel=k1_ln_kernel grid=(128,1,1) block=(512,1,1) lds=1024"
```

```python
from dsl import *
from k1 import srd, XN_OFF, A2_OFF, PHIQ_OFF, KVP_OFF, ZP_OFF

STAGE = 20480
RING = 5
NS = 4
ROT = True
PD = RING - 2
NB = 10
DBG_OFF = 64 << 20
WPHI_OFF = STAGE * RING

V_TOK = 1
V_DMA = 2
V_AQ0, V_AQ1, V_AG = 7, 8, 9
ACC_V0 = 16
A_TOK = 80
A_WF = A_TOK + 16 * NS
NAGPR = A_WF + 4 * NB

S_XN = 8
S_W = 12
S_SOFF = 32
S_SSTR = 37
S_TOFF = 42
S_RING = 43
S_RLIM = 44
S_RD = 45
S_CNT = 46
S_WAVE = 47
S_J = 48
S_R = 49
S_DELTA = 50
S_T0 = 51
S_IDX, S_WB, S_ROT, S_P = 70, 71, 72, 73
S_NEG = 66
S_POS = 67
S_C1 = 68
S_C2 = 69


def acc(n, t):
    if t < 3:
        return vr(ACC_V0 + 80 * t + 4 * n, 4)
    return ar(4 * n, 4)


def tok(setn, t):
    return ar(A_TOK + 16 * setn + 4 * t, 4)


def wf(n):
    return A_WF + 4 * (n % NB)


def frag_reads(n):
    b = wf(n)
    out = []
    for t in range(2):
        if n < 6:
            m, hf = n >> 1, n & 1
            a = V_AQ1 if hf else V_AQ0
            off = t * 3072 + m * 64
        else:
            u, isu = (n - 6) >> 1, (n - 6) & 1
            a = V_AG
            off = 6144 + isu * 7168 + t * 3584 + u * 32
        out.append(f"ds_read_b64_tr_b16 {ar(b + 2 * t, 2)}, v{a} offset:{off}")
    return out


def mfma(n, t, setn):
    w = ar(wf(n), 4)
    x = tok(setn, t)
    c = acc(n, t)
    if n in (4, 5):
        return f"v_mfma_f32_16x16x32_bf16 {c}, {x}, {w}, {c}"
    return f"v_mfma_f32_16x16x32_bf16 {c}, {w}, {x}, {c}"


def dma(i):
    return [f"s_add_u32 m0, s{S_RING}, {i * 1024}",
            f"s_mul_i32 s{S_SOFF + i}, s{S_P}, s{S_SSTR + i}",
            f"buffer_load_dwordx4 v{V_DMA + i}, s[{S_W + 4 * i}:{S_W + 4 * i + 3}], s{S_SOFF + i} offen lds"]


def p_adv():
    return [[f"s_lshl_b32 s{S_TOFF}, s{S_P}, 12",
             f"s_add_u32 s{S_IDX}, s{S_IDX}, 1",
             f"s_and_b32 s{S_IDX}, s{S_IDX}, 7"],
            [f"s_cmp_eq_u32 s{S_IDX}, s{S_ROT}",
             f"s_cselect_b32 s{S_T0}, 8, 0",
             f"s_add_u32 s{S_WB}, s{S_WB}, s{S_T0}",
             f"s_add_u32 s{S_P}, s{S_WB}, s{S_IDX}"]]


def ring_adv():
    return [f"s_cmp_eq_u32 s{S_RING}, s{S_RLIM}",
            f"s_cselect_b32 s{S_T0}, s{S_NEG}, s{S_POS}",
            f"s_add_u32 s{S_RING}, s{S_RING}, s{S_T0}"]


def tokload(setn, t):
    return [f"buffer_load_dwordx4 {tok(setn, t)}, v{V_TOK}, s[{S_XN}:{S_XN + 3}], s{S_TOFF} offen offset:{1024 * t}"]


FINE = False

def prologue(k, D):
    k("s_cmp_ge_u32 s2, 256")
    k("s_cbranch_scc1 L_k2_end")
    k("s_load_dwordx2 s[4:5], s[0:1], 8")
    k("s_load_dwordx2 s[6:7], s[0:1], 40")
    k("s_load_dwordx2 s[60:61], s[0:1], 48")
    k("s_load_dwordx2 s[62:63], s[0:1], 80")
    k("s_load_dwordx2 s[64:65], s[0:1], 16")
    k("v_lshrrev_b32 v10, 6, v0")
    k("v_and_b32 v0, 63, v0")
    k("s_and_b32 s51, s2, 7")
    k("v_readfirstlane_b32 s47, v10")
    k("s_lshr_b32 s52, s2, 3")
    k("s_and_b32 s53, s52, 3")
    k("s_lshl_b32 s48, s51, 2")
    k("s_add_u32 s48, s48, s53")
    k("s_lshr_b32 s49, s52, 2")
    k(f"v_lshlrev_b32 v{V_TOK}, 4, v0")
    k("s_waitcnt lgkmcnt(0)")
    if FINE: stamp(k, 1)
    k("s_lshl_b32 s51, s49, 2")
    k("s_add_u32 s51, s51, s47")
    k("s_lshl_b32 s51, s51, 17")
    k(f"s_add_u32 s{S_XN}, s62, s51")
    k(f"s_addc_u32 s{S_XN+1}, s63, 0")
    k(f"s_mov_b32 s{S_XN+2}, 131072")
    k(f"s_mov_b32 s{S_XN+3}, 0x00020000")
    if ROT:
        k(f"s_and_b32 s51, s{S_J}, 3")
        k("s_lshl_b32 s51, s51, 1")
        k(f"s_add_u32 s51, s51, s{S_R}")
        k(f"s_and_b32 s{S_ROT}, s51, 7")
    else:
        k(f"s_mov_b32 s{S_ROT}, 0")
    k(f"s_mov_b32 s{S_IDX}, s{S_ROT}")
    k(f"s_mov_b32 s{S_P}, s{S_ROT}")
    k(f"s_mov_b32 s{S_WB}, 0")
    k(f"s_mov_b32 s{S_C1}, 7340032")
    k(f"s_mov_b32 s{S_C2}, {32*7168}")
    k(f"s_mov_b32 s{S_NEG}, {(-STAGE*(RING-1)) & 0xffffffff}")
    k(f"s_mov_b32 s{S_POS}, {STAGE}")
    k("s_mul_i32 s54, s47, 5")
    k("s_mul_i32 s55, s48, 224")
    k("s_lshl_b32 s56, s48, 6")
    k(f"s_lshl_b32 s{S_RING}, s54, 10")
    k(f"s_add_u32 s{S_RLIM}, s{S_RING}, {STAGE*(RING-1)}")
    k(f"s_mov_b32 s{S_RD}, 0")
    for i in range(5):
        S = S_W + 4 * i
        k(f"s_add_u32 s51, s54, {i}")
        k("s_cmp_lt_u32 s51, 13")
        k(f"s_cselect_b32 s{S}, s6, s60")
        k(f"s_cselect_b32 s{S+1}, s7, s61")
        k("s_cselect_b32 s52, 6, 13")
        k("s_cmp_lt_u32 s51, 6")
        k(f"s_cselect_b32 s{S}, s4, s{S}")
        k(f"s_cselect_b32 s{S+1}, s5, s{S+1}")
        k(f"s_cselect_b32 s{S+2}, 6291456, s{S_C1}")
        k(f"s_mov_b32 s{S+3}, 0x00020000")
        k("s_cselect_b32 s52, 0, s52")
        k(f"s_cselect_b32 s{S_SSTR+i}, {32*6144}, s{S_C2}")
        k("s_sub_u32 s53, s51, s52")
        k("s_lshl_b32 s53, s53, 6")
        k("v_add_u32 v10, s53, v0")
        k("s_cmp_lt_u32 s51, 6")
        k(f"s_cbranch_scc1 L_k2_q{i}")
        k("v_mul_u32_u24 v11, 4682, v10")
        k("v_lshrrev_b32 v11, 16, v11")
        k("v_mul_u32_u24 v12, 14, v11")
        k("v_sub_u32 v12, v10, v12")
        k("v_mul_u32_u24 v11, 7168, v11")
        k("v_lshl_add_u32 v11, v12, 4, v11")
        k(f"v_add_u32 v{V_DMA+i}, s55, v11")
        k(f"s_branch L_k2_qd{i}")
        k.lab(f"L_k2_q{i}")
        k("v_mul_u32_u24 v12, 5462, v10")
        k("v_lshrrev_b32 v12, 16, v12")
        k("v_mul_u32_u24 v13, 12, v12")
        k("v_sub_u32 v13, v10, v13")
        k("v_lshrrev_b32 v14, 2, v13")
        k("v_and_b32 v13, 3, v13")
        k("v_lshrrev_b32 v15, 1, v12")
        k("v_and_b32 v15, 2, v15")
        k("v_xor_b32 v13, v13, v15")
        k("v_mul_u32_u24 v12, 6144, v12")
        k("v_lshl_add_u32 v12, v14, 11, v12")
        k("v_lshl_add_u32 v12, v13, 4, v12")
        k(f"v_add_u32 v{V_DMA+i}, s56, v12")
        k.lab(f"L_k2_qd{i}")
        a, b, c = dma(i)
        k(a); k(b); k(c)

    def adv():
        for g in p_adv():
            for x in g:
                k(x)
        for x in ring_adv():
            k(x)

    def group(st):
        for i in range(5):
            a, b, c = dma(i)
            k(a); k(b); k(c)
        for t in range(4):
            k(tokload(st - 1, t)[0])
        adv()

    adv()
    group(1)
    k("s_lshl_b32 s51, s48, 11")
    k("s_add_u32 s56, s64, s51")
    k("s_addc_u32 s57, s65, 0")
    k("s_mov_b32 s58, 2048")
    k("s_mov_b32 s59, 0x00020000")
    k(f"s_mov_b32 m0, {WPHI_OFF}")
    k("s_nop 0")
    k(f"buffer_load_dwordx4 v{V_TOK}, s[56:59], 0 offen lds")
    k(f"buffer_load_dwordx4 v{V_TOK}, s[56:59], 0 offen offset:1024 lds")
    if FINE: stamp(k, 2)
    k("v_lshrrev_b32 v10, 4, v0")
    k("v_bfe_u32 v11, v0, 2, 2")
    k("v_and_b32 v12, 3, v0")
    k("v_lshl_add_u32 v13, v10, 2, v11")
    k(f"v_mul_u32_u24 v{V_AG}, 224, v13")
    k(f"v_lshl_add_u32 v{V_AG}, v12, 3, v{V_AG}")
    k(f"v_mul_u32_u24 v{V_AQ0}, 192, v13")
    k("v_and_b32 v14, 1, v12")
    k(f"v_lshl_add_u32 v{V_AQ0}, v14, 3, v{V_AQ0}")
    k("v_lshrrev_b32 v14, 1, v12")
    k(f"v_lshl_add_u32 v{V_AQ0}, v14, 4, v{V_AQ0}")
    k("v_and_b32 v14, 1, v10")
    k(f"v_lshl_add_u32 v{V_AQ1}, v14, 5, 0")
    k(f"v_xor_b32 v15, 32, v{V_AQ1}")
    k(f"v_add_u32 v15, v15, v{V_AQ0}")
    k(f"v_add_u32 v{V_AQ0}, v{V_AQ1}, v{V_AQ0}")
    k(f"v_mov_b32 v{V_AQ1}, v15")
    for i in range(ACC_V0, 256):
        k(f"v_mov_b32 v{i}, 0")
    for i in range(80):
        k(f"v_accvgpr_write_b32 a{i}, 0")
    for st in range(2, RING - 1):
        group(st)
    if FINE: stamp(k, 3)
    side_jobs_setup(k)
    k(f"s_waitcnt vmcnt({9 * (RING - 2) + 2})")
    k("s_barrier")
    for n in range(D):
        for x in frag_reads(n):
            k(x)


def side_jobs_setup(k):
    from k1 import XCH_OFF
    k("s_load_dwordx2 s[76:77], s[0:1], 56")
    k("s_load_dwordx2 s[80:81], s[0:1], 24")
    k("s_lshl_b32 s52, s2, 2")
    k(f"s_add_u32 s52, s52, s{S_WAVE}")
    k("v_lshlrev_b32 v10, 7, v0")
    k("v_and_b32 v11, 0x7ff, v10")
    k("s_mov_b32 s78, 7340032")
    k("s_mov_b32 s79, 0x00020000")
    k("s_mov_b32 s82, 2097152")
    k("s_mov_b32 s83, 0x00020000")
    k(f"s_mul_i32 s74, s52, {56 * 128}")
    k("s_lshl_b32 s75, s52, 11")
    k(f"s_add_u32 s84, s62, {XCH_OFF}")
    k("s_addc_u32 s85, s63, 0")
    k(f"s_mov_b32 s86, {4 << 20}")
    k("s_mov_b32 s87, 0x00020000")
    k("s_lshl_b32 s88, s52, 12")
    k("s_lshr_b32 s89, s2, 3")
    k("s_mul_i32 s52, s89, 43")
    k("s_lshr_b32 s52, s52, 8")
    k("s_mul_i32 s52, s52, 6")
    k("s_sub_u32 s89, s89, s52")
    k("s_add_u32 s89, s89, 1")
    for q in range(4):
        k(f"v_mov_b32 v{12+q}, -1")
    k("s_waitcnt lgkmcnt(0)")


def side_jobs(k):
    k(f"s_cmp_eq_u32 s{S_CNT}, s89")
    k("s_cbranch_scc0 L_k2_noside")
    k("buffer_load_dword a252, v10, s[76:79], s74 offen")
    k("buffer_load_dword a253, v11, s[80:83], s75 offen")
    for q in range(4):
        k(f"buffer_store_dwordx4 v[12:15], v{V_TOK}, s[84:87], s88 offen offset:{1024 * q}")
    k.lab("L_k2_noside")


def step(k, setn, D, sched=None):
    k(f"s_waitcnt vmcnt({9 * (RING - 3)})")
    k("s_barrier")
    fill = {m: [] for m in range(80)}
    for n in range(20):
        nn = n + D
        rd = frag_reads(nn % 20)
        fill[4 * n + 0].append(rd[0])
        fill[4 * n + 2].append(rd[1])
    for i in range(5):
        a, b, c = dma(i)
        m = 4 * (2 * i + 1)
        fill[m - 1].append(b)
        fill[m + 1].append(a)
        fill[m + 3].append(c)
    for t in range(4):
        fill[4 * (11 + 2 * t) + 1].append(tokload((setn + RING - 2) % NS, t)[0])
    pa = p_adv()
    fill[73] += pa[0]; fill[75] += pa[1]
    ra = ring_adv()
    fill[77] += ra
    fill[31].append(f"s_cmp_eq_u32 s{S_RD}, {STAGE*(RING-1)}")
    fill[31].append(f"s_cselect_b32 s{S_DELTA}, s{S_NEG}, s{S_POS}")
    fill[35].append(f"s_add_u32 s{S_RD}, s{S_RD}, s{S_DELTA}")
    fill[37].append(f"v_add_u32 v{V_AQ0}, s{S_DELTA}, v{V_AQ0}")
    fill[39].append(f"v_add_u32 v{V_AQ1}, s{S_DELTA}, v{V_AQ1}")
    g = 20 - D
    fill[4 * (19 - D) + 3].append(f"v_add_u32 v{V_AG}, s{S_DELTA}, v{V_AG}")
    for n in range(20):
        k(f"s_waitcnt lgkmcnt({2 * (D - 1)})")
        for t in range(4):
            m = 4 * n + t
            k(mfma(n, t, setn))
            for x in fill[m]:
                k(x)


def debug_epilogue(k):
    k("s_waitcnt vmcnt(0) lgkmcnt(0)")
    k.nop(16)
    k("s_lshl_b32 s51, s2, 2")
    k("s_add_u32 s51, s51, s47")
    k("s_mul_i32 s51, s51, 81920")
    k(f"s_add_u32 s8, s62, {DBG_OFF}")
    k("s_addc_u32 s9, s63, 0")
    k("s_add_u32 s8, s8, s51")
    k("s_addc_u32 s9, s9, 0")
    k("s_mov_b32 s10, 81920")
    k("s_mov_b32 s11, 0x00020000")
    k("s_mov_b32 s52, 0")
    for n in range(20):
        for t in range(4):
            k(f"buffer_store_dwordx4 {acc(n, t)}, v{V_TOK}, s[8:11], s52 offen")
            k("s_add_u32 s52, s52, 1024")


STAMP_OFF = 60 << 20
def stamp(k, i):
    k("s_memtime s[100:101]")
    k("s_memrealtime s[98:99]")
    k("s_waitcnt lgkmcnt(0)")
    k(f"s_mov_b32 s{90+2*i}, s100")
    k(f"s_mov_b32 s{91+2*i}, s98")

def stamp_store(k, n, wsreg=62, kid=0):
    k(f"s_add_u32 s8, s{wsreg}, {STAMP_OFF + kid * 65536}")
    k(f"s_addc_u32 s9, s{wsreg+1}, 0")
    k("s_mov_b32 s10, 65536")
    k("s_mov_b32 s11, 0x00020000")
    k("s_lshl_b32 s51, s2, 8")
    k("v_mov_b32 v10, s51")
    k("v_cmp_eq_u32 vcc, 0, v0")
    k(f"s_and_saveexec_b64 s[52:53], vcc")
    k("s_cmp_eq_u32 s47, 0")
    k("s_cbranch_scc0 L_nostamp")
    for i in range(n):
        k(f"v_mov_b32 v11, s{90+2*i}")
        k(f"v_mov_b32 v12, s{91+2*i}")
        k(f"buffer_store_dword v11, v10, s[8:11], 0 offen offset:{8*i}")
        k(f"buffer_store_dword v12, v10, s[8:11], 0 offen offset:{8*i+4}")
    k.lab("L_nostamp")
    k("s_mov_b64 exec, s[52:53]")

def gen_k2(D=4, debug=False, epilogue=None, stamps=False, stepfn=None):
    k = Kern("k2_gemm1_kernel")
    if stamps:
        stamp(k, 0)
    prologue(k, D)
    if stamps and FINE:
        stamp(k, 4)
        stamp_store(k, 5)
        k("s_endpgm")
    if stamps:
        stamp(k, 1)
        k("s_nop 0")
        for n in range(D):
            pass
    k(f"s_mov_b32 s{S_CNT}, 0")
    k.lab("L_k2_loop")
    side_jobs(k)
    for s in range(NS):
        (stepfn or step)(k, s, D)
    k(f"s_add_u32 s{S_CNT}, s{S_CNT}, 1")
    k(f"s_cmp_lt_u32 s{S_CNT}, {32 // NS}")
    k("s_cbranch_scc1 L_k2_loop")
    if stamps:
        stamp(k, 2)
    if debug:
        debug_epilogue(k)
    elif epilogue:
        epilogue(k)
    if stamps:
        k("s_waitcnt vmcnt(0)")
        stamp(k, 3)
        stamp_store(k, 4)
    k.lab("L_k2_end")
    k("s_endpgm")
    nv = 256 + 254
    return k, descriptor("k2_gemm1_kernel", nv, 256), f"; @launch kernel=k2_gemm1_kernel grid=(256,1,1) block=(256,1,1) lds={STAGE*RING + 2048}"
```

```python
from dsl import *
from k1 import XN_OFF, A2_OFF, PHIQ_OFF, KVP_OFF, ZP_OFF, XCH_OFF
import k2
from k2 import V_TOK, WPHI_OFF, S_WAVE, S_J, S_R

A2_TT = 144 * 1024
LOG2E = 0x3fb8aa3b
QB = [16, 96, 176, 200]
XR = [40, 48, 56, 64]
ER = [120, 128, 136, 144]
ST = [72, 76, 80, 84]
WP0, WP1, SEL0, SEL1, ONES = 224, 228, 232, 236, 240
S_L2E = 74
S_SRD = 8
S_SRD2 = 12


def h_part(k):
    k(f"s_add_u32 s8, s62, {A2_OFF}")
    k("s_addc_u32 s9, s63, 0")
    k(f"s_mov_b32 s10, {128 * A2_TT}")
    k("s_mov_b32 s11, 0x00020000")
    k(f"s_lshl_b32 s52, s{S_R}, 4")
    k(f"s_lshl_b32 s53, s{S_WAVE}, 2")
    k("s_add_u32 s52, s52, s53")
    k(f"s_mul_i32 s53, s{S_J}, 7")
    k("s_lshr_b32 s53, s53, 1")
    k("s_add_u32 s53, s53, 32")
    k("s_lshl_b32 s53, s53, 10")
    k(f"s_mul_i32 s54, s52, {A2_TT}")
    k("s_add_u32 s54, s54, s53")

    def compute(G0, H, srcs):
        for u in range(7):
            G, U = srcs[u]
            for jj in range(4):
                k(f"v_max_f32 v{G+jj}, 0, v{G+jj}")
            k(f"v_pk_mul_f32 v[{G}:{G+1}], v[{G}:{G+1}], v[{U}:{U+1}]")
            k(f"v_pk_mul_f32 v[{G+2}:{G+3}], v[{G+2}:{G+3}], v[{U+2}:{U+3}]")
            k(f"v_cvt_pk_bf16_f32 v{H+2*u}, v{G}, v{G+1}")
            k(f"v_cvt_pk_bf16_f32 v{H+2*u+1}, v{G+2}, v{G+3}")

    def stores(H, t):
        k(f"s_bitcmp1_b32 s{S_J}, 0")
        k(f"s_cbranch_scc1 L_hodd{t}")
        k(f"buffer_store_dwordx4 v[{H}:{H+3}], v{V_TOK}, s[8:11], s54 offen")
        k(f"buffer_store_dwordx4 v[{H+4}:{H+7}], v{V_TOK}, s[8:11], s54 offen offset:1024")
        k(f"buffer_store_dwordx4 v[{H+8}:{H+11}], v{V_TOK}, s[8:11], s54 offen offset:2048")
        k(f"buffer_store_dwordx2 v[{H+12}:{H+13}], v{V_TOK}, s[8:11], s54 offen offset:3072")
        k(f"s_branch L_hdone{t}")
        k.lab(f"L_hodd{t}")
        k(f"buffer_store_dwordx2 v[{H}:{H+1}], v{V_TOK}, s[8:11], s54 offen offset:8")
        k(f"buffer_store_dwordx4 v[{H+2}:{H+5}], v{V_TOK}, s[8:11], s54 offen offset:1024")
        k(f"buffer_store_dwordx4 v[{H+6}:{H+9}], v{V_TOK}, s[8:11], s54 offen offset:2048")
        k(f"buffer_store_dwordx4 v[{H+10}:{H+13}], v{V_TOK}, s[8:11], s54 offen offset:3072")
        k.lab(f"L_hdone{t}")
        k(f"s_add_u32 s54, s54, {A2_TT}")

    for t in range(3):
        base = 16 + 80 * t
        srcs = [(base + 24 + 8 * u, base + 28 + 8 * u) for u in range(7)]
        compute(base + 24, base + 24, srcs)
        stores(base + 24, t)
    H = 40
    srcs = []
    for u in range(5):
        for q in range(8):
            k(f"v_accvgpr_read_b32 v{56+8*u+q}, a{24+8*u+q}")
        srcs.append((56 + 8 * u, 60 + 8 * u))
    for u in range(5, 7):
        for q in range(8):
            k(f"v_accvgpr_read_b32 v{136+8*(u-5)+q}, a{24+8*u+q}")
        srcs.append((136 + 8 * (u - 5), 140 + 8 * (u - 5)))
    compute(None, H, srcs)
    stores(H, 3)
    for q in range(24):
        k(f"v_accvgpr_read_b32 v{200+q}, a{q}")


def consts(k):
    k("v_lshrrev_b32 v10, 4, v0")
    k("v_bfe_u32 v11, v0, 2, 2")
    k("v_and_b32 v12, 3, v0")
    k("v_lshl_add_u32 v13, v10, 2, v11")
    k("v_lshlrev_b32 v13, 6, v13")
    k("v_lshl_add_u32 v13, v12, 3, v13")
    k(f"v_add_u32 v13, {WPHI_OFF}, v13")
    for ft, W in ((0, WP0), (1, WP1)):
        for t in range(2):
            k(f"ds_read_b64_tr_b16 v[{W+2*t}:{W+2*t+1}], v13 offset:{t*1024 + ft*32}")
    k("v_and_b32 v12, 15, v0")
    k("v_lshlrev_b32 v11, 2, v10")
    k("v_sub_u32 v12, v12, v11")
    k("v_mov_b32 v14, 0x3f80")
    k("v_mov_b32 v15, 0x3f800000")
    for rg, (dl, dh) in enumerate(((0, 1), (2, 3))):
        k(f"v_cmp_eq_u32 vcc, {dl}, v12")
        k.nop(2)
        k(f"v_cndmask_b32 v{SEL0+rg}, 0, v14, vcc")
        k(f"v_cmp_eq_u32 vcc, {dh}, v12")
        k.nop(2)
        k(f"v_cndmask_b32 v{SEL0+rg}, v{SEL0+rg}, v15, vcc")
    k(f"v_mov_b32 v{SEL0+2}, 0")
    k(f"v_mov_b32 v{SEL0+3}, 0")
    k(f"v_mov_b32 v{SEL1}, 0")
    k(f"v_mov_b32 v{SEL1+1}, 0")
    k(f"v_mov_b32 v{SEL1+2}, v{SEL0}")
    k(f"v_mov_b32 v{SEL1+3}, v{SEL0+1}")
    for q in range(4):
        k(f"v_mov_b32 v{ONES+q}, 0x3f803f80")
    k(f"s_mov_b32 s{S_L2E}, {LOG2E}")
    k(f"s_mov_b32 s{S_L2E+1}, {LOG2E}")
    k(f"s_mov_b32 s{S_L2E+2}, {LOG2E | 0x80000000}")
    k(f"s_mov_b32 s{S_L2E+3}, {LOG2E | 0x80000000}")
    k("s_waitcnt lgkmcnt(0)")


def features(k, o):
    for t in range(4):
        b = QB[t] + o
        for q in range(4):
            k(f"v_cvt_pk_bf16_f32 v{b+q}, v{b+2*q}, v{b+2*q+1}")
    k.nop(1)
    for t in range(4):
        b = QB[t] + o
        X = XR[t]
        k(f"v_mfma_f32_16x16x32_bf16 v[{X}:{X+3}], v[{WP0}:{WP0+3}], v[{b}:{b+3}], 0")
        k(f"v_mfma_f32_16x16x32_bf16 v[{X+4}:{X+7}], v[{WP1}:{WP1+3}], v[{b}:{b+3}], 0")
    k.nop(2)
    for t in range(4):
        X, a, b = XR[t], ST[t], ST[t] + 1
        if t == 0:
            k.nop(2)
        k(f"v_max3_f32 v{a}, v{X}, v{X+1}, v{X+2}")
        k(f"v_max3_f32 v{b}, -v{X}, -v{X+1}, -v{X+2}")
        k(f"v_max3_f32 v{a}, v{a}, v{X+3}, v{X+3}")
        k(f"v_max3_f32 v{b}, v{b}, -v{X+3}, -v{X+3}")
        if t == 0:
            k.nop(2)
    for t in range(4):
        X, a, b = XR[t], ST[t], ST[t] + 1
        k(f"v_max3_f32 v{a}, v{a}, v{X+4}, v{X+5}")
        k(f"v_max3_f32 v{b}, v{b}, -v{X+4}, -v{X+5}")
        k(f"v_max3_f32 v{a}, v{a}, v{X+6}, v{X+7}")
        k(f"v_max3_f32 v{b}, v{b}, -v{X+6}, -v{X+7}")
    for t in range(4):
        a, b = ST[t], ST[t] + 1
        k(f"v_permlane16_swap_b32 v{a}, v{b}")
    for t in range(4):
        a, b, c = ST[t], ST[t] + 1, ST[t] + 2
        k(f"v_max_f32 v{a}, v{a}, v{b}")
        k(f"v_mov_b32 v{c}, v{a}")
    for t in range(4):
        a, c = ST[t], ST[t] + 2
        if t == 3:
            k.nop(1)
        k(f"v_permlane32_swap_b32 v{a}, v{c}")
    for t in range(4):
        a, b, c = ST[t], ST[t] + 1, ST[t] + 2
        k(f"v_max_f32 v{a}, v{a}, v{c}")
        k(f"v_mov_b32 v{c}, v{a}")
    for t in range(4):
        a, c = ST[t], ST[t] + 2
        if t == 3:
            k.nop(1)
        k(f"v_permlane16_swap_b32 v{a}, v{c}")
    for t in range(4):
        a, c = ST[t], ST[t] + 2
        k(f"v_mul_f32 v{a}, s{S_L2E+2}, v{a}")
        k(f"v_mul_f32 v{c}, s{S_L2E+2}, v{c}")
    for t in range(4):
        X, E, a, c = XR[t], ER[t], ST[t], ST[t] + 2
        for q in range(0, 8, 2):
            k(f"v_pk_fma_f32 v[{E+q}:{E+q+1}], v[{X+q}:{X+q+1}], s[{S_L2E+2}:{S_L2E+3}], v[{c}:{c+1}] op_sel_hi:[1,1,0]")
        for q in range(0, 8, 2):
            k(f"v_pk_fma_f32 v[{X+q}:{X+q+1}], v[{X+q}:{X+q+1}], s[{S_L2E}:{S_L2E+1}], v[{a}:{a+1}] op_sel_hi:[1,1,0]")
    for t in range(4):
        X, E = XR[t], ER[t]
        for q in range(8):
            k(f"v_exp_f32 v{X+q}, v{X+q}")
            k(f"v_exp_f32 v{E+q}, v{E+q}")
    for t in range(4):
        X, E = XR[t], ER[t]
        for q in range(4):
            k(f"v_cvt_pk_bf16_f32 v{X+q}, v{X+2*q}, v{X+2*q+1}")
        for q in range(4):
            k(f"v_cvt_pk_bf16_f32 v{E+q}, v{E+2*q}, v{E+2*q+1}")


def q_part(k):
    features(k, 0)
    k(f"s_add_u32 s12, s62, {PHIQ_OFF}")
    k("s_addc_u32 s13, s63, 0")
    k(f"s_mov_b32 s14, {8 << 20}")
    k("s_mov_b32 s15, 0x00020000")
    k(f"s_lshl_b32 s53, s{S_J}, 18")
    k("s_lshl_b32 s55, s52, 11")
    k("s_add_u32 s53, s53, s55")
    for t in range(4):
        X, E = XR[t], ER[t]
        k(f"buffer_store_dwordx4 v[{X}:{X+3}], v{V_TOK}, s[12:15], s53 offen")
        k(f"buffer_store_dwordx4 v[{E}:{E+3}], v{V_TOK}, s[12:15], s53 offen offset:1024")
        if t < 3:
            k("s_add_u32 s53, s53, 2048")
    k.nop(2)


def KV(s, ft, dt):
    i = s * 4 + ft * 2 + dt
    return [16, 96, 176][i // 4] + 4 * (i % 4) if i < 8 else None


def tileaddr(i):
    return QB[i // 4] + 4 * (i % 4)


def k_part(k):
    features(k, 8)
    first = True
    for p in range(2):
        t0, t1 = 2 * p, 2 * p + 1
        TT = {t0: 72, t1: 152}
        for t in (t0, t1):
            X, E, T = XR[t], ER[t], TT[t]
            for s, src in ((0, X), (1, E)):
                o = T + 12 * s
                k(f"v_mfma_f32_16x16x32_bf16 v[{o+8}:{o+11}], v[{src}:{src+3}], v[{ONES}:{ONES+3}], 0")
                k(f"v_mfma_f32_16x16x32_bf16 v[{o}:{o+3}], v[{src}:{src+3}], v[{SEL0}:{SEL0+3}], 0")
                k(f"v_mfma_f32_16x16x32_bf16 v[{o+4}:{o+7}], v[{src}:{src+3}], v[{SEL1}:{SEL1+3}], 0")
        VF = 244
        for dt in range(2):
            a0 = QB[t0] + 16 + 4 * dt
            a1 = QB[t1] + 16 + 4 * dt
            k(f"v_cvt_pk_bf16_f32 v{VF+4*dt}, v{a0}, v{a0+1}")
            k(f"v_cvt_pk_bf16_f32 v{VF+4*dt+1}, v{a0+2}, v{a0+3}")
            k(f"v_cvt_pk_bf16_f32 v{VF+4*dt+2}, v{a1}, v{a1+1}")
            k(f"v_cvt_pk_bf16_f32 v{VF+4*dt+3}, v{a1+2}, v{a1+3}")
        for t in (t0, t1):
            T = TT[t]
            for s in range(2):
                o = T + 12 * s
                for q in range(4):
                    k(f"v_rcp_f32 v{o+8+q}, v{o+8+q}")
        k.nop(1)
        PK = XR[t0]
        for ti, t in enumerate((t0, t1)):
            T = TT[t]
            for s in range(2):
                o = T + 12 * s
                for ft in range(2):
                    a = o + 4 * ft
                    k(f"v_pk_mul_f32 v[{a}:{a+1}], v[{a}:{a+1}], v[{o+8}:{o+9}]")
                    k(f"v_pk_mul_f32 v[{a+2}:{a+3}], v[{a+2}:{a+3}], v[{o+10}:{o+11}]")
        for ti, t in enumerate((t0, t1)):
            T = TT[t]
            for s in range(2):
                o = T + 12 * s
                for ft in range(2):
                    a = o + 4 * ft
                    d = PK + 8 * s + 4 * ft + 2 * ti
                    k(f"v_cvt_pk_bf16_f32 v{d}, v{a}, v{a+1}")
                    k(f"v_cvt_pk_bf16_f32 v{d+1}, v{a+2}, v{a+3}")
        k.nop(2)
        for s in range(2):
            for ft in range(2):
                A = PK + 8 * s + 4 * ft
                for dt in range(2):
                    c = tileaddr(s * 4 + ft * 2 + dt)
                    src = "0" if p == 0 else f"v[{c}:{c+3}]"
                    k(f"v_mfma_f32_16x16x32_bf16 v[{c}:{c+3}], v[{A}:{A+3}], v[{VF+4*dt}:{VF+4*dt+3}], {src}")
                c = tileaddr(8 + s * 2 + ft)
                src = "0" if p == 0 else f"v[{c}:{c+3}]"
                k(f"v_mfma_f32_16x16x32_bf16 v[{c}:{c+3}], v[{A}:{A+3}], v[{ONES}:{ONES+3}], {src}")
    k.nop(8)
    k(f"s_mul_i32 s53, s{S_WAVE}, 12288")
    k(f"v_add_u32 v10, s53, v{V_TOK}")
    for i in range(12):
        c = tileaddr(i)
        k(f"ds_write_b128 v10, v[{c}:{c+3}] offset:{i*1024}")
    k("s_waitcnt lgkmcnt(0)")
    k("s_barrier")
    k(f"s_lshr_b32 s53, s{S_WAVE}, 1")
    k("s_lshl_b32 s53, s53, 2")
    k(f"s_and_b32 s55, s{S_WAVE}, 1")
    k("s_add_u32 s53, s53, s55")
    k("s_lshl_b32 s53, s53, 10")
    k(f"v_add_u32 v10, s53, v{V_TOK}")
    k(f"s_add_u32 s53, s{S_WAVE}, 8")
    k("s_lshl_b32 s53, s53, 10")
    k(f"v_add_u32 v11, s53, v{V_TOK}")
    R = 40
    for ww in range(4):
        k(f"ds_read_b128 v[{R+12*ww}:{R+12*ww+3}], v10 offset:{ww*12288}")
        k(f"ds_read_b128 v[{R+12*ww+4}:{R+12*ww+7}], v10 offset:{ww*12288+2048}")
        k(f"ds_read_b128 v[{R+12*ww+8}:{R+12*ww+11}], v11 offset:{ww*12288}")
    k(f"s_lshl_b32 s53, s{S_J}, 3")
    k(f"s_add_u32 s53, s53, s{S_R}")
    k(f"s_add_u32 s8, s62, {KVP_OFF}")
    k("s_addc_u32 s9, s63, 0")
    k(f"s_mov_b32 s10, {2 << 20}")
    k("s_mov_b32 s11, 0x00020000")
    k(f"s_add_u32 s12, s62, {ZP_OFF}")
    k("s_addc_u32 s13, s63, 0")
    k(f"s_mov_b32 s14, {64 << 10}")
    k("s_mov_b32 s15, 0x00020000")
    k("s_lshl_b32 s55, s53, 13")
    k(f"s_lshl_b32 s56, s{S_WAVE}, 11")
    k("s_add_u32 s55, s55, s56")
    k("s_lshl_b32 s56, s53, 8")
    k(f"s_lshl_b32 s57, s{S_WAVE}, 6")
    k("s_add_u32 s56, s56, s57")
    k("v_lshrrev_b32 v12, 4, v0")
    k("v_lshlrev_b32 v12, 4, v12")
    k("s_waitcnt lgkmcnt(0)")
    for q in range(0, 12, 2):
        k(f"v_pk_add_f32 v[{R+q}:{R+q+1}], v[{R+q}:{R+q+1}], v[{R+12+q}:{R+13+q}]")
        k(f"v_pk_add_f32 v[{R+24+q}:{R+25+q}], v[{R+24+q}:{R+25+q}], v[{R+36+q}:{R+37+q}]")
    for q in range(0, 12, 2):
        k(f"v_pk_add_f32 v[{R+q}:{R+q+1}], v[{R+q}:{R+q+1}], v[{R+24+q}:{R+25+q}]")
    k(f"buffer_store_dwordx4 v[{R}:{R+3}], v{V_TOK}, s[8:11], s55 offen")
    k(f"buffer_store_dwordx4 v[{R+4}:{R+7}], v{V_TOK}, s[8:11], s55 offen offset:1024")
    k("s_mov_b32 exec_lo, 0x00010001")
    k("s_mov_b32 exec_hi, 0x00010001")
    k(f"buffer_store_dwordx4 v[{R+8}:{R+11}], v12, s[12:15], s56 offen")
    k("s_mov_b64 exec, -1")


OPT = dict(pf=True, sent=True)


def prefetch_w2(k):
    if not OPT["pf"]:
        k.nop(8)
        return
    k("s_load_dwordx2 s[12:13], s[0:1], 56")
    k("s_load_dwordx2 s[16:17], s[0:1], 24")
    k("s_lshl_b32 s52, s2, 2")
    k(f"s_add_u32 s52, s52, s{S_WAVE}")
    k("v_lshlrev_b32 v10, 7, v0")
    k("v_and_b32 v12, 0x7ff, v10")
    k("s_mov_b32 s14, 7340032")
    k("s_mov_b32 s15, 0x00020000")
    k("s_mov_b32 s18, 2097152")
    k("s_mov_b32 s19, 0x00020000")
    k(f"s_mul_i32 s53, s52, {56 * 128}")
    k("s_lshl_b32 s54, s52, 11")
    k("s_waitcnt lgkmcnt(0)")
    k("buffer_load_dword v11, v10, s[12:15], s53 offen")
    k("buffer_load_dword v13, v12, s[16:19], s54 offen")


def sentinel_stores(k):
    if not OPT["sent"]:
        return
    k(f"s_add_u32 s20, s62, {XCH_OFF}")
    k("s_addc_u32 s21, s63, 0")
    k(f"s_mov_b32 s22, {8 << 20}")
    k("s_mov_b32 s23, 0x00020000")
    k("s_lshl_b32 s55, s2, 2")
    k(f"s_add_u32 s55, s55, s{S_WAVE}")
    k("s_lshl_b32 s55, s55, 13")
    k("s_add_u32 s56, s55, 4096")
    for q in range(4):
        k(f"v_mov_b32 v{252+q}, -1")
    for h in range(2):
        for q in range(4):
            k(f"buffer_store_dwordx4 v[252:255], v{V_TOK}, s[20:23], s{55 + h} offen offset:{1024 * q}")


def epilogue(k):
    k("s_waitcnt vmcnt(0) lgkmcnt(0)")
    k("s_barrier")
    k.nop(8)
    h_part(k)
    consts(k)
    q_part(k)
    k_part(k)
```

```python
from dsl import *
from k1 import XN_OFF, A2_OFF, PHIQ_OFF, KVP_OFF, ZP_OFF, XCH_OFF, FLG_OFF

A2_TT = 144 * 1024
STAGE = 16384
RING = 4
NS = 4
NB = 8
D = 6
WIN = 9
SCR = STAGE * RING
VPS = 8
NHEAD = 1
NTAIL = 3

V_L16 = 1
V_DMA = 2
V_TOK = 6
V_POLL = 8
V_OUT = 9
V_CNTA = 10
V_T = 11
V_RD = 16
V_TABW, V_TABT = 20, 21
ACC = 24
XRES = 88
OW = 24
RCV = 104
NV = 160
A_TOK = 0
A_WF = 16 * NS
NAGPR = A_WF + 4 * NB

S_A2 = 8
S_W = 12
S_WOFF = 16
S_TOFF = 17
S_RING = 18
S_RLIM = 19
S_RD = 20
S_DELTA = 21
S_IT = 22
S_WAVE = 23
S_NEG, S_POS = 24, 25
S_WOLO, S_WOHI, S_WOSZ = 26, 27, 28
S_WDSZ = 29
S_T = 30
S_RB, S_CT, S_KH = 31, 32, 33
S_CNT = 36
S_OUT = 44
S_BIG = 48
S_TNEXT = 49
S_POS1 = 40
S_M0B = 41
S_XO = 92
S_H, S_RP = 50, 51
S_X = 68
S_C32K = 72
S_TH, S_TO = 73, 74
S_IDX, S_WB, S_ROT, S_P = 76, 77, 78, 79
S_WDLO, S_WDHI = 4, 5
OPT = dict(rot=True, mfma=True, lds=True, tok=True, w=True, bar=True, owork=True, order='lead', nlead=2, vmw=12)


class VQ:
    def __init__(self):
        self.q = []

    def issue(self, tag, n=1):
        self.q += [tag] * n

    def need(self, *tags):
        last = -1
        for i, t in enumerate(self.q):
            if t in tags:
                last = i
        assert last >= 0, tags
        n = len(self.q) - 1 - last
        assert n <= 63, n
        return n


def acc(cg):
    return ACC + 16 * cg


def tok(setn, q):
    return ar(A_TOK + 16 * setn + 4 * q, 4)


def wf(n):
    return A_WF + 4 * (n % NB)


def frag_reads(n, slot):
    if n >= 16:
        slot = (slot + 1) % RING
    q, cg = (n % 16) >> 2, n & 3
    kbl, hh = q >> 1, q & 1
    b = wf(n)
    return [f"ds_read_b64_tr_b16 {ar(b + 2 * t, 2)}, v{V_RD + cg} offset:{slot * STAGE + kbl * 8192 + t * 4096 + hh * 2048}" for t in range(2)]


def dma_m0(slot):
    return f"s_add_u32 m0, s{S_M0B}, {slot * STAGE}"


def dma(i):
    return f"buffer_load_dwordx4 v{V_DMA + i}, s[{S_W}:{S_W + 3}], s{S_WOFF} offen offset:{i * 1024} lds"


def tab_reads():
    return [f"v_readlane_b32 s{S_WOFF}, v{V_TABW}, s{S_POS1}",
            f"v_readlane_b32 s{S_TOFF}, v{V_TABT}, s{S_POS1}",
            f"s_add_u32 s{S_POS1}, s{S_POS1}, 1"]


def tokload(setn, q):
    return f"buffer_load_dwordx4 {tok(setn, q)}, v{V_TOK}, s[{S_A2}:{S_A2 + 3}], s{S_TOFF} offen offset:{512 * q} sc1"


KR = OW
ZR = KR + 64
ER = ZR + 32
TMP = ER + 32


def o_setup(k):
    k(f"s_and_b32 s{S_H}, s2, 31")
    k(f"s_lshr_b32 s{S_RP}, s2, 5")
    k(f"s_and_b32 s{S_RP}, s{S_RP}, 7")
    for s, off, size in ((52, KVP_OFF, 2 << 20), (56, ZP_OFF, 64 << 10), (60, PHIQ_OFF, 8 << 20)):
        k(f"s_add_u32 s{s}, s6, {off}")
        k(f"s_addc_u32 s{s+1}, s7, 0")
        k(f"s_mov_b32 s{s+2}, {size}")
        k(f"s_mov_b32 s{s+3}, 0x00020000")
    k(f"s_lshl_b32 s64, s{S_H}, 16")
    k(f"s_lshl_b32 s65, s{S_WAVE}, 11")
    k("s_add_u32 s64, s64, s65")
    k(f"s_lshl_b32 s66, s{S_H}, 11")
    k(f"s_lshl_b32 s65, s{S_WAVE}, 6")
    k("s_add_u32 s66, s66, s65")
    k(f"s_lshl_b32 s65, s{S_RP}, 4")
    k(f"s_lshl_b32 s67, s{S_WAVE}, 2")
    k("s_add_u32 s65, s65, s67")
    k(f"s_lshl_b32 s67, s{S_H}, 18")
    k("s_lshl_b32 s75, s65, 11")
    k("s_add_u32 s67, s67, s75")
    k(f"v_lshrrev_b32 v{V_T}, 4, v0")
    k(f"v_lshlrev_b32 v{V_T}, 4, v{V_T}")


def o_loads():
    L = []
    for r in range(8):
        L.append(("kv", [f"buffer_load_dwordx4 v[{KR+8*r}:{KR+8*r+3}], v{V_L16}, s[52:55], s64 offen"]))
        L.append(("kv", [f"buffer_load_dwordx4 v[{KR+8*r+4}:{KR+8*r+7}], v{V_L16}, s[52:55], s64 offen offset:1024",
                         "s_add_u32 s64, s64, 8192"]))
    for r in range(8):
        L.append(("z", [f"buffer_load_dwordx4 v[{ZR+4*r}:{ZR+4*r+3}], v{V_T}, s[56:59], s66 offen offset:{256*r}"]))
    for t in range(4):
        L.append(("e", [f"buffer_load_dwordx4 v[{ER+8*t}:{ER+8*t+3}], v{V_L16}, s[60:63], s67 offen"]))
        L.append(("e", [f"buffer_load_dwordx4 v[{ER+8*t+4}:{ER+8*t+7}], v{V_L16}, s[60:63], s67 offen offset:1024",
                        "s_add_u32 s67, s67, 2048"]))
    return L


def o_block_a(k):
    for r in range(0, 8, 2):
        for q in range(0, 8, 2):
            a = KR + 8 * r + q
            k(f"v_pk_add_f32 v[{a}:{a+1}], v[{a}:{a+1}], v[{a+8}:{a+9}]")
        for q in range(0, 4, 2):
            a = ZR + 4 * r + q
            k(f"v_pk_add_f32 v[{a}:{a+1}], v[{a}:{a+1}], v[{a+4}:{a+5}]")
    for r in range(0, 8, 4):
        for q in range(0, 8, 2):
            a = KR + 8 * r + q
            k(f"v_pk_add_f32 v[{a}:{a+1}], v[{a}:{a+1}], v[{a+16}:{a+17}]")
        for q in range(0, 4, 2):
            a = ZR + 4 * r + q
            k(f"v_pk_add_f32 v[{a}:{a+1}], v[{a}:{a+1}], v[{a+8}:{a+9}]")
    for q in range(0, 8, 2):
        a = KR + q
        k(f"v_pk_add_f32 v[{a}:{a+1}], v[{a}:{a+1}], v[{a+32}:{a+33}]")
    for q in range(0, 4, 2):
        a = ZR + q
        k(f"v_pk_add_f32 v[{a}:{a+1}], v[{a}:{a+1}], v[{a+16}:{a+17}]")
    for q in range(4):
        k(f"v_cvt_pk_bf16_f32 v{KR+q}, v{KR+2*q}, v{KR+2*q+1}")
    k(f"s_lshl_b32 s75, s{S_WAVE}, 10")
    k(f"s_add_u32 s75, s75, {SCR}")
    k(f"v_add_u32 v{V_T+1}, s75, v{V_L16}")
    k(f"ds_write_b128 v{V_T+1}, v[{KR}:{KR+3}]")
    k(f"s_lshl_b32 s75, s{S_WAVE}, 6")
    k(f"s_add_u32 s75, s75, {SCR + 4096}")
    k(f"v_add_u32 v{V_T+2}, s75, v{V_T}")
    k(f"ds_write_b128 v{V_T+2}, v[{ZR}:{ZR+3}]")


def o_block_b0(k):
    KA, ZZ, ZA = KR, KR + 16, KR + 32
    k(f"v_add_u32 v{V_T+1}, {SCR}, v{V_L16}")
    for i in range(4):
        k(f"ds_read_b128 v[{KA+4*i}:{KA+4*i+3}], v{V_T+1} offset:{1024*i}")
    k(f"v_add_u32 v{V_T+2}, {SCR + 4096}, v{V_T}")
    for i in range(4):
        k(f"ds_read_b128 v[{ZZ+4*i}:{ZZ+4*i+3}], v{V_T+2} offset:{64*i}")
    k(f"v_and_b32 v{V_T+1}, 3, v0")
    k(f"v_cmp_eq_u32 vcc, 0, v{V_T+1}")
    k(f"v_cmp_eq_u32 s[42:43], 1, v{V_T+1}")
    k(f"v_mov_b32 v{V_T+2}, 0x3f803f80")
    k("s_waitcnt lgkmcnt(0)")
    for s in range(2):
        for ft in range(2):
            z = ZZ + 4 * (2 * s + ft)
            k(f"v_cvt_pk_bf16_f32 v{z}, v{z}, v{z+1}")
            k(f"v_cvt_pk_bf16_f32 v{z+1}, v{z+2}, v{z+3}")
    for s in range(2):
        for ft in range(2):
            z = ZZ + 4 * (2 * s + ft)
            for q in range(2):
                d = ZA + 4 * s + 2 * ft + q
                k(f"v_cndmask_b32 v{d}, 0, v{z+q}, vcc")
                k(f"v_cndmask_b32 v{d}, v{d}, v{V_T+2}, s[42:43]")
    k(f"s_mul_i32 s64, s65, {A2_TT}")
    k(f"s_lshl_b32 s75, s{S_H}, 10")
    k("s_add_u32 s64, s64, s75")
    k(f"v_mov_b32 v{V_T+2}, 0x358637bd")


def o_block_b1(k, pair):
    KA, ZA, NR, OF = KR, KR + 32, KR + 40, KR + 88
    EPS = V_T + 2
    for ti in range(2):
        t = 2 * pair + ti
        b = NR + 24 * ti
        for s in range(2):
            E = ER + 8 * t + 4 * s
            k(f"v_mfma_f32_16x16x32_bf16 v[{b+16+4*s}:{b+19+4*s}], v[{ZA+4*s}:{ZA+4*s+3}], v[{E}:{E+3}], 0")
        for s in range(2):
            E = ER + 8 * t + 4 * s
            for dt in range(2):
                A = KA + 4 * (2 * s + dt)
                o = b + 8 * s + 4 * dt
                k(f"v_mfma_f32_16x16x32_bf16 v[{o}:{o+3}], v[{A}:{A+3}], v[{E}:{E+3}], 0")
    k.nop(4)
    for ti in range(2):
        b = NR + 24 * ti
        k(f"v_rcp_f32 v{b+17}, v{b+17}")
        k(f"v_rcp_f32 v{b+21}, v{b+21}")
    k.nop(1)
    for ti in range(2):
        b = NR + 24 * ti
        k(f"v_fma_f32 v{b+18}, v{b+16}, v{b+17}, v{EPS}")
        k(f"v_fma_f32 v{b+18}, v{b+20}, v{b+21}, v{b+18}")
    for ti in range(2):
        b = NR + 24 * ti
        k(f"v_rcp_f32 v{b+18}, v{b+18}")
    k.nop(3)
    for ti in range(2):
        b = NR + 24 * ti
        k(f"v_mul_f32 v{b+16}, v{b+17}, v{b+18}")
        k(f"v_mul_f32 v{b+20}, v{b+21}, v{b+18}")
    for ti in range(2):
        b = NR + 24 * ti
        for q in range(0, 8, 2):
            k(f"v_pk_mul_f32 v[{b+q}:{b+q+1}], v[{b+q}:{b+q+1}], v[{b+16}:{b+17}] op_sel_hi:[1,0]")
        for q in range(0, 8, 2):
            k(f"v_pk_fma_f32 v[{b+q}:{b+q+1}], v[{b+8+q}:{b+9+q}], v[{b+20}:{b+21}], v[{b+q}:{b+q+1}] op_sel_hi:[1,0,1]")
    for ti in range(2):
        b = NR + 24 * ti
        o = OF + 4 * ti
        for q in range(4):
            k(f"v_cvt_pk_bf16_f32 v{o+q}, v{b+2*q}, v{b+2*q+1}")
        k(f"buffer_store_dwordx4 v[{o}:{o+3}], v{V_L16}, s[{S_A2}:{S_A2+3}], s64 offen sc1")
        k(f"s_add_u32 s64, s64, {A2_TT}")
    k.nop(2)


def helper(k):
    o_setup(k)
    for tag, ins in o_loads():
        for x in ins:
            k(x)
    k("s_waitcnt vmcnt(8)")
    o_block_a(k)
    k("s_waitcnt lgkmcnt(0)")
    k("s_barrier")
    o_block_b0(k)
    k("s_waitcnt vmcnt(0)")
    k.nop(1)
    o_block_b1(k, 0)
    o_block_b1(k, 1)
    k("s_waitcnt vmcnt(0)")
    k("s_barrier")
    publish(k)
    k("s_waitcnt vmcnt(0)")
    k("s_endpgm")


def publish(k):
    k(f"s_cmp_eq_u32 s{S_WAVE}, 0")
    k("s_cbranch_scc0 L_k3_nopub")
    k(f"s_lshl_b32 s64, s{S_RP}, 10")
    k(f"v_mov_b32 v{V_T+1}, s64")
    k(f"v_mov_b32 v{V_T+2}, 1")
    k("s_mov_b64 exec, 1")
    k(f"buffer_atomic_add v{V_T+2}, v{V_T+1}, s[{S_CNT}:{S_CNT+3}], 0 offen")
    k("s_mov_b64 exec, -1")
    k.lab("L_k3_nopub")


def prologue(k, vq):
    k("s_cmp_ge_u32 s2, 512")
    k("s_cbranch_scc1 L_k3_end")
    k(f"s_load_dwordx2 s[{S_WDLO}:{S_WDHI}], s[0:1], 56")
    k("s_load_dwordx2 s[6:7], s[0:1], 80")
    k(f"s_load_dwordx2 s[{S_WOLO}:{S_WOHI}], s[0:1], 24")
    k(f"s_load_dwordx2 s[{S_X}:{S_X+1}], s[0:1], 0")
    k(f"s_load_dwordx2 s[{S_OUT}:{S_OUT+1}], s[0:1], 64")
    k(f"v_lshrrev_b32 v{V_T}, 6, v0")
    k("v_and_b32 v0, 63, v0")
    k(f"v_lshlrev_b32 v{V_L16}, 4, v0")
    k(f"v_readfirstlane_b32 s{S_WAVE}, v{V_T}")
    k("s_and_b32 s50, s2, 7")
    k("s_lshr_b32 s51, s2, 3")
    k(f"s_and_b32 s{S_KH}, s50, 1")
    k("s_lshr_b32 s52, s50, 1")
    k("s_lshl_b32 s52, s52, 2")
    k("s_lshr_b32 s53, s51, 3")
    k(f"s_add_u32 s{S_RB}, s52, s53")
    k(f"s_and_b32 s{S_CT}, s51, 7")
    k(f"v_lshrrev_b32 v{V_T}, 4, v0")
    k(f"v_bfe_u32 v{V_T+1}, v0, 1, 3")
    k(f"v_lshlrev_b32 v{V_T+2}, 1, v{V_T}")
    k(f"v_xor_b32 v{V_T+1}, v{V_T+1}, v{V_T+2}")
    k(f"v_and_b32 v{V_T+3}, 1, v0")
    k(f"v_lshlrev_b32 v{V_T+3}, 4, v{V_T+3}")
    k(f"v_lshl_add_u32 v{V_T+3}, v{V_T}, 11, v{V_T+3}")
    k(f"v_lshl_add_u32 v{V_T+1}, v{V_T+1}, 5, v{V_T+3}")
    k(f"s_lshl_b32 s54, s{S_CT}, 8")
    k(f"s_lshl_b32 s55, s{S_WAVE}, 15")
    k("s_add_u32 s54, s54, s55")
    k(f"v_add_u32 v{V_DMA}, s54, v{V_T+1}")
    for i in range(1, 4):
        k(f"v_add_u32 v{V_DMA+i}, {7168*i}, v{V_DMA}")
    k(f"s_lshl_b32 s54, s{S_RB}, 3")
    k(f"s_lshl_b32 s55, s{S_WAVE}, 1")
    k("s_add_u32 s54, s54, s55")
    k(f"s_mul_i32 s55, s54, {A2_TT}")
    k(f"v_bfe_u32 v{V_T}, v0, 4, 1")
    k(f"v_mul_u32_u24 v{V_T}, {A2_TT}, v{V_T}")
    k(f"v_lshrrev_b32 v{V_T+1}, 5, v0")
    k(f"v_lshl_add_u32 v{V_T}, v{V_T+1}, 8, v{V_T}")
    k(f"v_and_b32 v{V_T+1}, 15, v0")
    k(f"v_lshl_add_u32 v{V_T}, v{V_T+1}, 4, v{V_T}")
    k(f"v_add_u32 v{V_TOK}, s55, v{V_T}")
    k(f"s_and_b32 s56, s{S_RB}, 3")
    k("s_lshl_b32 s56, s56, 1")
    k(f"s_add_u32 s55, s{S_CT}, s56")
    if not OPT["rot"]:
        k("s_mov_b32 s55, 0")
    k("s_and_b32 s57, s55, 7")
    k("s_cmp_ge_u32 s55, 7")
    k("s_cselect_b32 s56, 7, 0")
    k("s_sub_u32 s55, s55, s56")
    T0, T1, T2, T3 = V_T, V_T + 1, V_T + 2, V_T + 3
    if OPT["order"] == "win":
        k(f"v_mul_u32_u24 v{T0}, 9363, v0")
        k(f"v_lshrrev_b32 v{T0}, 16, v{T0}")
        k(f"v_mul_u32_u24 v{T0}, 7, v{T0}")
        k(f"v_sub_u32 v{T1}, v0, v{T0}")
        k(f"v_add_u32 v{T1}, s55, v{T1}")
        k(f"v_subrev_u32 v{T2}, 7, v{T1}")
        k(f"v_cmp_le_u32 vcc, 7, v{T1}")
        k.nop(2)
        k(f"v_cndmask_b32 v{T1}, v{T1}, v{T2}, vcc")
        k(f"v_add_u32 v{T0}, v{T0}, v{T1}")
    elif OPT["order"] == "lead4":
        k(f"s_add_u32 s56, s{S_CT}, s{S_RB}")
        k(f"v_subrev_u32 v{T1}, s56, v0")
        k(f"v_and_b32 v{T1}, 3, v{T1}")
        k(f"v_add_u32 v{T0}, 24, v0")
        k(f"v_subrev_u32 v{T2}, 28, v{T0}")
        k(f"v_cmp_le_u32 vcc, 28, v{T0}")
        k.nop(2)
        k(f"v_cndmask_b32 v{T0}, v{T0}, v{T2}, vcc")
        k(f"v_cmp_gt_u32 vcc, {OPT['nlead']}, v{T1}")
        k.nop(2)
        k(f"v_cndmask_b32 v{T0}, v{T0}, v0, vcc")
    else:
        k("s_sub_u32 s56, 7, s55")
        k(f"v_add_u32 v{T0}, s56, v0")
        k(f"v_mul_u32_u24 v{T1}, 9363, v{T0}")
        k(f"v_lshrrev_b32 v{T1}, 16, v{T1}")
        k(f"v_mul_u32_u24 v{T1}, 7, v{T1}")
        k(f"v_sub_u32 v{T1}, v{T0}, v{T1}")
        k(f"v_add_u32 v{T0}, 21, v0")
        k(f"v_subrev_u32 v{T2}, 28, v{T0}")
        k(f"v_cmp_le_u32 vcc, 28, v{T0}")
        k.nop(2)
        k(f"v_cndmask_b32 v{T0}, v{T0}, v{T2}, vcc")
        k(f"v_cmp_gt_u32 vcc, {OPT['nlead']}, v{T1}")
        k.nop(2)
        k(f"v_cndmask_b32 v{T0}, v{T0}, v0, vcc")
    k(f"v_subrev_u32 v{T1}, 28, v0")
    k(f"v_add_u32 v{T1}, s57, v{T1}")
    k(f"v_and_b32 v{T1}, 7, v{T1}")
    k(f"s_mul_i32 s{S_TH}, s{S_KH}, {56 * 1024}")
    k(f"s_add_u32 s{S_TH}, s{S_TH}, 32768")
    k(f"s_lshl_b32 s{S_TO}, s{S_KH}, 14")
    k(f"v_lshlrev_b32 v{T2}, 11, v{T0}")
    k(f"v_add_u32 v{T2}, s{S_TH}, v{T2}")
    k(f"v_lshlrev_b32 v{T3}, 11, v{T1}")
    k(f"v_add_u32 v{T3}, s{S_TO}, v{T3}")
    k("v_cmp_le_u32 vcc, 28, v0")
    k.nop(2)
    k(f"v_cndmask_b32 v{V_TABT}, v{T2}, v{T3}, vcc")
    k(f"v_cndmask_b32 v{T0}, v{T0}, v{T1}, vcc")
    k(f"v_lshlrev_b32 v{V_TABW}, 17, v{T0}")
    k("v_cmp_le_u32 vcc, 36, v0")
    k(f"v_mov_b32 v{T0}, 0x40000000")
    k.nop(1)
    k(f"v_cndmask_b32 v{V_TABT}, v{V_TABT}, v{T0}, vcc")
    k(f"v_cndmask_b32 v{V_TABW}, v{V_TABW}, v{T0}, vcc")
    k(f"s_mov_b32 s{S_POS1}, 0")
    k(f"s_lshl_b32 s{S_M0B}, s{S_WAVE}, 12")
    k("s_waitcnt lgkmcnt(0)")
    k(f"s_mul_i32 s55, s{S_KH}, {1792 * 2048}")
    k(f"s_add_u32 s{S_WDLO}, s{S_WDLO}, s55")
    k(f"s_addc_u32 s{S_WDHI}, s{S_WDHI}, 0")
    k(f"s_lshl_b32 s55, s{S_KH}, 20")
    k(f"s_add_u32 s{S_WOLO}, s{S_WOLO}, s55")
    k(f"s_addc_u32 s{S_WOHI}, s{S_WOHI}, 0")
    k(f"s_mov_b32 s{S_WDSZ}, {1792 * 2048}")
    k(f"s_mov_b32 s{S_WOSZ}, {512 * 2048}")
    k(f"s_mov_b32 s{S_W+3}, 0x00020000")
    k(f"s_add_u32 s{S_A2}, s6, {A2_OFF}")
    k(f"s_addc_u32 s{S_A2+1}, s7, 0")
    k(f"s_mov_b32 s{S_A2+2}, {128 * A2_TT}")
    k(f"s_mov_b32 s{S_A2+3}, 0x00020000")
    k(f"s_add_u32 s{S_CNT}, s6, {FLG_OFF + 32768}")
    k(f"s_addc_u32 s{S_CNT+1}, s7, 0")
    k(f"s_mov_b32 s{S_CNT+2}, 8192")
    k(f"s_mov_b32 s{S_CNT+3}, 0x00020000")
    k("s_cmp_ge_u32 s2, 256")
    k("s_cbranch_scc1 L_k3_helper")
    k(f"s_mov_b32 s{S_W}, s{S_WDLO}")
    k(f"s_mov_b32 s{S_W+1}, s{S_WDHI}")
    k(f"s_mov_b32 s{S_W+2}, s{S_WDSZ}")

    def group(st):
        for x in tab_reads():
            k(x)
        k(dma_m0(st % RING))
        k.nop(3)
        for i in range(4):
            k(dma(i))
            vq.issue(f"W{st}")
        for q in range(4):
            k(tokload(st % NS, q))
            vq.issue(f"T{st}")

    group(0)
    group(1)
    k(f"s_mov_b32 s{S_OUT+2}, 4194304")
    k(f"s_mov_b32 s{S_OUT+3}, 0x00020000")
    k(f"s_mov_b32 s{S_X+2}, 4194304")
    k(f"s_mov_b32 s{S_X+3}, 0x00020000")
    k(f"v_lshrrev_b32 v{V_T}, 3, v0")
    k(f"v_lshlrev_b32 v{V_T}, 11, v{V_T}")
    k(f"v_and_b32 v{V_T+1}, 7, v0")
    k(f"v_lshl_add_u32 v{V_T}, v{V_T+1}, 4, v{V_T}")
    k("s_lshl_b32 s55, s54, 15")
    k(f"s_lshl_b32 s56, s{S_CT}, 8")
    k("s_add_u32 s55, s55, s56")
    k(f"s_lshl_b32 s56, s{S_KH}, 7")
    k("s_add_u32 s55, s55, s56")
    k(f"v_add_u32 v{V_OUT}, s55, v{V_T}")
    for i in range(4):
        k(f"s_mov_b32 s{S_XO + i}, {i * 8 * 2048}")
    k(f"v_lshrrev_b32 v{V_T}, 5, v0")
    k(f"v_bfe_u32 v{V_T+1}, v0, 2, 2")
    k(f"v_lshl_add_u32 v{V_T}, v{V_T}, 2, v{V_T+1}")
    k(f"v_lshlrev_b32 v{V_T+1}, 1, v{V_T+1}")
    k(f"v_bfe_u32 v{V_T+2}, v0, 4, 1")
    k(f"v_xor_b32 v{V_T+1}, v{V_T+1}, v{V_T+2}")
    k(f"v_lshlrev_b32 v{V_T+1}, 5, v{V_T+1}")
    k(f"v_and_b32 v{V_T+2}, 3, v0")
    k(f"v_lshlrev_b32 v{V_T+2}, 3, v{V_T+2}")
    k(f"v_lshl_add_u32 v{V_T+2}, v{V_T}, 8, v{V_T+2}")
    for cg in range(4):
        k(f"v_xor_b32 v{V_T+3}, {cg*64}, v{V_T+1}")
        k(f"v_add_u32 v{V_RD+cg}, v{V_T+3}, v{V_T+2}")
    k(f"s_lshr_b32 s55, s{S_RB}, 1")
    k("s_lshl_b32 s55, s55, 10")
    k(f"v_mov_b32 v{V_CNTA}, s55")
    for i in range(ACC, ACC + 64):
        k(f"v_mov_b32 v{i}, 0")
    group(2)
    k(f"s_waitcnt vmcnt({vq.need('W0')})")
    k("s_barrier")
    for n in range(D):
        for x in frag_reads(n, 0):
            k(x)


def stage(k, sg, setn, vq=None, extra=(), pre=None, loads=True, last=False):
    if vq is not None:
        need = [f"T{sg}"] + ([] if last else [f"W{sg+1}"])
        k(f"s_waitcnt vmcnt({vq.need(*need)})")
    else:
        k(f"s_waitcnt vmcnt({OPT['vmw']})")
    if OPT["bar"]:
        k("s_barrier")
    if pre:
        pre(k)
    fill = {m: [] for m in range(16)}
    vm = {m: [] for m in range(16)}
    for n in range(16):
        if not (last and n + D >= 16):
            fill[n] += frag_reads(n + D, setn)
    if loads:
        tr = tab_reads()
        fill[0] += tr[:2]
        fill[1] += [tr[2], dma_m0((setn + 3) % RING)]
        for i in range(4):
            fill[3 + i].append(dma(i))
            vm[3 + i].append(f"W{sg + 3}" if vq else None)
        for q in range(4):
            fill[7 + q].append(tokload((setn + 3) % NS, q))
            vm[7 + q].append(f"T{sg + 3}" if vq else None)
    slots = [11, 12, 13, 14, 15, 15, 2, 1, 0, 0, 0, 0]
    slots = [11, 12, 13, 14, 15, 11, 12, 13]
    order = sorted(range(len(extra)), key=lambda e: (slots[e], e))
    for e, (tag, ins) in enumerate(extra):
        pass
    sl = [11, 11, 12, 12, 13, 14, 15, 15]
    for e, (tag, ins) in enumerate(extra):
        fill[sl[e]] += ins
        vm[sl[e]].append(tag)
    for n in range(16):
        if n % 2 == 0:
            nrem = 2 * (D - 2)
            if last:
                nrem = max(0, min(nrem, 2 * (16 - n - 2)))
            k(f"s_waitcnt lgkmcnt({nrem})")
        q, cg = n >> 2, n & 3
        c = acc(cg)
        if OPT["mfma"]:
            k(f"v_mfma_f32_32x32x16_bf16 v[{c}:{c+15}], {ar(wf(n), 4)}, {tok(setn, q)}, v[{c}:{c+15}]")
        for x in fill[n]:
            if x.startswith("ds_read") and not OPT["lds"]: continue
            if x.startswith("buffer_load_dwordx4 a") and not OPT["tok"]: continue
            if x.endswith(" lds") and not OPT["w"]: continue
            k(x)
        if vq is not None:
            for tg in vm[n]:
                vq.issue(tg)


def epilogue(k):
    XS = 52
    PITCH = 272
    k("s_waitcnt vmcnt(0) lgkmcnt(0)")
    k(f"s_add_u32 s{XS}, s6, {XCH_OFF}")
    k(f"s_addc_u32 s{XS+1}, s7, 0")
    k(f"s_mov_b32 s{XS+2}, {4 << 20}")
    k(f"s_mov_b32 s{XS+3}, 0x00020000")
    k("s_lshl_b32 s60, s2, 2")
    k(f"s_add_u32 s60, s60, s{S_WAVE}")
    k("s_xor_b32 s61, s60, 4")
    k("s_lshl_b32 s62, s60, 12")
    k("s_lshl_b32 s63, s61, 12")
    R = RCV
    PK = RCV + 16
    WA, RA = V_T, V_T + 1
    k(f"s_mul_i32 s64, s{S_WAVE}, {32 * PITCH}")
    k(f"v_and_b32 v{WA}, 31, v0")
    k(f"v_mul_u32_u24 v{WA}, {PITCH}, v{WA}")
    k(f"v_lshrrev_b32 v{V_T+2}, 5, v0")
    k(f"v_lshl_add_u32 v{WA}, v{V_T+2}, 4, v{WA}")
    k(f"v_add_u32 v{WA}, s64, v{WA}")
    k(f"v_lshrrev_b32 v{RA}, 3, v0")
    k(f"v_mul_u32_u24 v{RA}, {PITCH}, v{RA}")
    k(f"v_and_b32 v{V_T+2}, 7, v0")
    k(f"v_lshl_add_u32 v{RA}, v{V_T+2}, 5, v{RA}")
    k(f"v_add_u32 v{RA}, s64, v{RA}")
    k("s_barrier")
    for kh in range(2):
        if kh == 0:
            k(f"s_cmp_eq_u32 s{S_KH}, 0")
            k("s_cbranch_scc0 L_k3_kh1")
        else:
            k.lab("L_k3_kh1")
        send = 2 * (1 - kh)
        keep = 2 * kh
        for t in range(2):
            for q in range(8):
                c = acc(send + t) + 2 * q
                k(f"v_cvt_pk_bf16_f32 v{PK + 8*t + q}, v{c}, v{c+1}")
        for f in range(4):
            k(f"buffer_store_dwordx4 v[{PK+4*f}:{PK+4*f+3}], v{V_L16}, s[{XS}:{XS+3}], s62 offen offset:{1024*f} sc1")
        k("s_mov_b32 s67, 100000")
        k.lab(f"L_k3_xp{kh}")
        for f in range(4):
            k(f"buffer_load_dwordx4 v[{R+4*f}:{R+4*f+3}], v{V_L16}, s[{XS}:{XS+3}], s63 offen offset:{1024*f} sc1")
        k("s_waitcnt vmcnt(0)")
        k(f"v_max3_u32 v{V_T+2}, v{R}, v{R+1}, v{R+2}")
        k(f"v_max3_u32 v{V_T+3}, v{R+3}, v{R+4}, v{R+5}")
        for q in range(6, 14, 4):
            k(f"v_max3_u32 v{V_T+2}, v{V_T+2}, v{R+q}, v{R+q+1}")
            k(f"v_max3_u32 v{V_T+3}, v{V_T+3}, v{R+q+2}, v{R+q+3}")
        k(f"v_max3_u32 v{V_T+2}, v{V_T+2}, v{R+14}, v{R+15}")
        k(f"v_max_u32 v{V_T+2}, v{V_T+2}, v{V_T+3}")
        k(f"v_cmp_eq_u32 vcc, -1, v{V_T+2}")
        k("s_sub_u32 s67, s67, 1")
        k("s_cmp_eq_u32 s67, 0")
        k(f"s_cbranch_scc1 L_k3_xd{kh}")
        k(f"s_cbranch_vccnz L_k3_xp{kh}")
        k.lab(f"L_k3_xd{kh}")
        for t in range(2):
            for f in range(4):
                c = acc(keep + t) + 4 * f
                r = R + 8 * t + 2 * f
                k(f"v_lshlrev_b32 v{PK}, 16, v{r}")
                k(f"v_and_b32 v{PK+1}, 0xffff0000, v{r}")
                k(f"v_lshlrev_b32 v{PK+2}, 16, v{r+1}")
                k(f"v_and_b32 v{PK+3}, 0xffff0000, v{r+1}")
                k(f"v_pk_add_f32 v[{c}:{c+1}], v[{c}:{c+1}], v[{PK}:{PK+1}]")
                k(f"v_pk_add_f32 v[{c+2}:{c+3}], v[{c+2}:{c+3}], v[{PK+2}:{PK+3}]")
                k(f"ds_write_b128 v{WA}, v[{c}:{c+3}] offset:{(32*t + 8*f) * 4}")
        if kh == 0:
            k("s_branch L_k3_fin")
    k.lab("L_k3_fin")
    k("s_waitcnt lgkmcnt(0)")
    T = ACC
    for i in range(4):
        k(f"ds_read_b128 v[{T+8*i}:{T+8*i+3}], v{RA} offset:{i * 8 * PITCH}")
        k(f"ds_read_b128 v[{T+8*i+4}:{T+8*i+7}], v{RA} offset:{i * 8 * PITCH + 16}")
    for i in range(4):
        x = XRES + 4 * i
        b = T + 8 * i
        U = RCV
        for q in range(4):
            k(f"v_lshlrev_b32 v{U+2*q}, 16, v{x+q}")
            k(f"v_and_b32 v{U+2*q+1}, 0xffff0000, v{x+q}")
        k(f"s_waitcnt lgkmcnt({6 - 2*i})")
        for q in range(4):
            k(f"v_pk_add_f32 v[{b+2*q}:{b+2*q+1}], v[{b+2*q}:{b+2*q+1}], v[{U+2*q}:{U+2*q+1}]")
        for q in range(4):
            k(f"v_cvt_pk_bf16_f32 v{b+q}, v{b+2*q}, v{b+2*q+1}")
        k(f"buffer_store_dwordx4 v[{b}:{b+3}], v{V_OUT}, s[{S_OUT}:{S_OUT+3}], s{S_XO + i} offen")


def gen_k3(stamps=False):
    k = Kern("k3_gemm2_kernel")
    vq = VQ()
    if stamps:
        stamp(k, 0)
    prologue(k, vq)
    if stamps:
        stamp(k, 1)
    stage(k, 0, 0, vq=vq)
    if stamps:
        stamp(k, 2)
    k(f"s_mov_b32 s{S_IT}, 0")
    k.lab("L_k3_loop")
    if stamps:
        k("s_memtime s[98:99]")
        k("s_waitcnt lgkmcnt(0)")
        k(f"s_mov_b32 m0, s{S_IT}")
        k("s_nop 3")
        k("v_writelane_b32 v23, s98, m0")
    nloop = (36 - NHEAD - NTAIL) // NS
    for sub in range(NS):
        extra, pre = [], None
        setn = (NHEAD + sub) % NS
        if sub == 1:
            def pre(k):
                k(f"s_cmp_eq_u32 s{S_IT}, 5")
                k("s_cbranch_scc0 L_k3_nopoll")
                k(f"buffer_load_dword v{V_POLL}, v{V_CNTA}, s[{S_CNT}:{S_CNT+3}], 0 offen sc1")
                k.lab("L_k3_nopoll")
        if sub == 0:
            def pre(k):
                k(f"s_cmp_eq_u32 s{S_IT}, 6")
                k("s_cbranch_scc0 L_k3_nochk")
                k(f"s_mov_b32 s{S_W}, s{S_WOLO}")
                k(f"s_mov_b32 s{S_W+1}, s{S_WOHI}")
                k(f"s_mov_b32 s{S_W+2}, s{S_WOSZ}")
                k("s_mov_b32 s75, 400000")
                k.lab("L_k3_chk")
                k(f"v_readfirstlane_b32 s{S_T}, v{V_POLL}")
                k.nop(1)
                k(f"s_cmp_ge_u32 s{S_T}, 32")
                k("s_cbranch_scc1 L_k3_nochk")
                k("s_sub_u32 s75, s75, 1")
                k("s_cmp_eq_u32 s75, 0")
                k("s_cbranch_scc1 L_k3_nochk")
                k(f"buffer_load_dword v{V_POLL}, v{V_CNTA}, s[{S_CNT}:{S_CNT+3}], 0 offen sc1")
                k("s_waitcnt vmcnt(0)")
                k("s_branch L_k3_chk")
                k.lab("L_k3_nochk")
        stage(k, None, setn, extra=extra, pre=pre)
    k(f"s_add_u32 s{S_IT}, s{S_IT}, 1")
    k(f"s_cmp_lt_u32 s{S_IT}, {nloop}")
    k("s_cbranch_scc1 L_k3_loop")
    vq2 = VQ()
    for st in (33, 34, 35):
        vq2.issue(f"W{st}", 4); vq2.issue(f"T{st}", 4)
    for sg in range(33, 36):
        extra = []
        if sg == 33:
            for i in range(4):
                r = XRES + 4 * i
                extra.append(("x", [f"buffer_load_dwordx4 v[{r}:{r+3}], v{V_OUT}, s[{S_X}:{S_X+3}], s{S_XO + i} offen"]))
        stage(k, sg, sg % NS, vq=vq2, loads=False, last=(sg == 35), extra=extra)
    if stamps:
        stamp(k, 3)
    k.nop(12)
    epilogue(k)
    if stamps:
        k("s_waitcnt vmcnt(0)")
        stamp(k, 4)
        stamp_store(k, 5)
    k.lab("L_k3_end")
    k("s_endpgm")
    k.lab("L_k3_helper")
    helper(k)
    return k, descriptor("k3_gemm2_kernel", NV + NAGPR, NV), f"; @launch kernel=k3_gemm2_kernel grid=(512,1,1) block=(256,1,1) lds={SCR + 8192}"


STAMP_OFF = 60 << 20
def stamp(k, i):
    k(f"s_memtime s[{76+4*i}:{77+4*i}]")
    k(f"s_memrealtime s[{78+4*i}:{79+4*i}]")
    k("s_waitcnt lgkmcnt(0)")


def stamp_store(k, n=4, kid=1):
    k(f"s_add_u32 s8, s6, {STAMP_OFF + kid * 65536}")
    k("s_addc_u32 s9, s7, 0")
    k("s_mov_b32 s10, 65536")
    k("s_mov_b32 s11, 0x00020000")
    k("s_lshl_b32 s51, s2, 8")
    k("v_mov_b32 v104, s51")
    k("v_cmp_eq_u32 vcc, 0, v0")
    k("s_and_saveexec_b64 s[52:53], vcc")
    k(f"s_cmp_eq_u32 s{S_WAVE}, 0")
    k("s_cbranch_scc0 L_k3_nostamp")
    for i in range(n):
        k(f"v_mov_b32 v105, s{76+4*i}")
        k(f"v_mov_b32 v106, s{78+4*i}")
        k(f"buffer_store_dword v105, v104, s[8:11], 0 offen offset:{8*i}")
        k(f"buffer_store_dword v106, v104, s[8:11], 0 offen offset:{8*i+4}")
    k("s_mov_b64 exec, s[52:53]")
    k("v_lshlrev_b32 v105, 2, v0")
    k("v_add_u32 v105, s51, v105")
    k("v_cmp_gt_u32 vcc, 16, v0")
    k("s_and_saveexec_b64 s[52:53], vcc")
    k("buffer_store_dword v23, v105, s[8:11], 0 offen offset:128")
    k.lab("L_k3_nostamp")
    k("s_mov_b64 exec, s[52:53]")
```

```python
from dsl import *

POL = ''
XN_OFF = 0
A2_OFF = 4 << 20
PHIQ_OFF = 24 << 20
KVP_OFF = 32 << 20
ZP_OFF = 35 << 20
FLG_OFF = 36 << 20
XCH_OFF = 40 << 20


def srd(k, s, ptr, size, off=0):
    if off:
        k(f"s_add_u32 s{s}, s{ptr}, {off}")
        k(f"s_addc_u32 s{s+1}, s{ptr+1}, 0")
    else:
        k(f"s_mov_b32 s{s}, s{ptr}")
        k(f"s_mov_b32 s{s+1}, s{ptr+1}")
    k(f"s_mov_b32 s{s+2}, {size}")
    k(f"s_mov_b32 s{s+3}, 0x00020000")


def xreduce_add(k, a, b, op="v_add_f32"):
    k(f"v_mov_b32 v{b}, v{a}")
    k.nop(2)
    k(f"v_permlane16_swap_b32 v{a}, v{b}")
    k.nop(1)
    k(f"{op} v{a}, v{a}, v{b}")
    k(f"v_mov_b32 v{b}, v{a}")
    k.nop(2)
    k(f"v_permlane32_swap_b32 v{a}, v{b}")
    k.nop(1)
    k(f"{op} v{a}, v{a}, v{b}")


def gen_k1(stamps=False):
    k = Kern("k1_ln_kernel")
    if stamps:
        k("s_memrealtime s[40:41]")
    k("s_cmp_ge_u32 s2, 128")
    k("s_cbranch_scc1 L_k1_end")
    k("s_load_dwordx2 s[4:5], s[0:1], 0")
    k("s_load_dwordx2 s[6:7], s[0:1], 80")
    k("v_and_b32 v1, 63, v0")
    k("v_lshrrev_b32 v2, 6, v0")
    k("v_and_b32 v3, 15, v1")
    k("v_lshrrev_b32 v4, 4, v1")
    k("v_lshlrev_b32 v5, 11, v3")
    k("v_lshl_add_u32 v5, v4, 4, v5")
    k("v_lshl_add_u32 v5, v2, 8, v5")
    k("s_lshl_b32 s16, s2, 15")
    k("s_waitcnt lgkmcnt(0)")
    srd(k, 8, 4, 4194304)
    srd(k, 12, 6, 4194304, XN_OFF)
    for i in range(4):
        k(f"buffer_load_dwordx4 v[{16+4*i}:{19+4*i}], v5, s[8:11], s16 offen offset:{64*i}")
    k(f"s_add_u32 s24, s6, {FLG_OFF}")
    k("s_addc_u32 s25, s7, 0")
    k(f"s_mov_b32 s26, {64 << 10}")
    k("s_mov_b32 s27, 0x00020000")
    k("s_lshl_b32 s28, s2, 9")
    k("v_lshlrev_b32 v9, 2, v0")
    k("v_mov_b32 v10, 0")
    k("v_cmp_gt_u32 vcc, 128, v0")
    k("s_and_saveexec_b64 s[30:31], vcc")
    k("s_cbranch_execz L_k1_nz")
    k("buffer_store_dword v10, v9, s[24:27], s28 offen")
    k.lab("L_k1_nz")
    k("s_mov_b64 exec, s[30:31]")
    k("v_lshlrev_b32 v6, 4, v1")
    k("v_lshl_add_u32 v6, v2, 14, v6")
    k("s_lshr_b32 s17, s2, 2")
    k("s_lshl_b32 s17, s17, 17")
    k("s_and_b32 s18, s2, 3")
    k("s_lshl_b32 s18, s18, 10")
    k("s_add_u32 s17, s17, s18")
    k("s_add_u32 s18, s17, 4096")
    k("s_add_u32 s19, s17, 8192")
    k("s_add_u32 s20, s17, 12288")
    k("v_lshlrev_b32 v7, 5, v3")
    k("v_lshl_add_u32 v8, v2, 2, v7")
    k("s_mov_b32 s21, 0xffff0000")
    k("s_waitcnt vmcnt(0)")
    for i in range(16):
        k(f"v_lshlrev_b32 v{32+2*i}, 16, v{16+i}")
        k(f"v_and_b32 v{33+2*i}, s21, v{16+i}")
    k("v_pk_add_f32 v[10:11], v[32:33], v[34:35]")
    k("v_pk_add_f32 v[12:13], v[36:37], v[38:39]")
    for i in range(4, 16, 2):
        k(f"v_pk_add_f32 v[10:11], v[10:11], v[{32+2*i}:{33+2*i}]")
        k(f"v_pk_add_f32 v[12:13], v[12:13], v[{34+2*i}:{35+2*i}]")
    k("v_pk_add_f32 v[10:11], v[10:11], v[12:13]")
    k("v_add_f32 v10, v10, v11")
    xreduce_add(k, 10, 11)
    k("ds_write_b32 v8, v10")
    k("s_waitcnt lgkmcnt(0)")
    k("s_barrier")
    k("ds_read_b128 v[64:67], v7")
    k("ds_read_b128 v[68:71], v7 offset:16")
    k("s_waitcnt lgkmcnt(0)")
    k("v_pk_add_f32 v[64:65], v[64:65], v[66:67]")
    k("v_pk_add_f32 v[68:69], v[68:69], v[70:71]")
    k("v_pk_add_f32 v[64:65], v[64:65], v[68:69]")
    k("v_add_f32 v64, v64, v65")
    k("v_mul_f32 v64, 0xba800000, v64")
    for i in range(16):
        k(f"v_pk_add_f32 v[{32+2*i}:{33+2*i}], v[{32+2*i}:{33+2*i}], v[64:65] op_sel_hi:[1,0]")
    k("v_pk_mul_f32 v[10:11], v[32:33], v[32:33]")
    k("v_pk_mul_f32 v[12:13], v[34:35], v[34:35]")
    for i in range(2, 16, 2):
        k(f"v_pk_fma_f32 v[10:11], v[{32+2*i}:{33+2*i}], v[{32+2*i}:{33+2*i}], v[10:11]")
        k(f"v_pk_fma_f32 v[12:13], v[{34+2*i}:{35+2*i}], v[{34+2*i}:{35+2*i}], v[12:13]")
    k("v_pk_add_f32 v[10:11], v[10:11], v[12:13]")
    k("v_add_f32 v10, v10, v11")
    xreduce_add(k, 10, 11)
    k("ds_write_b32 v8, v10 offset:512")
    k("s_waitcnt lgkmcnt(0)")
    k("s_barrier")
    k("ds_read_b128 v[64:67], v7 offset:512")
    k("ds_read_b128 v[68:71], v7 offset:528")
    k("s_waitcnt lgkmcnt(0)")
    k("v_pk_add_f32 v[64:65], v[64:65], v[66:67]")
    k("v_pk_add_f32 v[68:69], v[68:69], v[70:71]")
    k("v_pk_add_f32 v[64:65], v[64:65], v[68:69]")
    k("v_add_f32 v64, v64, v65")
    k("v_mov_b32 v65, 0x3727c5ac")
    k("v_fmac_f32 v65, 0x3a800000, v64")
    k("v_rsq_f32 v64, v65")
    k.nop(1)
    for i in range(16):
        k(f"v_pk_mul_f32 v[{32+2*i}:{33+2*i}], v[{32+2*i}:{33+2*i}], v[64:65] op_sel_hi:[1,0]")
    for i in range(16):
        k(f"v_cvt_pk_bf16_f32 v{16+i}, v{32+2*i}, v{33+2*i}")
    k.nop(2)
    for i in range(4):
        b = 16 + 4 * i
        k(f"v_permlane16_swap_b32 v{b}, v{b+2}")
        k(f"v_permlane16_swap_b32 v{b+1}, v{b+3}")
    k.nop(2)
    for i in range(4):
        b = 16 + 4 * i
        k(f"v_permlane32_swap_b32 v{b}, v{b+2}")
        k(f"v_permlane32_swap_b32 v{b+1}, v{b+3}")
    for i in range(4):
        b = 16 + 4 * i
        k(f"buffer_store_dwordx4 v[{b}:{b+3}], v6, s[12:15], s{17+i} offen{POL}")
    if stamps:
        k("s_waitcnt vmcnt(0)")
        k("s_memrealtime s[42:43]")
        k("s_waitcnt lgkmcnt(0)")
        k(f"s_add_u32 s8, s6, {(60 << 20) + 2 * 65536}")
        k("s_addc_u32 s9, s7, 0")
        k("s_mov_b32 s10, 65536")
        k("s_mov_b32 s11, 0x00020000")
        k("s_lshl_b32 s44, s2, 8")
        k("v_mov_b32 v10, s44")
        k("v_mov_b32 v12, s40")
        k("v_mov_b32 v13, s42")
        k("v_cmp_eq_u32 vcc, 0, v0")
        k("s_and_saveexec_b64 s[46:47], vcc")
        k("s_cbranch_execz L_k1_end")
        k("buffer_store_dwordx2 v[12:13], v10, s[8:11], 0 offen")
    k.lab("L_k1_end")
    k("s_endpgm")
    return k, descriptor("k1_ln_kernel", 72, 72), "; @launch kernel=k1_ln_kernel grid=(128,1,1) block=(512,1,1) lds=1024"
```

```python
from dsl import *
from k1 import srd, XN_OFF, A2_OFF, PHIQ_OFF, KVP_OFF, ZP_OFF

STAGE = 20480
RING = 5
NS = 4
ROT = True
XOPT = dict(bar=True, halfwait=False, side=True, nosalu=False, lds=True, dma=True, tok=True, ldsfrac=1)
PD = RING - 2
NB = 10
DBG_OFF = 64 << 20
WPHI_OFF = STAGE * RING

V_TOK = 1
V_DMA = 2
V_AQ0, V_AQ1, V_AG = 7, 8, 9
ACC_V0 = 16
A_TOK = 80
A_WF = A_TOK + 16 * NS
NAGPR = A_WF + 4 * NB

S_XN = 8
S_W = 12
S_SOFF = 32
S_SSTR = 37
S_TOFF = 42
S_RING = 43
S_RLIM = 44
S_RD = 45
S_CNT = 46
S_WAVE = 47
S_J = 48
S_R = 49
S_DELTA = 50
S_T0 = 51
S_IDX, S_WB, S_ROT, S_P = 70, 71, 72, 73
S_NEG = 66
S_POS = 67
S_C1 = 68
S_C2 = 69


def acc(n, t):
    if t < 3:
        return vr(ACC_V0 + 80 * t + 4 * n, 4)
    return ar(4 * n, 4)


def tok(setn, t):
    return ar(A_TOK + 16 * setn + 4 * t, 4)


def wf(n):
    return A_WF + 4 * (n % NB)


def frag_reads(n):
    b = wf(n)
    out = []
    for t in range(2):
        if n < 6:
            m, hf = n >> 1, n & 1
            a = V_AQ1 if hf else V_AQ0
            off = t * 3072 + m * 64
        else:
            u, isu = (n - 6) >> 1, (n - 6) & 1
            a = V_AG
            off = 6144 + isu * 7168 + t * 3584 + u * 32
        out.append(f"ds_read_b64_tr_b16 {ar(b + 2 * t, 2)}, v{a} offset:{off}")
    return out


def mfma(n, t, setn):
    w = ar(wf(n), 4)
    x = tok(setn, t)
    c = acc(n, t)
    if n in (4, 5):
        return f"v_mfma_f32_16x16x32_bf16 {c}, {x}, {w}, {c}"
    return f"v_mfma_f32_16x16x32_bf16 {c}, {w}, {x}, {c}"


def dma(i):
    return [f"s_add_u32 m0, s{S_RING}, {i * 1024}",
            f"s_mul_i32 s{S_SOFF + i}, s{S_P}, s{S_SSTR + i}",
            f"buffer_load_dwordx4 v{V_DMA + i}, s[{S_W + 4 * i}:{S_W + 4 * i + 3}], s{S_SOFF + i} offen lds"]


ORDER = "lead"


def p_adv():
    if ORDER == "win":
        return [[f"s_lshl_b32 s{S_TOFF}, s{S_P}, 12",
                 f"s_add_u32 s{S_IDX}, s{S_IDX}, 1",
                 f"s_and_b32 s{S_IDX}, s{S_IDX}, 7"],
                [f"s_cmp_eq_u32 s{S_IDX}, s{S_ROT}",
                 f"s_cselect_b32 s{S_T0}, 8, 0",
                 f"s_add_u32 s{S_WB}, s{S_WB}, s{S_T0}",
                 f"s_add_u32 s{S_P}, s{S_WB}, s{S_IDX}"]]
    return [[f"s_lshl_b32 s{S_TOFF}, s{S_P}, 12",
             f"s_add_u32 s{S_WB}, s{S_WB}, 1",
             f"s_sub_u32 s{S_T0}, s{S_WB}, s{S_ROT}",
             f"s_and_b32 s{S_T0}, s{S_T0}, 7"],
            [f"s_cmp_lt_u32 s{S_T0}, 2",
             f"s_cselect_b32 s{S_T0}, 0, 24",
             f"s_add_u32 s{S_P}, s{S_WB}, s{S_T0}",
             f"s_and_b32 s{S_P}, s{S_P}, 31",
             f"s_cmp_ge_u32 s{S_WB}, 32",
             f"s_cselect_b32 s{S_P}, s{S_WB}, s{S_P}"]]


def ring_adv():
    return [f"s_cmp_eq_u32 s{S_RING}, s{S_RLIM}",
            f"s_cselect_b32 s{S_T0}, s{S_NEG}, s{S_POS}",
            f"s_add_u32 s{S_RING}, s{S_RING}, s{S_T0}"]


def tokload(setn, t):
    return [f"buffer_load_dwordx4 {tok(setn, t)}, v{V_TOK}, s[{S_XN}:{S_XN + 3}], s{S_TOFF} offen offset:{1024 * t} sc1"]


FINE = False
PSTAMP = False

def pst(k, i):
    if PSTAMP:
        k('s_memrealtime s[98:99]')
        k('s_waitcnt lgkmcnt(0)')
        k(f's_mov_b32 s{80+i}, s98')

def prologue(k, D):
    k("s_cmp_ge_u32 s2, 256")
    k("s_cbranch_scc1 L_k2_end")
    k("s_load_dwordx2 s[4:5], s[0:1], 8")
    k("s_load_dwordx2 s[6:7], s[0:1], 40")
    k("s_load_dwordx2 s[60:61], s[0:1], 48")
    k("s_load_dwordx2 s[62:63], s[0:1], 80")
    k("s_load_dwordx2 s[64:65], s[0:1], 16")
    k("s_load_dwordx2 s[56:57], s[0:1], 0")
    k("s_load_dwordx2 s[76:77], s[0:1], 72")
    k("v_lshrrev_b32 v10, 6, v0")
    k("v_and_b32 v0, 63, v0")
    k("s_and_b32 s51, s2, 7")
    k("v_readfirstlane_b32 s47, v10")
    k("s_lshr_b32 s52, s2, 3")
    k("s_and_b32 s53, s52, 3")
    k("s_lshl_b32 s48, s51, 2")
    k("s_add_u32 s48, s48, s53")
    k("s_lshr_b32 s49, s52, 2")
    k(f"v_lshlrev_b32 v{V_TOK}, 4, v0")
    k("s_waitcnt lgkmcnt(0)")
    k("s_mov_b32 s58, 4194304")
    k("s_mov_b32 s59, 0x00020000")
    k("v_and_b32 v10, 7, v0")
    k("v_lshlrev_b32 v10, 11, v10")
    k("v_lshrrev_b32 v11, 3, v0")
    k("v_lshl_add_u32 v10, v11, 4, v10")
    k("s_lshl_b32 s51, s47, 9")
    k("v_add_u32 v10, s51, v10")
    k("s_lshl_b32 s51, s49, 8")
    k("s_lshl_b32 s52, s48, 3")
    k("s_add_u32 s51, s51, s52")
    k("s_lshl_b32 s51, s51, 11")
    for i in range(4):
        k(f"buffer_load_dwordx4 v[{16+4*i}:{19+4*i}], v10, s[56:59], s51 offen offset:{128*i}")
    k("s_lshl_b32 s51, s49, 2")
    k("s_add_u32 s51, s51, s47")
    k("s_lshl_b32 s51, s51, 17")
    k(f"s_add_u32 s{S_XN}, s62, s51")
    k(f"s_addc_u32 s{S_XN+1}, s63, 0")
    k(f"s_mov_b32 s{S_XN+2}, 131072")
    k(f"s_mov_b32 s{S_XN+3}, 0x00020000")
    if ROT:
        k(f"s_and_b32 s51, s{S_J}, 3")
        k("s_lshl_b32 s51, s51, 1")
        k(f"s_add_u32 s51, s51, s{S_R}")
        k(f"s_and_b32 s{S_ROT}, s51, 7")
    else:
        k(f"s_mov_b32 s{S_ROT}, 0")
    k(f"s_mov_b32 s{S_IDX}, s{S_ROT}")
    k(f"s_mov_b32 s{S_WB}, 0")
    if ORDER == "win":
        k(f"s_mov_b32 s{S_P}, s{S_ROT}")
    else:
        k(f"s_sub_u32 s51, 0, s{S_ROT}")
        k("s_and_b32 s51, s51, 7")
        k("s_cmp_lt_u32 s51, 2")
        k(f"s_cselect_b32 s{S_P}, 0, 24")
    k(f"s_mov_b32 s{S_C1}, 7340032")
    k(f"s_mov_b32 s{S_C2}, {32*7168}")
    k(f"s_mov_b32 s{S_NEG}, {(-STAGE*(RING-1)) & 0xffffffff}")
    k(f"s_mov_b32 s{S_POS}, {STAGE}")
    k("s_mul_i32 s54, s47, 5")
    k("s_mul_i32 s55, s48, 224")
    k("s_lshl_b32 s56, s48, 6")
    k(f"s_lshl_b32 s{S_RING}, s54, 10")
    k(f"s_add_u32 s{S_RLIM}, s{S_RING}, {STAGE*(RING-1)}")
    k(f"s_mov_b32 s{S_RD}, 0")
    for i in range(5):
        S = S_W + 4 * i
        k(f"s_add_u32 s51, s54, {i}")
        k("s_cmp_lt_u32 s51, 13")
        k(f"s_cselect_b32 s{S}, s6, s60")
        k(f"s_cselect_b32 s{S+1}, s7, s61")
        k("s_cselect_b32 s52, 6, 13")
        k("s_cmp_lt_u32 s51, 6")
        k(f"s_cselect_b32 s{S}, s4, s{S}")
        k(f"s_cselect_b32 s{S+1}, s5, s{S+1}")
        k(f"s_cselect_b32 s{S+2}, 6291456, s{S_C1}")
        k(f"s_mov_b32 s{S+3}, 0x00020000")
        k("s_cselect_b32 s52, 0, s52")
        k(f"s_cselect_b32 s{S_SSTR+i}, {32*6144}, s{S_C2}")
        k("s_sub_u32 s53, s51, s52")
        k("s_lshl_b32 s53, s53, 6")
        k("v_add_u32 v10, s53, v0")
        k("s_cmp_lt_u32 s51, 6")
        k(f"s_cbranch_scc1 L_k2_q{i}")
        k("v_mul_u32_u24 v11, 4682, v10")
        k("v_lshrrev_b32 v11, 16, v11")
        k("v_mul_u32_u24 v12, 14, v11")
        k("v_sub_u32 v12, v10, v12")
        k("v_mul_u32_u24 v11, 7168, v11")
        k("v_lshl_add_u32 v11, v12, 4, v11")
        k(f"v_add_u32 v{V_DMA+i}, s55, v11")
        k(f"s_branch L_k2_qd{i}")
        k.lab(f"L_k2_q{i}")
        k("v_mul_u32_u24 v12, 5462, v10")
        k("v_lshrrev_b32 v12, 16, v12")
        k("v_mul_u32_u24 v13, 12, v12")
        k("v_sub_u32 v13, v10, v13")
        k("v_lshrrev_b32 v14, 2, v13")
        k("v_and_b32 v13, 3, v13")
        k("v_lshrrev_b32 v15, 1, v12")
        k("v_and_b32 v15, 2, v15")
        k("v_xor_b32 v13, v13, v15")
        k("v_mul_u32_u24 v12, 6144, v12")
        k("v_lshl_add_u32 v12, v14, 11, v12")
        k("v_lshl_add_u32 v12, v13, 4, v12")
        k(f"v_add_u32 v{V_DMA+i}, s56, v12")
        k.lab(f"L_k2_qd{i}")
        a, b, c = dma(i)
        k(a); k(b); k(c)

    def adv():
        for g in p_adv():
            for x in g:
                k(x)
        for x in ring_adv():
            k(x)

    def wgroup(st):
        for i in range(5):
            a, b, c = dma(i)
            k(a); k(b); k(c)
        adv()
        k(f"s_mov_b32 s{95 - st}, s{S_TOFF}")

    adv()
    k(f"s_mov_b32 s95, s{S_TOFF}")
    layernorm(k, 5)
    if FINE: stamp(k, 2)
    k("v_lshrrev_b32 v10, 4, v0")
    k("v_bfe_u32 v11, v0, 2, 2")
    k("v_and_b32 v12, 3, v0")
    k("v_lshl_add_u32 v13, v10, 2, v11")
    k(f"v_mul_u32_u24 v{V_AG}, 224, v13")
    k(f"v_lshl_add_u32 v{V_AG}, v12, 3, v{V_AG}")
    k(f"v_mul_u32_u24 v{V_AQ0}, 192, v13")
    k("v_and_b32 v14, 1, v12")
    k(f"v_lshl_add_u32 v{V_AQ0}, v14, 3, v{V_AQ0}")
    k("v_lshrrev_b32 v14, 1, v12")
    k(f"v_lshl_add_u32 v{V_AQ0}, v14, 4, v{V_AQ0}")
    k("v_and_b32 v14, 1, v10")
    k(f"v_lshl_add_u32 v{V_AQ1}, v14, 5, 0")
    k(f"v_xor_b32 v15, 32, v{V_AQ1}")
    k(f"v_add_u32 v15, v15, v{V_AQ0}")
    k(f"v_add_u32 v{V_AQ0}, v{V_AQ1}, v{V_AQ0}")
    k(f"v_mov_b32 v{V_AQ1}, v15")
    for i in range(ACC_V0, 256):
        k(f"v_mov_b32 v{i}, 0")
    for i in range(80):
        k(f"v_accvgpr_write_b32 a{i}, 0")
    side_jobs_setup(k)
    if XOPT["side"] == "pro":
        k("s_mov_b64 s[56:57], s[76:77]")
        side_jobs_setup2(k)
        side_jobs_body(k)
        k("s_mov_b64 s[76:77], s[56:57]")
        k("s_mov_b32 s78, 256")
        k("s_lshl_b32 s51, s49, 5")
        k("v_mov_b32 v10, s51")
    for st in range(1, RING - 1):
        wgroup(st)
    k("s_lshl_b32 s51, s48, 11")
    k("s_add_u32 s56, s64, s51")
    k("s_addc_u32 s57, s65, 0")
    k("s_mov_b32 s58, 2048")
    k("s_mov_b32 s59, 0x00020000")
    k(f"s_mov_b32 m0, {WPHI_OFF}")
    k("s_nop 0")
    k(f"buffer_load_dwordx4 v{V_TOK}, s[56:59], 0 offen lds")
    k(f"buffer_load_dwordx4 v{V_TOK}, s[56:59], 0 offen offset:1024 lds")
    k("s_cmp_eq_u32 s47, 0")
    k("s_cbranch_scc0 L_k2_nopoll")
    k("s_mov_b32 s51, 200000")
    if BACKOFF:
        k(f"s_sleep {BACKOFF}")
    k.lab("L_k2_poll")
    k("buffer_load_dword v11, v10, s[76:79], 0 offen sc1")
    k("s_waitcnt vmcnt(0)")
    k("v_readfirstlane_b32 s52, v11")
    k.nop(1)
    k("s_cmp_ge_u32 s52, 32")
    k("s_cbranch_scc1 L_k2_nopoll")
    k("s_sub_u32 s51, s51, 1")
    k("s_cmp_eq_u32 s51, 0")
    k("s_cbranch_scc1 L_k2_nopoll")
    k(f"s_sleep {POLLS}")
    k("s_branch L_k2_poll")
    k.lab("L_k2_nopoll")
    pst(k, 5)
    k("s_barrier")
    if PSTAMP:
        k(f"s_add_u32 s56, s62, {(60 << 20)}")
        k("s_addc_u32 s57, s63, 0")
        k("s_mov_b32 s58, 65536")
        k("s_mov_b32 s59, 0x00020000")
        k("s_lshl_b32 s51, s2, 8")
        k("v_mov_b32 v10, s51")
        k("s_cmp_eq_u32 s47, 0")
        k("s_cbranch_scc0 L_k2_nops")
        k("s_mov_b64 exec, 1")
        for i in range(6):
            k(f"v_mov_b32 v11, s{80+i}")
            k(f"buffer_store_dword v11, v10, s[56:59], 0 offen offset:{128 + 4*i}")
        k("s_mov_b64 exec, -1")
        k.lab("L_k2_nops")
    for st in range(RING - 2):
        k(f"s_mov_b32 s{S_TOFF}, s{95 - st}")
        for t in range(4):
            k(tokload(st, t)[0])
    k(f"s_mov_b32 s{S_TOFF}, s{95 - (RING - 2)}")
    if XOPT["side"] != "pro":
        side_jobs_setup2(k)
    k("s_waitcnt vmcnt(0)")
    k("s_barrier")
    for n in range(D):
        for x in frag_reads(n):
            k(x)


def layernorm(k, nyounger):
    from k1 import xreduce_add
    RED = WPHI_OFF + 2048
    pst(k, 0)
    k(f"s_waitcnt vmcnt({nyounger})")
    pst(k, 1)
    k("s_mov_b32 s51, 0xffff0000")
    for i in range(16):
        k(f"v_lshlrev_b32 v{32+2*i}, 16, v{16+i}")
        k(f"v_and_b32 v{33+2*i}, s51, v{16+i}")
    k("v_pk_add_f32 v[64:65], v[32:33], v[34:35]")
    k("v_pk_add_f32 v[66:67], v[36:37], v[38:39]")
    for i in range(4, 16, 2):
        k(f"v_pk_add_f32 v[64:65], v[64:65], v[{32+2*i}:{33+2*i}]")
        k(f"v_pk_add_f32 v[66:67], v[66:67], v[{34+2*i}:{35+2*i}]")
    k("v_and_b32 v68, 7, v0")
    k("v_lshlrev_b32 v68, 4, v68")
    k(f"v_add_u32 v68, {RED}, v68")
    k("s_lshl_b32 s52, s47, 2")
    k("v_add_u32 v69, s52, v68")

    def reduce(off):
        k("v_pk_add_f32 v[64:65], v[64:65], v[66:67]")
        k("v_add_f32 v64, v64, v65")
        k.nop(2)
        k("v_add_f32_dpp v64, v64, v64 row_ror:8 row_mask:0xf bank_mask:0xf")
        xreduce_add(k, 64, 65)
        k(f"ds_write_b32 v69, v64 offset:{off}")
        k("s_waitcnt lgkmcnt(0)")
        k("s_barrier")
        k(f"ds_read_b128 v[64:67], v68 offset:{off}")
        k("s_waitcnt lgkmcnt(0)")
        k("v_pk_add_f32 v[64:65], v[64:65], v[66:67]")
        k("v_add_f32 v64, v64, v65")

    reduce(0)
    k("v_mul_f32 v64, 0xba800000, v64")
    for i in range(16):
        k(f"v_pk_add_f32 v[{32+2*i}:{33+2*i}], v[{32+2*i}:{33+2*i}], v[64:65] op_sel_hi:[1,0]")
    k("v_pk_mul_f32 v[64:65], v[32:33], v[32:33]")
    k("v_pk_mul_f32 v[66:67], v[34:35], v[34:35]")
    for i in range(2, 16, 2):
        k(f"v_pk_fma_f32 v[64:65], v[{32+2*i}:{33+2*i}], v[{32+2*i}:{33+2*i}], v[64:65]")
        k(f"v_pk_fma_f32 v[66:67], v[{34+2*i}:{35+2*i}], v[{34+2*i}:{35+2*i}], v[66:67]")
    reduce(128)
    k("v_mov_b32 v65, 0x3727c5ac")
    k("v_fmac_f32 v65, 0x3a800000, v64")
    k("v_rsq_f32 v64, v65")
    k.nop(1)
    for i in range(16):
        k(f"v_pk_mul_f32 v[{32+2*i}:{33+2*i}], v[{32+2*i}:{33+2*i}], v[64:65] op_sel_hi:[1,0]")
    for i in range(16):
        k(f"v_cvt_pk_bf16_f32 v{16+i}, v{32+2*i}, v{33+2*i}")
    pst(k, 2)
    k("v_lshrrev_b32 v70, 5, v0")
    k("v_lshlrev_b32 v70, 12, v70")
    k("v_bfe_u32 v71, v0, 3, 1")
    k("v_lshl_add_u32 v70, v71, 9, v70")
    k("v_bfe_u32 v71, v0, 4, 1")
    k("v_lshl_add_u32 v70, v71, 3, v70")
    k("v_and_b32 v71, 7, v0")
    k("v_lshl_add_u32 v70, v71, 4, v70")
    k(f"s_add_u32 s56, s62, {XN_OFF}")
    k("s_addc_u32 s57, s63, 0")
    k("s_mov_b32 s58, 4194304")
    k("s_mov_b32 s59, 0x00020000")
    k("s_lshl_b32 s51, s49, 2")
    k("s_lshr_b32 s52, s48, 3")
    k("s_add_u32 s51, s51, s52")
    k("s_lshl_b32 s51, s51, 17")
    k("s_lshl_b32 s52, s47, 15")
    k("s_add_u32 s51, s51, s52")
    k("s_bfe_u32 s52, s48, 0x20001")
    k("s_lshl_b32 s52, s52, 10")
    k("s_add_u32 s51, s51, s52")
    k("s_and_b32 s52, s48, 1")
    k("s_lshl_b32 s52, s52, 7")
    k("s_add_u32 s51, s51, s52")
    for i in range(4):
        b = 16 + 4 * i
        k(f"buffer_store_dwordx2 v[{b}:{b+1}], v70, s[56:59], s51 offen sc1")
        k(f"buffer_store_dwordx2 v[{b+2}:{b+3}], v70, s[56:59], s51 offen offset:256 sc1")
        if i < 3:
            k("s_add_u32 s51, s51, 8192")


NCLR = 0
BACKOFF = 20
POLLS = 8

def ln_publish(k):
    from k1 import FLG_OFF
    k("s_mov_b32 s78, 256")
    k("s_mov_b32 s79, 0x00020000")
    k("s_lshl_b32 s51, s49, 5")
    k("v_mov_b32 v10, s51")
    k("v_mov_b32 v11, 1")
    k("s_cmp_lt_u32 s2, 8")
    k("s_cbranch_scc0 L_k2_noclr")
    k(f"s_add_u32 s56, s62, {FLG_OFF + 32768}")
    k("s_addc_u32 s57, s63, 0")
    k("s_mov_b32 s58, 8192")
    k("s_mov_b32 s59, 0x00020000")
    k("s_lshl_b32 s51, s2, 10")
    k("v_mov_b32 v12, s51")
    k("v_mov_b32 v13, 0")
    k("buffer_store_dword v13, v12, s[56:59], 0 offen")
    k.lab("L_k2_noclr")
    pst(k, 3)
    k("s_waitcnt vmcnt(0)")
    pst(k, 4)
    k("s_barrier")
    k("s_cmp_eq_u32 s47, 0")
    k("s_cbranch_scc0 L_k2_nopub")
    k("s_mov_b64 exec, 1")
    k("buffer_atomic_add v11, v10, s[76:79], 0 offen")
    k("s_mov_b64 exec, -1")
    k.lab("L_k2_nopub")


def side_jobs_setup(k):
    ln_publish(k)


def side_jobs_setup2(k):
    from k1 import XCH_OFF
    k("s_load_dwordx2 s[76:77], s[0:1], 56")
    k("s_load_dwordx2 s[80:81], s[0:1], 24")
    k("s_lshl_b32 s52, s2, 2")
    k(f"s_add_u32 s52, s52, s{S_WAVE}")
    k("v_lshlrev_b32 v10, 7, v0")
    k("v_and_b32 v11, 0x7ff, v10")
    k("s_mov_b32 s78, 7340032")
    k("s_mov_b32 s79, 0x00020000")
    k("s_mov_b32 s82, 2097152")
    k("s_mov_b32 s83, 0x00020000")
    k(f"s_mul_i32 s74, s52, {56 * 128}")
    k("s_lshl_b32 s75, s52, 11")
    k(f"s_add_u32 s84, s62, {XCH_OFF}")
    k("s_addc_u32 s85, s63, 0")
    k(f"s_mov_b32 s86, {4 << 20}")
    k("s_mov_b32 s87, 0x00020000")
    k("s_lshl_b32 s88, s52, 12")
    k("s_lshr_b32 s89, s2, 3")
    k("s_mul_i32 s52, s89, 43")
    k("s_lshr_b32 s52, s52, 8")
    k("s_mul_i32 s52, s52, 6")
    k("s_sub_u32 s89, s89, s52")
    k("s_add_u32 s89, s89, 1")
    for q in range(4):
        k(f"v_mov_b32 v{12+q}, -1")
    k("s_waitcnt lgkmcnt(0)")


def side_jobs_body(k):
    k("buffer_load_dword a252, v10, s[76:79], s74 offen")
    k("buffer_load_dword a253, v11, s[80:83], s75 offen")
    for q in range(4):
        k(f"buffer_store_dwordx4 v[12:15], v{V_TOK}, s[84:87], s88 offen offset:{1024 * q} sc1")


def side_jobs(k):
    k(f"s_cmp_eq_u32 s{S_CNT}, s89")
    k("s_cbranch_scc0 L_k2_noside")
    side_jobs_body(k)
    k.lab("L_k2_noside")


def step(k, setn, D, sched=None, tail=None):
    nside = [2, 4, 0, 0] if XOPT["side"] == "tail" else [0, 0, 0, 0]
    if tail is None or tail == 0:
        k(f"s_waitcnt vmcnt({9 * (RING - 3)})")
    elif tail == 1:
        k(f"s_waitcnt vmcnt({9 + 4 + nside[0]})")
    elif tail == 2:
        k(f"s_waitcnt vmcnt({4 + nside[0] + nside[1]})")
    else:
        k(f"s_waitcnt vmcnt({nside[0] + nside[1] + nside[2]})")
    if XOPT["bar"]:
        k("s_barrier")
    fill = {m: [] for m in range(80)}
    for n in range(20):
        nn = n + D
        if tail == 3 and nn >= 20:
            continue
        rd = frag_reads(nn % 20)
        fill[4 * n + 0].append(rd[0])
        fill[4 * n + 2].append(rd[1])
    for i in range(5 if tail is None else 0):
        a, b, c = dma(i)
        m = 4 * (2 * i + 1)
        fill[m - 1].append(b)
        fill[m + 1].append(a)
        fill[m + 3].append(c)
    if tail is None or tail == 0:
        for t in range(4):
            fill[4 * (2 + 2 * t) + 1 if tail == 0 else 4 * (11 + 2 * t) + 1].append(tokload((setn + RING - 2) % NS, t)[0])
    if tail is None:
        pa = p_adv()
        fill[73] += pa[0]; fill[75] += pa[1]
        ra = ring_adv()
        fill[77] += ra
    if tail == 0 and XOPT["side"] == "tail":
        fill[45].append("buffer_load_dword a252, v10, s[76:79], s74 offen")
        fill[53].append("buffer_load_dword a253, v11, s[80:83], s75 offen")
    if tail == 1 and XOPT["side"] == "tail":
        for q in range(4):
            fill[9 + 16 * q].append(f"buffer_store_dwordx4 v[12:15], v{V_TOK}, s[84:87], s88 offen offset:{1024 * q} sc1")
    fill[31].append(f"s_cmp_eq_u32 s{S_RD}, {STAGE*(RING-1)}")
    fill[31].append(f"s_cselect_b32 s{S_DELTA}, s{S_NEG}, s{S_POS}")
    fill[35].append(f"s_add_u32 s{S_RD}, s{S_RD}, s{S_DELTA}")
    fill[37].append(f"v_add_u32 v{V_AQ0}, s{S_DELTA}, v{V_AQ0}")
    fill[39].append(f"v_add_u32 v{V_AQ1}, s{S_DELTA}, v{V_AQ1}")
    g = 20 - D
    fill[4 * (19 - D) + 3].append(f"v_add_u32 v{V_AG}, s{S_DELTA}, v{V_AG}")
    for n in range(20):
        if tail == 3 and n + D > 20:
            k(f"s_waitcnt lgkmcnt({2 * (19 - n)})")
        elif XOPT["halfwait"]:
            if n % 2 == 0:
                k(f"s_waitcnt lgkmcnt({2 * (D - 2)})")
        else:
            k(f"s_waitcnt lgkmcnt({2 * (D - 1)})")
        for t in range(4):
            m = 4 * n + t
            k(mfma(n, t, setn))
            for x in fill[m]:
                if x.startswith("ds_read") and (not XOPT["lds"] or (XOPT["ldsfrac"] == 2 and n % 2 == 1)): continue
                if x.endswith(" lds") and not XOPT["dma"]: continue
                if x.startswith("buffer_load_dwordx4 a") and not XOPT["tok"]: continue
                k(x)


def debug_epilogue(k):
    k("s_waitcnt vmcnt(0) lgkmcnt(0)")
    k.nop(16)
    k("s_lshl_b32 s51, s2, 2")
    k("s_add_u32 s51, s51, s47")
    k("s_mul_i32 s51, s51, 81920")
    k(f"s_add_u32 s8, s62, {DBG_OFF}")
    k("s_addc_u32 s9, s63, 0")
    k("s_add_u32 s8, s8, s51")
    k("s_addc_u32 s9, s9, 0")
    k("s_mov_b32 s10, 81920")
    k("s_mov_b32 s11, 0x00020000")
    k("s_mov_b32 s52, 0")
    for n in range(20):
        for t in range(4):
            k(f"buffer_store_dwordx4 {acc(n, t)}, v{V_TOK}, s[8:11], s52 offen")
            k("s_add_u32 s52, s52, 1024")


STAMP_OFF = 60 << 20
def stamp(k, i):
    k("s_memtime s[100:101]")
    k("s_memrealtime s[98:99]")
    k("s_waitcnt lgkmcnt(0)")
    k(f"s_mov_b32 s{90+2*i}, s100")
    k(f"s_mov_b32 s{91+2*i}, s98")

def stamp_store(k, n, wsreg=62, kid=0):
    k(f"s_add_u32 s8, s{wsreg}, {STAMP_OFF + kid * 65536}")
    k(f"s_addc_u32 s9, s{wsreg+1}, 0")
    k("s_mov_b32 s10, 65536")
    k("s_mov_b32 s11, 0x00020000")
    k("s_lshl_b32 s51, s2, 8")
    k("v_mov_b32 v10, s51")
    k("v_cmp_eq_u32 vcc, 0, v0")
    k(f"s_and_saveexec_b64 s[52:53], vcc")
    k("s_cmp_eq_u32 s47, 0")
    k("s_cbranch_scc0 L_nostamp")
    for i in range(n):
        k(f"v_mov_b32 v11, s{90+2*i}")
        k(f"v_mov_b32 v12, s{91+2*i}")
        k(f"buffer_store_dword v11, v10, s[8:11], 0 offen offset:{8*i}")
        k(f"buffer_store_dword v12, v10, s[8:11], 0 offen offset:{8*i+4}")
    k.lab("L_nostamp")
    k("s_mov_b64 exec, s[52:53]")

def gen_k2(D=4, debug=False, epilogue=None, stamps=False, stepfn=None):
    k = Kern("k2_gemm1_kernel")
    if stamps:
        stamp(k, 0)
    prologue(k, D)
    if stamps and FINE:
        stamp(k, 4)
        stamp_store(k, 5)
        k("s_endpgm")
    if stamps:
        stamp(k, 1)
        k("s_nop 0")
        for n in range(D):
            pass
    k(f"s_mov_b32 s{S_CNT}, 0")
    k.lab("L_k2_loop")
    if XOPT['side'] is True:
        side_jobs(k)
    for s in range(NS):
        (stepfn or step)(k, s, D)
    k(f"s_add_u32 s{S_CNT}, s{S_CNT}, 1")
    k(f"s_cmp_lt_u32 s{S_CNT}, {32 // NS - 1}")
    k("s_cbranch_scc1 L_k2_loop")
    for s in range(NS):
        step(k, s, D, tail=s)
    if stamps:
        stamp(k, 2)
    if debug:
        debug_epilogue(k)
    elif epilogue:
        epilogue(k)
    if stamps:
        k("s_waitcnt vmcnt(0)")
        stamp(k, 3)
        stamp_store(k, 4)
    k.lab("L_k2_end")
    k("s_endpgm")
    nv = 256 + 254
    return k, descriptor("k2_gemm1_kernel", nv, 256), f"; @launch kernel=k2_gemm1_kernel grid=(256,1,1) block=(256,1,1) lds={STAGE*RING + 4096}"
```

```python
from dsl import *
from k1 import XN_OFF, A2_OFF, PHIQ_OFF, KVP_OFF, ZP_OFF, XCH_OFF
import k2
from k2 import V_TOK, WPHI_OFF, S_WAVE, S_J, S_R

A2_TT = 144 * 1024
LOG2E = 0x3fb8aa3b
POL = ''
QB = [16, 96, 176, 200]
XR = [40, 48, 56, 64]
ER = [120, 128, 136, 144]
ST = [72, 76, 80, 84]
WP0, WP1, SEL0, SEL1, ONES = 224, 228, 232, 236, 240
S_L2E = 74
S_SRD = 8
S_SRD2 = 12


def h_part(k):
    k(f"s_add_u32 s8, s62, {A2_OFF}")
    k("s_addc_u32 s9, s63, 0")
    k(f"s_mov_b32 s10, {128 * A2_TT}")
    k("s_mov_b32 s11, 0x00020000")
    k(f"s_lshl_b32 s52, s{S_R}, 4")
    k(f"s_lshl_b32 s53, s{S_WAVE}, 2")
    k("s_add_u32 s52, s52, s53")
    k(f"s_mul_i32 s53, s{S_J}, 7")
    k("s_lshr_b32 s53, s53, 1")
    k("s_add_u32 s53, s53, 32")
    k("s_lshl_b32 s53, s53, 10")
    k(f"s_mul_i32 s54, s52, {A2_TT}")
    k("s_add_u32 s54, s54, s53")

    def compute(G0, H, srcs):
        for u in range(7):
            G, U = srcs[u]
            for jj in range(4):
                k(f"v_max_f32 v{G+jj}, 0, v{G+jj}")
            k(f"v_pk_mul_f32 v[{G}:{G+1}], v[{G}:{G+1}], v[{U}:{U+1}]")
            k(f"v_pk_mul_f32 v[{G+2}:{G+3}], v[{G+2}:{G+3}], v[{U+2}:{U+3}]")
            k(f"v_cvt_pk_bf16_f32 v{H+2*u}, v{G}, v{G+1}")
            k(f"v_cvt_pk_bf16_f32 v{H+2*u+1}, v{G+2}, v{G+3}")

    def stores(H, t):
        k(f"s_bitcmp1_b32 s{S_J}, 0")
        k(f"s_cbranch_scc1 L_hodd{t}")
        k(f"buffer_store_dwordx4 v[{H}:{H+3}], v{V_TOK}, s[8:11], s54 offen{POL}")
        k(f"buffer_store_dwordx4 v[{H+4}:{H+7}], v{V_TOK}, s[8:11], s54 offen offset:1024{POL}")
        k(f"buffer_store_dwordx4 v[{H+8}:{H+11}], v{V_TOK}, s[8:11], s54 offen offset:2048{POL}")
        k(f"buffer_store_dwordx2 v[{H+12}:{H+13}], v{V_TOK}, s[8:11], s54 offen offset:3072{POL}")
        k(f"s_branch L_hdone{t}")
        k.lab(f"L_hodd{t}")
        k(f"buffer_store_dwordx2 v[{H}:{H+1}], v{V_TOK}, s[8:11], s54 offen offset:8{POL}")
        k(f"buffer_store_dwordx4 v[{H+2}:{H+5}], v{V_TOK}, s[8:11], s54 offen offset:1024{POL}")
        k(f"buffer_store_dwordx4 v[{H+6}:{H+9}], v{V_TOK}, s[8:11], s54 offen offset:2048{POL}")
        k(f"buffer_store_dwordx4 v[{H+10}:{H+13}], v{V_TOK}, s[8:11], s54 offen offset:3072{POL}")
        k.lab(f"L_hdone{t}")
        k(f"s_add_u32 s54, s54, {A2_TT}")

    for t in range(3):
        base = 16 + 80 * t
        srcs = [(base + 24 + 8 * u, base + 28 + 8 * u) for u in range(7)]
        compute(base + 24, base + 24, srcs)
        stores(base + 24, t)
    H = 40
    srcs = []
    for u in range(5):
        for q in range(8):
            k(f"v_accvgpr_read_b32 v{56+8*u+q}, a{24+8*u+q}")
        srcs.append((56 + 8 * u, 60 + 8 * u))
    for u in range(5, 7):
        for q in range(8):
            k(f"v_accvgpr_read_b32 v{136+8*(u-5)+q}, a{24+8*u+q}")
        srcs.append((136 + 8 * (u - 5), 140 + 8 * (u - 5)))
    compute(None, H, srcs)
    stores(H, 3)
    for q in range(24):
        k(f"v_accvgpr_read_b32 v{200+q}, a{q}")


def consts(k):
    k("v_lshrrev_b32 v10, 4, v0")
    k("v_bfe_u32 v11, v0, 2, 2")
    k("v_and_b32 v12, 3, v0")
    k("v_lshl_add_u32 v13, v10, 2, v11")
    k("v_lshlrev_b32 v13, 6, v13")
    k("v_lshl_add_u32 v13, v12, 3, v13")
    k(f"v_add_u32 v13, {WPHI_OFF}, v13")
    for ft, W in ((0, WP0), (1, WP1)):
        for t in range(2):
            k(f"ds_read_b64_tr_b16 v[{W+2*t}:{W+2*t+1}], v13 offset:{t*1024 + ft*32}")
    k("v_and_b32 v12, 15, v0")
    k("v_lshlrev_b32 v11, 2, v10")
    k("v_sub_u32 v12, v12, v11")
    k("v_mov_b32 v14, 0x3f80")
    k("v_mov_b32 v15, 0x3f800000")
    for rg, (dl, dh) in enumerate(((0, 1), (2, 3))):
        k(f"v_cmp_eq_u32 vcc, {dl}, v12")
        k.nop(2)
        k(f"v_cndmask_b32 v{SEL0+rg}, 0, v14, vcc")
        k(f"v_cmp_eq_u32 vcc, {dh}, v12")
        k.nop(2)
        k(f"v_cndmask_b32 v{SEL0+rg}, v{SEL0+rg}, v15, vcc")
    k(f"v_mov_b32 v{SEL0+2}, 0")
    k(f"v_mov_b32 v{SEL0+3}, 0")
    k(f"v_mov_b32 v{SEL1}, 0")
    k(f"v_mov_b32 v{SEL1+1}, 0")
    k(f"v_mov_b32 v{SEL1+2}, v{SEL0}")
    k(f"v_mov_b32 v{SEL1+3}, v{SEL0+1}")
    for q in range(4):
        k(f"v_mov_b32 v{ONES+q}, 0x3f803f80")
    k(f"s_mov_b32 s{S_L2E}, {LOG2E}")
    k(f"s_mov_b32 s{S_L2E+1}, {LOG2E}")
    k(f"s_mov_b32 s{S_L2E+2}, {LOG2E | 0x80000000}")
    k(f"s_mov_b32 s{S_L2E+3}, {LOG2E | 0x80000000}")
    k("s_waitcnt lgkmcnt(0)")


def features(k, o):
    for t in range(4):
        b = QB[t] + o
        for q in range(4):
            k(f"v_cvt_pk_bf16_f32 v{b+q}, v{b+2*q}, v{b+2*q+1}")
    k.nop(1)
    for t in range(4):
        b = QB[t] + o
        X = XR[t]
        k(f"v_mfma_f32_16x16x32_bf16 v[{X}:{X+3}], v[{WP0}:{WP0+3}], v[{b}:{b+3}], 0")
        k(f"v_mfma_f32_16x16x32_bf16 v[{X+4}:{X+7}], v[{WP1}:{WP1+3}], v[{b}:{b+3}], 0")
    k.nop(2)
    for t in range(4):
        X, a, b = XR[t], ST[t], ST[t] + 1
        if t == 0:
            k.nop(2)
        k(f"v_max3_f32 v{a}, v{X}, v{X+1}, v{X+2}")
        k(f"v_max3_f32 v{b}, -v{X}, -v{X+1}, -v{X+2}")
        k(f"v_max3_f32 v{a}, v{a}, v{X+3}, v{X+3}")
        k(f"v_max3_f32 v{b}, v{b}, -v{X+3}, -v{X+3}")
        if t == 0:
            k.nop(2)
    for t in range(4):
        X, a, b = XR[t], ST[t], ST[t] + 1
        k(f"v_max3_f32 v{a}, v{a}, v{X+4}, v{X+5}")
        k(f"v_max3_f32 v{b}, v{b}, -v{X+4}, -v{X+5}")
        k(f"v_max3_f32 v{a}, v{a}, v{X+6}, v{X+7}")
        k(f"v_max3_f32 v{b}, v{b}, -v{X+6}, -v{X+7}")
    for t in range(4):
        a, b = ST[t], ST[t] + 1
        k(f"v_permlane16_swap_b32 v{a}, v{b}")
    for t in range(4):
        a, b, c = ST[t], ST[t] + 1, ST[t] + 2
        k(f"v_max_f32 v{a}, v{a}, v{b}")
        k(f"v_mov_b32 v{c}, v{a}")
    for t in range(4):
        a, c = ST[t], ST[t] + 2
        if t == 3:
            k.nop(1)
        k(f"v_permlane32_swap_b32 v{a}, v{c}")
    for t in range(4):
        a, b, c = ST[t], ST[t] + 1, ST[t] + 2
        k(f"v_max_f32 v{a}, v{a}, v{c}")
        k(f"v_mov_b32 v{c}, v{a}")
    for t in range(4):
        a, c = ST[t], ST[t] + 2
        if t == 3:
            k.nop(1)
        k(f"v_permlane16_swap_b32 v{a}, v{c}")
    for t in range(4):
        a, c = ST[t], ST[t] + 2
        k(f"v_mul_f32 v{a}, s{S_L2E+2}, v{a}")
        k(f"v_mul_f32 v{c}, s{S_L2E+2}, v{c}")
    for t in range(4):
        X, E, a, c = XR[t], ER[t], ST[t], ST[t] + 2
        for q in range(0, 8, 2):
            k(f"v_pk_fma_f32 v[{E+q}:{E+q+1}], v[{X+q}:{X+q+1}], s[{S_L2E+2}:{S_L2E+3}], v[{c}:{c+1}] op_sel_hi:[1,1,0]")
        for q in range(0, 8, 2):
            k(f"v_pk_fma_f32 v[{X+q}:{X+q+1}], v[{X+q}:{X+q+1}], s[{S_L2E}:{S_L2E+1}], v[{a}:{a+1}] op_sel_hi:[1,1,0]")
    for t in range(4):
        X, E = XR[t], ER[t]
        for q in range(8):
            k(f"v_exp_f32 v{X+q}, v{X+q}")
            k(f"v_exp_f32 v{E+q}, v{E+q}")
    for t in range(4):
        X, E = XR[t], ER[t]
        for q in range(4):
            k(f"v_cvt_pk_bf16_f32 v{X+q}, v{X+2*q}, v{X+2*q+1}")
        for q in range(4):
            k(f"v_cvt_pk_bf16_f32 v{E+q}, v{E+2*q}, v{E+2*q+1}")


def q_part(k):
    features(k, 0)
    k(f"s_add_u32 s12, s62, {PHIQ_OFF}")
    k("s_addc_u32 s13, s63, 0")
    k(f"s_mov_b32 s14, {8 << 20}")
    k("s_mov_b32 s15, 0x00020000")
    k(f"s_lshl_b32 s53, s{S_J}, 18")
    k("s_lshl_b32 s55, s52, 11")
    k("s_add_u32 s53, s53, s55")
    for t in range(4):
        X, E = XR[t], ER[t]
        k(f"buffer_store_dwordx4 v[{X}:{X+3}], v{V_TOK}, s[12:15], s53 offen{POL}")
        k(f"buffer_store_dwordx4 v[{E}:{E+3}], v{V_TOK}, s[12:15], s53 offen offset:1024{POL}")
        if t < 3:
            k("s_add_u32 s53, s53, 2048")
    k.nop(2)


def KV(s, ft, dt):
    i = s * 4 + ft * 2 + dt
    return [16, 96, 176][i // 4] + 4 * (i % 4) if i < 8 else None


def tileaddr(i):
    return QB[i // 4] + 4 * (i % 4)


def k_part(k):
    features(k, 8)
    first = True
    for p in range(2):
        t0, t1 = 2 * p, 2 * p + 1
        TT = {t0: 72, t1: 152}
        for t in (t0, t1):
            X, E, T = XR[t], ER[t], TT[t]
            for s, src in ((0, X), (1, E)):
                o = T + 12 * s
                k(f"v_mfma_f32_16x16x32_bf16 v[{o+8}:{o+11}], v[{src}:{src+3}], v[{ONES}:{ONES+3}], 0")
                k(f"v_mfma_f32_16x16x32_bf16 v[{o}:{o+3}], v[{src}:{src+3}], v[{SEL0}:{SEL0+3}], 0")
                k(f"v_mfma_f32_16x16x32_bf16 v[{o+4}:{o+7}], v[{src}:{src+3}], v[{SEL1}:{SEL1+3}], 0")
        VF = 244
        for dt in range(2):
            a0 = QB[t0] + 16 + 4 * dt
            a1 = QB[t1] + 16 + 4 * dt
            k(f"v_cvt_pk_bf16_f32 v{VF+4*dt}, v{a0}, v{a0+1}")
            k(f"v_cvt_pk_bf16_f32 v{VF+4*dt+1}, v{a0+2}, v{a0+3}")
            k(f"v_cvt_pk_bf16_f32 v{VF+4*dt+2}, v{a1}, v{a1+1}")
            k(f"v_cvt_pk_bf16_f32 v{VF+4*dt+3}, v{a1+2}, v{a1+3}")
        for t in (t0, t1):
            T = TT[t]
            for s in range(2):
                o = T + 12 * s
                for q in range(4):
                    k(f"v_rcp_f32 v{o+8+q}, v{o+8+q}")
        k.nop(1)
        PK = XR[t0]
        for ti, t in enumerate((t0, t1)):
            T = TT[t]
            for s in range(2):
                o = T + 12 * s
                for ft in range(2):
                    a = o + 4 * ft
                    k(f"v_pk_mul_f32 v[{a}:{a+1}], v[{a}:{a+1}], v[{o+8}:{o+9}]")
                    k(f"v_pk_mul_f32 v[{a+2}:{a+3}], v[{a+2}:{a+3}], v[{o+10}:{o+11}]")
        for ti, t in enumerate((t0, t1)):
            T = TT[t]
            for s in range(2):
                o = T + 12 * s
                for ft in range(2):
                    a = o + 4 * ft
                    d = PK + 8 * s + 4 * ft + 2 * ti
                    k(f"v_cvt_pk_bf16_f32 v{d}, v{a}, v{a+1}")
                    k(f"v_cvt_pk_bf16_f32 v{d+1}, v{a+2}, v{a+3}")
        k.nop(2)
        for s in range(2):
            for ft in range(2):
                A = PK + 8 * s + 4 * ft
                for dt in range(2):
                    c = tileaddr(s * 4 + ft * 2 + dt)
                    src = "0" if p == 0 else f"v[{c}:{c+3}]"
                    k(f"v_mfma_f32_16x16x32_bf16 v[{c}:{c+3}], v[{A}:{A+3}], v[{VF+4*dt}:{VF+4*dt+3}], {src}")
                c = tileaddr(8 + s * 2 + ft)
                src = "0" if p == 0 else f"v[{c}:{c+3}]"
                k(f"v_mfma_f32_16x16x32_bf16 v[{c}:{c+3}], v[{A}:{A+3}], v[{ONES}:{ONES+3}], {src}")
    k.nop(8)
    k(f"s_mul_i32 s53, s{S_WAVE}, 12288")
    k(f"v_add_u32 v10, s53, v{V_TOK}")
    for i in range(12):
        c = tileaddr(i)
        k(f"ds_write_b128 v10, v[{c}:{c+3}] offset:{i*1024}")
    k("s_waitcnt lgkmcnt(0)")
    k("s_barrier")
    k(f"s_lshr_b32 s53, s{S_WAVE}, 1")
    k("s_lshl_b32 s53, s53, 2")
    k(f"s_and_b32 s55, s{S_WAVE}, 1")
    k("s_add_u32 s53, s53, s55")
    k("s_lshl_b32 s53, s53, 10")
    k(f"v_add_u32 v10, s53, v{V_TOK}")
    k(f"s_add_u32 s53, s{S_WAVE}, 8")
    k("s_lshl_b32 s53, s53, 10")
    k(f"v_add_u32 v11, s53, v{V_TOK}")
    R = 40
    for ww in range(4):
        k(f"ds_read_b128 v[{R+12*ww}:{R+12*ww+3}], v10 offset:{ww*12288}")
        k(f"ds_read_b128 v[{R+12*ww+4}:{R+12*ww+7}], v10 offset:{ww*12288+2048}")
        k(f"ds_read_b128 v[{R+12*ww+8}:{R+12*ww+11}], v11 offset:{ww*12288}")
    k(f"s_lshl_b32 s53, s{S_J}, 3")
    k(f"s_add_u32 s53, s53, s{S_R}")
    k(f"s_add_u32 s8, s62, {KVP_OFF}")
    k("s_addc_u32 s9, s63, 0")
    k(f"s_mov_b32 s10, {2 << 20}")
    k("s_mov_b32 s11, 0x00020000")
    k(f"s_add_u32 s12, s62, {ZP_OFF}")
    k("s_addc_u32 s13, s63, 0")
    k(f"s_mov_b32 s14, {64 << 10}")
    k("s_mov_b32 s15, 0x00020000")
    k("s_lshl_b32 s55, s53, 13")
    k(f"s_lshl_b32 s56, s{S_WAVE}, 11")
    k("s_add_u32 s55, s55, s56")
    k("s_lshl_b32 s56, s53, 8")
    k(f"s_lshl_b32 s57, s{S_WAVE}, 6")
    k("s_add_u32 s56, s56, s57")
    k("v_lshrrev_b32 v12, 4, v0")
    k("v_lshlrev_b32 v12, 4, v12")
    k("s_waitcnt lgkmcnt(0)")
    for q in range(0, 12, 2):
        k(f"v_pk_add_f32 v[{R+q}:{R+q+1}], v[{R+q}:{R+q+1}], v[{R+12+q}:{R+13+q}]")
        k(f"v_pk_add_f32 v[{R+24+q}:{R+25+q}], v[{R+24+q}:{R+25+q}], v[{R+36+q}:{R+37+q}]")
    for q in range(0, 12, 2):
        k(f"v_pk_add_f32 v[{R+q}:{R+q+1}], v[{R+q}:{R+q+1}], v[{R+24+q}:{R+25+q}]")
    k(f"buffer_store_dwordx4 v[{R}:{R+3}], v{V_TOK}, s[8:11], s55 offen")
    k(f"buffer_store_dwordx4 v[{R+4}:{R+7}], v{V_TOK}, s[8:11], s55 offen offset:1024")
    k("s_mov_b32 exec_lo, 0x00010001")
    k("s_mov_b32 exec_hi, 0x00010001")
    k(f"buffer_store_dwordx4 v[{R+8}:{R+11}], v12, s[12:15], s56 offen")
    k("s_mov_b64 exec, -1")


OPT = dict(pf=True, sent=True)


def prefetch_w2(k):
    if not OPT["pf"]:
        k.nop(8)
        return
    k("s_load_dwordx2 s[12:13], s[0:1], 56")
    k("s_load_dwordx2 s[16:17], s[0:1], 24")
    k("s_lshl_b32 s52, s2, 2")
    k(f"s_add_u32 s52, s52, s{S_WAVE}")
    k("v_lshlrev_b32 v10, 7, v0")
    k("v_and_b32 v12, 0x7ff, v10")
    k("s_mov_b32 s14, 7340032")
    k("s_mov_b32 s15, 0x00020000")
    k("s_mov_b32 s18, 2097152")
    k("s_mov_b32 s19, 0x00020000")
    k(f"s_mul_i32 s53, s52, {56 * 128}")
    k("s_lshl_b32 s54, s52, 11")
    k("s_waitcnt lgkmcnt(0)")
    k("buffer_load_dword v11, v10, s[12:15], s53 offen")
    k("buffer_load_dword v13, v12, s[16:19], s54 offen")


def sentinel_stores(k):
    if not OPT["sent"]:
        return
    k(f"s_add_u32 s20, s62, {XCH_OFF}")
    k("s_addc_u32 s21, s63, 0")
    k(f"s_mov_b32 s22, {8 << 20}")
    k("s_mov_b32 s23, 0x00020000")
    k("s_lshl_b32 s55, s2, 2")
    k(f"s_add_u32 s55, s55, s{S_WAVE}")
    k("s_lshl_b32 s55, s55, 13")
    k("s_add_u32 s56, s55, 4096")
    for q in range(4):
        k(f"v_mov_b32 v{252+q}, -1")
    for h in range(2):
        for q in range(4):
            k(f"buffer_store_dwordx4 v[252:255], v{V_TOK}, s[20:23], s{55 + h} offen offset:{1024 * q}")


def epilogue(k):
    k("s_waitcnt lgkmcnt(0)")
    k("s_barrier")
    k.nop(8)
    h_part(k)
    consts(k)
    q_part(k)
    k_part(k)
```

```python
import sys
from build import *
import k1, k2, k2e, k3j as k3
stamps = "--stamps" in sys.argv
k2.XOPT['side'] = 'tail'
k3.OPT.update(order='lead4', nlead=1)
k1.POL = k2e.POL = ' sc1'
k2.BACKOFF, k2.POLLS = 0, 2
k2.ORDER = 'win'
k2.XOPT['split_tail'] = False
k2.XOPT.update(tlb=False, wpf=False, snake=True, ipf=True, nonce=True, pollfirst=True, early1=False)
k3.OPT['hprio'] = 'none'
k2.PSTAMP = '--pst' in sys.argv
for a in sys.argv:
    if a.startswith('--bo='):
        k2.BACKOFF, k2.POLLS = map(int, a[5:].split(','))
    if a.startswith('--pol='):
        k1.POL = k2e.POL = ' ' + a[6:].replace('+', ' ')
out = [a for a in sys.argv[1:] if not a.startswith("--")]
out = out[0] if out else "parallel_sum__linear_kernel_hedgehog__glu_gated_reglu__prompt.s"
ok = assemble([k2.gen_k2(stamps=stamps, epilogue=k2e.epilogue), k3.gen_k3(stamps=stamps)], out)
print("hazards ok:", ok, "->", out)
```

```python
from dsl import *
from k1 import srd, XN_OFF, A2_OFF, PHIQ_OFF, KVP_OFF, ZP_OFF

STAGE = 20480
RING = 5
NS = 4
ROT = True
XOPT = dict(bar=True, halfwait=False, side=True, nosalu=False, lds=True, dma=True, tok=True, ldsfrac=1)
PD = RING - 2
NB = 10
DBG_OFF = 64 << 20
WPHI_OFF = STAGE * RING

V_TOK = 1
V_DMA = 2
V_AQ0, V_AQ1, V_AG = 7, 8, 9
ACC_V0 = 16
A_TOK = 80
A_WF = A_TOK + 16 * NS
NAGPR = A_WF + 4 * NB

S_XN = 8
S_W = 12
S_SOFF = 32
S_SSTR = 37
S_TOFF = 42
S_RING = 43
S_RLIM = 44
S_RD = 45
S_CNT = 46
S_WAVE = 47
S_J = 48
S_R = 49
S_DELTA = 50
S_T0 = 51
S_IDX, S_WB, S_ROT, S_P = 70, 71, 72, 73
S_NEG = 66
S_POS = 67
S_C1 = 68
S_C2 = 69


def acc(n, t):
    if t < 3:
        return vr(ACC_V0 + 80 * t + 4 * n, 4)
    return ar(4 * n, 4)


def tok(setn, t):
    return ar(A_TOK + 16 * setn + 4 * t, 4)


def wf(n):
    return A_WF + 4 * (n % NB)


def frag_reads(n):
    b = wf(n)
    out = []
    for t in range(2):
        if n < 6:
            m, hf = n >> 1, n & 1
            a = V_AQ1 if hf else V_AQ0
            off = t * 3072 + m * 64
        else:
            u, isu = (n - 6) >> 1, (n - 6) & 1
            a = V_AG
            off = 6144 + isu * 7168 + t * 3584 + u * 32
        out.append(f"ds_read_b64_tr_b16 {ar(b + 2 * t, 2)}, v{a} offset:{off}")
    return out


def mfma(n, t, setn):
    w = ar(wf(n), 4)
    x = tok(setn, t)
    c = acc(n, t)
    if n in (4, 5):
        return f"v_mfma_f32_16x16x32_bf16 {c}, {x}, {w}, {c}"
    return f"v_mfma_f32_16x16x32_bf16 {c}, {w}, {x}, {c}"


def dma(i):
    return [f"s_add_u32 m0, s{S_RING}, {i * 1024}",
            f"s_mul_i32 s{S_SOFF + i}, s{S_P}, s{S_SSTR + i}",
            f"buffer_load_dwordx4 v{V_DMA + i}, s[{S_W + 4 * i}:{S_W + 4 * i + 3}], s{S_SOFF + i} offen{XOPT.get('wpol', '')} lds"]


ORDER = "lead"
NLEAD = 2


def p_adv():
    if ORDER == "win":
        return [[f"s_lshl_b32 s{S_TOFF}, s{S_P}, 12",
                 f"s_add_u32 s{S_IDX}, s{S_IDX}, 1",
                 f"s_and_b32 s{S_IDX}, s{S_IDX}, 7"],
                [f"s_cmp_eq_u32 s{S_IDX}, s{S_ROT}",
                 f"s_cselect_b32 s{S_T0}, 8, 0",
                 f"s_add_u32 s{S_WB}, s{S_WB}, s{S_T0}",
                 f"s_add_u32 s{S_P}, s{S_WB}, s{S_IDX}"]]
    return [[f"s_lshl_b32 s{S_TOFF}, s{S_P}, 12",
             f"s_add_u32 s{S_WB}, s{S_WB}, 1",
             f"s_sub_u32 s{S_T0}, s{S_WB}, s{S_ROT}",
             f"s_and_b32 s{S_T0}, s{S_T0}, 7"],
            [f"s_cmp_lt_u32 s{S_T0}, {NLEAD}",
             f"s_cselect_b32 s{S_T0}, 0, 24",
             f"s_add_u32 s{S_P}, s{S_WB}, s{S_T0}",
             f"s_and_b32 s{S_P}, s{S_P}, 31",
             f"s_cmp_ge_u32 s{S_WB}, 32",
             f"s_cselect_b32 s{S_P}, s{S_WB}, s{S_P}"]]


def ring_adv():
    return [f"s_cmp_eq_u32 s{S_RING}, s{S_RLIM}",
            f"s_cselect_b32 s{S_T0}, s{S_NEG}, s{S_POS}",
            f"s_add_u32 s{S_RING}, s{S_RING}, s{S_T0}"]


def tokload(setn, t):
    return [f"buffer_load_dwordx4 {tok(setn, t)}, v{V_TOK}, s[{S_XN}:{S_XN + 3}], s{S_TOFF} offen offset:{1024 * t}{XOPT.get('tpol', ' sc1')}"]


FINE = False
PSTAMP = False

def pst(k, i):
    if PSTAMP:
        k('s_memrealtime s[98:99]')
        k('s_waitcnt lgkmcnt(0)')
        k(f's_mov_b32 s{80+i}, s98')

def prologue(k, D):
    k("s_cmp_ge_u32 s2, 256")
    k("s_cbranch_scc1 L_k2_end")
    k("s_load_dwordx2 s[4:5], s[0:1], 8")
    k("s_load_dwordx2 s[6:7], s[0:1], 40")
    k("s_load_dwordx2 s[60:61], s[0:1], 48")
    k("s_load_dwordx2 s[62:63], s[0:1], 80")
    k("s_load_dwordx2 s[64:65], s[0:1], 16")
    k("s_load_dwordx2 s[56:57], s[0:1], 0")
    k("s_load_dwordx2 s[76:77], s[0:1], 72")
    k("v_lshrrev_b32 v10, 6, v0")
    k("v_and_b32 v0, 63, v0")
    k("s_and_b32 s51, s2, 7")
    k("v_readfirstlane_b32 s47, v10")
    k("s_lshr_b32 s52, s2, 3")
    k("s_and_b32 s53, s52, 3")
    k("s_lshl_b32 s48, s51, 2")
    k("s_add_u32 s48, s48, s53")
    k("s_lshr_b32 s49, s52, 2")
    k(f"v_lshlrev_b32 v{V_TOK}, 4, v0")
    k("s_waitcnt lgkmcnt(0)")
    k("s_mov_b32 s58, 4194304")
    k("s_mov_b32 s59, 0x00020000")
    k("v_and_b32 v10, 7, v0")
    k("v_lshlrev_b32 v10, 11, v10")
    k("v_lshrrev_b32 v11, 3, v0")
    k("v_lshl_add_u32 v10, v11, 4, v10")
    k("s_lshl_b32 s51, s47, 9")
    k("v_add_u32 v10, s51, v10")
    k("s_lshl_b32 s51, s49, 8")
    k("s_lshl_b32 s52, s48, 3")
    k("s_add_u32 s51, s51, s52")
    k("s_lshl_b32 s51, s51, 11")
    for i in range(4):
        k(f"buffer_load_dwordx4 v[{16+4*i}:{19+4*i}], v10, s[56:59], s51 offen offset:{128*i}")
    if XOPT.get("nonce", True):
        k("s_mov_b32 s78, 256")
        k("s_mov_b32 s79, 0x00020000")
        k("v_mov_b32 v13, 252")
        k("s_or_b32 s51, s2, s47")
        k("s_cmp_eq_u32 s51, 0")
        k("s_cbranch_scc0 L_k2_nonce0")
        k("s_memrealtime s[86:87]")
        k("s_waitcnt lgkmcnt(0)")
        k("s_or_b32 s86, s86, 1")
        k("v_mov_b32 v14, s86")
        k("s_mov_b64 exec, 1")
        k("buffer_store_dword v14, v13, s[76:79], 0 offen sc1")
        k("s_mov_b64 exec, -1")
        k.lab("L_k2_nonce0")
    if XOPT.get("ipf", True):
        k("s_getpc_b64 s[84:85]")
        k.lab("L_k2_pc")
        k("s_sub_u32 s84, s84, L_k2_pc-k2_gemm1_kernel")
        k("s_subb_u32 s85, s85, 0")
        k("s_lshr_b32 s51, s2, 3")
        k("s_lshl_b32 s51, s51, 10")
        k("v_and_b32 v12, 7, v0")
        k("v_lshlrev_b32 v12, 7, v12")
        k("v_add_u32 v12, s51, v12")
        k("v_min_u32 v12, L_code_end-k2_gemm1_kernel-4, v12")
        k("global_load_dword a247, v12, s[84:85]")
    if XOPT.get("tlb", True):
        k("s_mov_b32 s78, 256")
        k("s_mov_b32 s79, 0x00020000")
        k("v_mov_b32 v12, 0")
        k("buffer_load_dword a250, v12, s[76:79], 0 offen offset:252")
        k(f"s_add_u32 s80, s62, {XN_OFF}")
        k("s_addc_u32 s81, s63, 0")
        k("s_mov_b32 s82, 4194304")
        k("s_mov_b32 s83, 0x00020000")
        k("s_lshl_b32 s51, s49, 19")
        k("buffer_load_dword a251, v12, s[80:83], s51 offen")
    k("s_lshl_b32 s51, s49, 2")
    k("s_add_u32 s51, s51, s47")
    k("s_lshl_b32 s51, s51, 17")
    k(f"s_add_u32 s{S_XN}, s62, s51")
    k(f"s_addc_u32 s{S_XN+1}, s63, 0")
    k(f"s_mov_b32 s{S_XN+2}, 131072")
    k(f"s_mov_b32 s{S_XN+3}, 0x00020000")
    if ROT:
        k(f"s_and_b32 s51, s{S_J}, 3")
        k("s_lshl_b32 s51, s51, 1")
        k(f"s_add_u32 s51, s51, s{S_R}")
        k(f"s_and_b32 s{S_ROT}, s51, 7")
    else:
        k(f"s_mov_b32 s{S_ROT}, 0")
    k(f"s_mov_b32 s{S_IDX}, s{S_ROT}")
    k(f"s_mov_b32 s{S_WB}, 0")
    if ORDER == "win":
        k(f"s_mov_b32 s{S_P}, s{S_ROT}")
    else:
        k(f"s_sub_u32 s51, 0, s{S_ROT}")
        k("s_and_b32 s51, s51, 7")
        k(f"s_cmp_lt_u32 s51, {NLEAD}")
        k(f"s_cselect_b32 s{S_P}, 0, 24")
    k(f"s_mov_b32 s{S_C1}, 7340032")
    k(f"s_mov_b32 s{S_C2}, {32*7168}")
    k(f"s_mov_b32 s{S_NEG}, {(-STAGE*(RING-1)) & 0xffffffff}")
    k(f"s_mov_b32 s{S_POS}, {STAGE}")
    k("s_mul_i32 s54, s47, 5")
    k("s_mul_i32 s55, s48, 224")
    k("s_lshl_b32 s56, s48, 6")
    k(f"s_lshl_b32 s{S_RING}, s54, 10")
    k(f"s_add_u32 s{S_RLIM}, s{S_RING}, {STAGE*(RING-1)}")
    k(f"s_mov_b32 s{S_RD}, 0")
    for i in range(5):
        S = S_W + 4 * i
        k(f"s_add_u32 s51, s54, {i}")
        k("s_cmp_lt_u32 s51, 13")
        k(f"s_cselect_b32 s{S}, s6, s60")
        k(f"s_cselect_b32 s{S+1}, s7, s61")
        k("s_cselect_b32 s52, 6, 13")
        k("s_cmp_lt_u32 s51, 6")
        k(f"s_cselect_b32 s{S}, s4, s{S}")
        k(f"s_cselect_b32 s{S+1}, s5, s{S+1}")
        k(f"s_cselect_b32 s{S+2}, 6291456, s{S_C1}")
        k(f"s_mov_b32 s{S+3}, 0x00020000")
        k("s_cselect_b32 s52, 0, s52")
        k(f"s_cselect_b32 s{S_SSTR+i}, {32*6144}, s{S_C2}")
        k("s_sub_u32 s53, s51, s52")
        k("s_lshl_b32 s53, s53, 6")
        k("v_add_u32 v10, s53, v0")
        k("s_cmp_lt_u32 s51, 6")
        k(f"s_cbranch_scc1 L_k2_q{i}")
        k("v_mul_u32_u24 v11, 4682, v10")
        k("v_lshrrev_b32 v11, 16, v11")
        k("v_mul_u32_u24 v12, 14, v11")
        k("v_sub_u32 v12, v10, v12")
        k("v_mul_u32_u24 v11, 7168, v11")
        k("v_lshl_add_u32 v11, v12, 4, v11")
        k(f"v_add_u32 v{V_DMA+i}, s55, v11")
        k(f"s_branch L_k2_qd{i}")
        k.lab(f"L_k2_q{i}")
        k("v_mul_u32_u24 v12, 5462, v10")
        k("v_lshrrev_b32 v12, 16, v12")
        k("v_mul_u32_u24 v13, 12, v12")
        k("v_sub_u32 v13, v10, v13")
        k("v_lshrrev_b32 v14, 2, v13")
        k("v_and_b32 v13, 3, v13")
        k("v_lshrrev_b32 v15, 1, v12")
        k("v_and_b32 v15, 2, v15")
        k("v_xor_b32 v13, v13, v15")
        k("v_mul_u32_u24 v12, 6144, v12")
        k("v_lshl_add_u32 v12, v14, 11, v12")
        k("v_lshl_add_u32 v12, v13, 4, v12")
        k(f"v_add_u32 v{V_DMA+i}, s56, v12")
        k.lab(f"L_k2_qd{i}")
        a, b, c = dma(i)
        k(a); k(b); k(c)

    def adv():
        for g in p_adv():
            for x in g:
                k(x)
        for x in ring_adv():
            k(x)

    def wgroup(st):
        for i in range(5):
            a, b, c = dma(i)
            k(a); k(b); k(c)
        adv()
        k(f"s_mov_b32 s{95 - st}, s{S_TOFF}")

    adv()
    k(f"s_mov_b32 s95, s{S_TOFF}")
    EARLY = XOPT.get("early1", True)
    if EARLY:
        wgroup(1)
    layernorm(k, (5 if EARLY else 0) + 5 + (2 if XOPT.get('tlb', True) else 0) + (1 if XOPT.get('ipf', True) else 0))
    if XOPT.get('wpf', True):
        w1_prefetch(k)
    if FINE: stamp(k, 2)
    k("v_lshrrev_b32 v10, 4, v0")
    k("v_bfe_u32 v11, v0, 2, 2")
    k("v_and_b32 v12, 3, v0")
    k("v_lshl_add_u32 v13, v10, 2, v11")
    k(f"v_mul_u32_u24 v{V_AG}, 224, v13")
    k(f"v_lshl_add_u32 v{V_AG}, v12, 3, v{V_AG}")
    k(f"v_mul_u32_u24 v{V_AQ0}, 192, v13")
    k("v_and_b32 v14, 1, v12")
    k(f"v_lshl_add_u32 v{V_AQ0}, v14, 3, v{V_AQ0}")
    k("v_lshrrev_b32 v14, 1, v12")
    k(f"v_lshl_add_u32 v{V_AQ0}, v14, 4, v{V_AQ0}")
    k("v_and_b32 v14, 1, v10")
    k(f"v_lshl_add_u32 v{V_AQ1}, v14, 5, 0")
    k(f"v_xor_b32 v15, 32, v{V_AQ1}")
    k(f"v_add_u32 v15, v15, v{V_AQ0}")
    k(f"v_add_u32 v{V_AQ0}, v{V_AQ1}, v{V_AQ0}")
    k(f"v_mov_b32 v{V_AQ1}, v15")
    for i in range(ACC_V0, 256):
        k(f"v_mov_b32 v{i}, 0")
    for i in range(80):
        k(f"v_accvgpr_write_b32 a{i}, 0")
    side_jobs_setup(k)
    if XOPT["side"] == "pro":
        k("s_mov_b64 s[56:57], s[76:77]")
        side_jobs_setup2(k)
        side_jobs_body(k)
        k("s_mov_b64 s[76:77], s[56:57]")
        k("s_mov_b32 s78, 256")
        k("s_lshl_b32 s51, s49, 5")
        k("v_mov_b32 v10, s51")
    def wrest():
        for st in range(2 if EARLY else 1, RING - 1):
            wgroup(st)
        k("s_lshl_b32 s51, s48, 11")
        k("s_add_u32 s56, s64, s51")
        k("s_addc_u32 s57, s65, 0")
        k("s_mov_b32 s58, 2048")
        k("s_mov_b32 s59, 0x00020000")
        k(f"s_mov_b32 m0, {WPHI_OFF}")
        k("s_nop 0")
        k(f"buffer_load_dwordx4 v{V_TOK}, s[56:59], 0 offen lds")
        k(f"buffer_load_dwordx4 v{V_TOK}, s[56:59], 0 offen offset:1024 lds")

    if XOPT.get("pollfirst", True):
        k("s_cmp_eq_u32 s47, 0")
        k("s_cbranch_scc1 L_k2_dopoll")
        save = list(k.L)
        wrest()
        body = k.L[len(save):]
        k("s_branch L_k2_nopoll")
        k.lab("L_k2_dopoll")
        k("s_mov_b32 s51, 200000")
        k.lab("L_k2_poll")
        k("buffer_load_dword v11, v10, s[76:79], 0 offen sc1")
        k("s_waitcnt vmcnt(0)")
        if XOPT.get("nonce", True):
            k("v_cmp_ne_u32 vcc, s88, v11")
            k.nop(1)
            k("s_cmp_eq_u64 vcc, 0")
        else:
            k("v_readfirstlane_b32 s52, v11")
            k.nop(1)
            k("s_cmp_ge_u32 s52, 32")
        k("s_cbranch_scc1 L_k2_polled")
        k("s_sub_u32 s51, s51, 1")
        k("s_cmp_eq_u32 s51, 0")
        k("s_cbranch_scc1 L_k2_polled")
        k(f"s_sleep {POLLS}")
        k("s_branch L_k2_poll")
        k.lab("L_k2_polled")
        pst(k, 5)
        k("s_barrier")
        if EARLY and not PSTAMP:
            for st in range(2):
                k(f"s_mov_b32 s{S_T0+1}, s{S_TOFF}")
                k(f"s_mov_b32 s{S_TOFF}, s{95 - st}")
                for t in range(4):
                    k(tokload(st, t)[0])
                k(f"s_mov_b32 s{S_TOFF}, s{S_T0+1}")
            for ln in body:
                k.L.append(ln)
            k(f"s_mov_b32 s{S_TOFF}, s93")
            for t in range(4):
                k(tokload(2, t)[0])
            k(f"s_mov_b32 s{S_TOFF}, s92")
            side_jobs_setup2(k)
            k("s_waitcnt vmcnt(20)")
            k("s_branch L_k2_join")
        else:
            for ln in body:
                k.L.append(ln)
            k("s_branch L_k2_go")
    else:
        wrest()
        k("s_cmp_eq_u32 s47, 0")
        k("s_cbranch_scc0 L_k2_nopoll")
        k("s_mov_b32 s51, 200000")
        if BACKOFF:
            k(f"s_sleep {BACKOFF}")
        k.lab("L_k2_poll")
        k("buffer_load_dword v11, v10, s[76:79], 0 offen sc1")
        k("s_waitcnt vmcnt(0)")
        if XOPT.get("nonce", True):
            k("v_cmp_ne_u32 vcc, s88, v11")
            k.nop(1)
            k("s_cmp_eq_u64 vcc, 0")
        else:
            k("v_readfirstlane_b32 s52, v11")
            k.nop(1)
            k("s_cmp_ge_u32 s52, 32")
        k("s_cbranch_scc1 L_k2_nopoll")
        k("s_sub_u32 s51, s51, 1")
        k("s_cmp_eq_u32 s51, 0")
        k("s_cbranch_scc1 L_k2_nopoll")
        k(f"s_sleep {POLLS}")
        k("s_branch L_k2_poll")

    k.lab("L_k2_nopoll")
    if not XOPT.get("pollfirst", True):
        pst(k, 5)
    k("s_barrier")
    k.lab("L_k2_go")
    if PSTAMP:
        k(f"s_add_u32 s56, s62, {(60 << 20)}")
        k("s_addc_u32 s57, s63, 0")
        k("s_mov_b32 s58, 65536")
        k("s_mov_b32 s59, 0x00020000")
        k("s_lshl_b32 s51, s2, 8")
        k("v_mov_b32 v10, s51")
        k("s_cmp_eq_u32 s47, 0")
        k("s_cbranch_scc0 L_k2_nops")
        k("s_mov_b64 exec, 1")
        for i in range(6):
            k(f"v_mov_b32 v11, s{80+i}")
            k(f"buffer_store_dword v11, v10, s[56:59], 0 offen offset:{128 + 4*i}")
        k("s_mov_b64 exec, -1")
        k.lab("L_k2_nops")
    for st in range(RING - 2):
        k(f"s_mov_b32 s{S_TOFF}, s{95 - st}")
        for t in range(4):
            k(tokload(st, t)[0])
    k(f"s_mov_b32 s{S_TOFF}, s{95 - (RING - 2)}")
    if XOPT["side"] != "pro":
        side_jobs_setup2(k)
    k(f"s_waitcnt vmcnt({8 if XOPT.get('early1', True) and not PSTAMP else 0})")
    k.lab("L_k2_join")
    k("s_barrier")
    for n in range(D):
        for x in frag_reads(n):
            k(x)


def layernorm(k, nyounger):
    from k1 import xreduce_add
    RED = WPHI_OFF + 2048
    pst(k, 0)
    k(f"s_waitcnt vmcnt({nyounger})")
    pst(k, 1)
    k("s_mov_b32 s51, 0xffff0000")
    for i in range(16):
        k(f"v_lshlrev_b32 v{32+2*i}, 16, v{16+i}")
        k(f"v_and_b32 v{33+2*i}, s51, v{16+i}")
    k("v_pk_add_f32 v[64:65], v[32:33], v[34:35]")
    k("v_pk_add_f32 v[66:67], v[36:37], v[38:39]")
    for i in range(4, 16, 2):
        k(f"v_pk_add_f32 v[64:65], v[64:65], v[{32+2*i}:{33+2*i}]")
        k(f"v_pk_add_f32 v[66:67], v[66:67], v[{34+2*i}:{35+2*i}]")
    k("v_and_b32 v68, 7, v0")
    k("v_lshlrev_b32 v68, 4, v68")
    k(f"v_add_u32 v68, {RED}, v68")
    k("s_lshl_b32 s52, s47, 2")
    k("v_add_u32 v69, s52, v68")

    def reduce(off):
        k("v_pk_add_f32 v[64:65], v[64:65], v[66:67]")
        k("v_add_f32 v64, v64, v65")
        k.nop(2)
        k("v_add_f32_dpp v64, v64, v64 row_ror:8 row_mask:0xf bank_mask:0xf")
        xreduce_add(k, 64, 65)
        k(f"ds_write_b32 v69, v64 offset:{off}")
        k("s_waitcnt lgkmcnt(0)")
        k("s_barrier")
        k(f"ds_read_b128 v[64:67], v68 offset:{off}")
        k("s_waitcnt lgkmcnt(0)")
        k("v_pk_add_f32 v[64:65], v[64:65], v[66:67]")
        k("v_add_f32 v64, v64, v65")

    reduce(0)
    k("v_mul_f32 v64, 0xba800000, v64")
    for i in range(16):
        k(f"v_pk_add_f32 v[{32+2*i}:{33+2*i}], v[{32+2*i}:{33+2*i}], v[64:65] op_sel_hi:[1,0]")
    k("v_pk_mul_f32 v[64:65], v[32:33], v[32:33]")
    k("v_pk_mul_f32 v[66:67], v[34:35], v[34:35]")
    for i in range(2, 16, 2):
        k(f"v_pk_fma_f32 v[64:65], v[{32+2*i}:{33+2*i}], v[{32+2*i}:{33+2*i}], v[64:65]")
        k(f"v_pk_fma_f32 v[66:67], v[{34+2*i}:{35+2*i}], v[{34+2*i}:{35+2*i}], v[66:67]")
    reduce(128)
    k("v_mov_b32 v65, 0x3727c5ac")
    k("v_fmac_f32 v65, 0x3a800000, v64")
    k("v_rsq_f32 v64, v65")
    k.nop(1)
    for i in range(16):
        k(f"v_pk_mul_f32 v[{32+2*i}:{33+2*i}], v[{32+2*i}:{33+2*i}], v[64:65] op_sel_hi:[1,0]")
    for i in range(16):
        k(f"v_cvt_pk_bf16_f32 v{16+i}, v{32+2*i}, v{33+2*i}")
    pst(k, 2)
    k("v_lshrrev_b32 v70, 5, v0")
    k("v_lshlrev_b32 v70, 12, v70")
    k("v_bfe_u32 v71, v0, 3, 1")
    k("v_lshl_add_u32 v70, v71, 9, v70")
    k("v_bfe_u32 v71, v0, 4, 1")
    k("v_lshl_add_u32 v70, v71, 3, v70")
    k("v_and_b32 v71, 7, v0")
    k("v_lshl_add_u32 v70, v71, 4, v70")
    k(f"s_add_u32 s56, s62, {XN_OFF}")
    k("s_addc_u32 s57, s63, 0")
    k("s_mov_b32 s58, 4194304")
    k("s_mov_b32 s59, 0x00020000")
    k("s_lshl_b32 s51, s49, 2")
    k("s_lshr_b32 s52, s48, 3")
    k("s_add_u32 s51, s51, s52")
    k("s_lshl_b32 s51, s51, 17")
    k("s_lshl_b32 s52, s47, 15")
    k("s_add_u32 s51, s51, s52")
    k("s_bfe_u32 s52, s48, 0x20001")
    k("s_lshl_b32 s52, s52, 10")
    k("s_add_u32 s51, s51, s52")
    k("s_and_b32 s52, s48, 1")
    k("s_lshl_b32 s52, s52, 7")
    k("s_add_u32 s51, s51, s52")
    for i in range(4):
        b = 16 + 4 * i
        k(f"buffer_store_dwordx2 v[{b}:{b+1}], v70, s[56:59], s51 offen sc1")
        k(f"buffer_store_dwordx2 v[{b+2}:{b+3}], v70, s[56:59], s51 offen offset:256 sc1")
        if i < 3:
            k("s_add_u32 s51, s51, 8192")


NCLR = 0
BACKOFF = 20
POLLS = 8

def w1_prefetch(k):
    k("s_lshr_b32 s51, s2, 3")
    k("s_lshl_b32 s51, s51, 5")
    k("s_lshl_b32 s52, s47, 3")
    k("s_add_u32 s51, s51, s52")
    k("s_and_b32 s52, s2, 7")
    k("v_mul_u32_u24 v72, 10923, v0")
    k("v_lshrrev_b32 v72, 16, v72")
    k("v_mul_u32_u24 v73, 6, v72")
    k("v_sub_u32 v73, v0, v73")
    k("v_mul_u32_u24 v72, 6144, v72")
    k("v_lshrrev_b32 v74, 1, v73")
    k("v_lshl_add_u32 v72, v74, 11, v72")
    k("v_and_b32 v73, 1, v73")
    k("v_lshl_add_u32 v72, v73, 7, v72")
    k("s_mul_i32 s53, s51, 6144")
    k("s_lshl_b32 s54, s52, 8")
    k("s_add_u32 s53, s53, s54")
    k("s_mov_b32 s56, s4"); k("s_mov_b32 s57, s5"); k("s_mov_b32 s58, 6291456"); k("s_mov_b32 s59, 0x00020000")
    k("v_cmp_gt_u32 vcc, 48, v0")
    k("s_and_saveexec_b64 s[86:87], vcc")
    k("buffer_load_dword a248, v72, s[56:59], s53 offen")
    k("s_mov_b64 exec, s[86:87]")
    k("v_mul_u32_u24 v72, 9363, v0")
    k("v_lshrrev_b32 v72, 16, v72")
    k("v_mul_u32_u24 v73, 7, v72")
    k("v_sub_u32 v73, v0, v73")
    k("v_mul_u32_u24 v72, 7168, v72")
    k("v_lshl_add_u32 v72, v73, 7, v72")
    k("s_mul_i32 s53, s51, 7168")
    k("s_mul_i32 s54, s52, 896")
    k("s_add_u32 s53, s53, s54")
    k("v_cmp_gt_u32 vcc, 56, v0")
    k("s_and_saveexec_b64 s[86:87], vcc")
    k("s_mov_b32 s56, s6"); k("s_mov_b32 s57, s7"); k("s_mov_b32 s58, 7340032")
    k("buffer_load_dword a249, v72, s[56:59], s53 offen")
    k("s_mov_b32 s56, s60"); k("s_mov_b32 s57, s61")
    k("buffer_load_dword a250, v72, s[56:59], s53 offen")
    k("s_mov_b64 exec, s[86:87]")


def ln_publish(k):
    from k1 import FLG_OFF
    NFL = FLG_OFF + 49152
    if not XOPT.get("nonce", True):
        k("s_mov_b32 s78, 256")
        k("s_mov_b32 s79, 0x00020000")
        k("s_lshl_b32 s51, s49, 5")
        k("v_mov_b32 v10, s51")
        k("v_mov_b32 v11, 1")
    k("s_cmp_lt_u32 s2, 8")
    k("s_cbranch_scc0 L_k2_noclr")
    k(f"s_add_u32 s56, s62, {FLG_OFF + 32768}")
    k("s_addc_u32 s57, s63, 0")
    k("s_mov_b32 s58, 8192")
    k("s_mov_b32 s59, 0x00020000")
    k("s_lshl_b32 s51, s2, 10")
    k("v_mov_b32 v12, s51")
    k("v_mov_b32 v13, 0")
    k("buffer_store_dword v13, v12, s[56:59], 0 offen")
    k.lab("L_k2_noclr")
    pst(k, 3)
    if XOPT.get("nonce", True):
        k("s_cmp_eq_u32 s47, 0")
        k("s_cbranch_scc0 L_k2_tagdone")
        k("v_mov_b32 v10, 252")
        k("s_mov_b32 s51, 200000")
        k.lab("L_k2_tag")
        k("buffer_load_dword v11, v10, s[76:79], 0 offen sc1")
        k("s_waitcnt vmcnt(0)")
        k("v_readfirstlane_b32 s88, v11")
        k.nop(1)
        k("s_cmp_lg_u32 s88, 0")
        k("s_cbranch_scc1 L_k2_tagdone")
        k("s_sub_u32 s51, s51, 1")
        k("s_cmp_eq_u32 s51, 0")
        k("s_cbranch_scc0 L_k2_tag")
        k.lab("L_k2_tagdone")
    k("s_waitcnt vmcnt(0)")
    pst(k, 4)
    k("s_barrier")
    k("s_cmp_eq_u32 s47, 0")
    k("s_cbranch_scc0 L_k2_nopub")
    if XOPT.get("nonce", True):
        k(f"s_add_u32 s76, s62, {NFL}")
        k("s_addc_u32 s77, s63, 0")
        k("s_mov_b32 s78, 8192")
        k(f"s_lshl_b32 s51, s49, 10")
        k(f"s_lshl_b32 s52, s48, 2")
        k("s_add_u32 s52, s52, s51")
        k("v_mov_b32 v10, s52")
        k("v_mov_b32 v11, s88")
        k("s_mov_b64 exec, 1")
        k("buffer_store_dword v11, v10, s[76:79], 0 offen sc1")
        k("s_mov_b64 exec, -1")
        k("v_and_b32 v10, 31, v0")
        k("v_lshlrev_b32 v10, 2, v10")
        k("v_add_u32 v10, s51, v10")
    else:
        k("s_mov_b64 exec, 1")
        k("buffer_atomic_add v11, v10, s[76:79], 0 offen")
        k("s_mov_b64 exec, -1")
    k.lab("L_k2_nopub")


def side_jobs_setup(k):
    ln_publish(k)


def side_jobs_setup2(k):
    from k1 import XCH_OFF
    k("s_load_dwordx2 s[76:77], s[0:1], 56")
    k("s_load_dwordx2 s[80:81], s[0:1], 24")
    k("s_lshl_b32 s52, s2, 2")
    k(f"s_add_u32 s52, s52, s{S_WAVE}")
    k("v_lshlrev_b32 v10, 7, v0")
    k("v_and_b32 v11, 0x7ff, v10")
    k("s_mov_b32 s78, 7340032")
    k("s_mov_b32 s79, 0x00020000")
    k("s_mov_b32 s82, 2097152")
    k("s_mov_b32 s83, 0x00020000")
    k(f"s_mul_i32 s74, s52, {56 * 128}")
    k("s_lshl_b32 s75, s52, 11")
    k(f"s_add_u32 s84, s62, {XCH_OFF}")
    k("s_addc_u32 s85, s63, 0")
    k(f"s_mov_b32 s86, {4 << 20}")
    k("s_mov_b32 s87, 0x00020000")
    k("s_lshl_b32 s88, s52, 12")
    k("s_lshr_b32 s89, s2, 3")
    k("s_mul_i32 s52, s89, 43")
    k("s_lshr_b32 s52, s52, 8")
    k("s_mul_i32 s52, s52, 6")
    k("s_sub_u32 s89, s89, s52")
    k("s_add_u32 s89, s89, 1")
    for q in range(4):
        k(f"v_mov_b32 v{12+q}, -1")
    k("s_waitcnt lgkmcnt(0)")


def side_jobs_body(k):
    k("buffer_load_dword a252, v10, s[76:79], s74 offen")
    k("buffer_load_dword a253, v11, s[80:83], s75 offen")
    for q in range(4):
        k(f"buffer_store_dwordx4 v[12:15], v{V_TOK}, s[84:87], s88 offen offset:{1024 * q} sc1")


def side_jobs(k):
    k(f"s_cmp_eq_u32 s{S_CNT}, s89")
    k("s_cbranch_scc0 L_k2_noside")
    side_jobs_body(k)
    k.lab("L_k2_noside")


def step(k, setn, D, sched=None, tail=None):
    nside = [2, 4, 0, 0] if XOPT["side"] == "tail" else [0, 0, 0, 0]
    if tail is None and setn == 1 and XOPT.get("early1", True):
        k("s_waitcnt vmcnt(13)")
    elif tail is None or tail == 0:
        k(f"s_waitcnt vmcnt({9 * (RING - 3)})")
    elif tail == 1:
        k(f"s_waitcnt vmcnt({9 + 4 + nside[0]})")
    elif tail == 2:
        k(f"s_waitcnt vmcnt({4 + nside[0] + nside[1]})")
    else:
        k(f"s_waitcnt vmcnt({nside[0] + nside[1] + (4 if XOPT.get('tlb', True) else 0)})")
    if XOPT["bar"]:
        k("s_barrier")
    fill = {m: [] for m in range(80)}
    for n in range(20):
        nn = n + D
        if tail == 3 and nn >= 20:
            continue
        rd = frag_reads(nn % 20)
        fill[4 * n + 0].append(rd[0])
        fill[4 * n + 2].append(rd[1])
    for i in range(5 if tail is None else 0):
        a, b, c = dma(i)
        m = 4 * (2 * i + 1)
        fill[m - 1].append(b)
        fill[m + 1].append(a)
        fill[m + 3].append(c)
    if tail is None or tail == 0:
        for t in range(4):
            fill[4 * (2 + 2 * t) + 1 if tail == 0 else 4 * (11 + 2 * t) + 1].append(tokload((setn + RING - 2) % NS, t)[0])
    if tail is None:
        pa = p_adv()
        fill[73] += pa[0]; fill[75] += pa[1]
        ra = ring_adv()
        fill[77] += ra
    if tail == 0 and XOPT["side"] == "tail":
        fill[45].append("buffer_load_dword a252, v10, s[76:79], s74 offen")
        fill[53].append("buffer_load_dword a253, v11, s[80:83], s75 offen")
    if tail == 2 and XOPT.get("tlb", True):
        from k1 import A2_OFF, PHIQ_OFF, KVP_OFF
        fill[1] += ["v_mov_b32 v12, 0", "s_mov_b32 s12, s62", "s_mov_b32 s13, s63", f"s_mov_b32 s14, {64 << 20}", "s_mov_b32 s15, 0x00020000"]
        fill[5] += [f"s_lshl_b32 s16, s{S_R}, 4", f"s_lshl_b32 s17, s{S_WAVE}, 2", "s_add_u32 s16, s16, s17",
                    f"s_mul_i32 s16, s16, {144 * 1024}", f"s_add_u32 s16, s16, {A2_OFF}"]
        fill[9] += ["buffer_load_dword a250, v12, s[12:15], s16 offen"]
        fill[13] += [f"s_add_u32 s16, s16, {3 * 144 * 1024}"]
        fill[17] += ["buffer_load_dword a250, v12, s[12:15], s16 offen"]
        fill[21] += [f"s_lshl_b32 s16, s{S_J}, 18", f"s_add_u32 s16, s16, {PHIQ_OFF}", f"s_lshl_b32 s17, s{S_R}, 15", "s_add_u32 s16, s16, s17"]
        fill[25] += ["buffer_load_dword a251, v12, s[12:15], s16 offen"]
        fill[29] += [f"s_lshl_b32 s16, s{S_J}, 16", f"s_add_u32 s16, s16, {KVP_OFF}"]
        fill[33] += ["buffer_load_dword a251, v12, s[12:15], s16 offen"]
    if tail == 1 and XOPT["side"] == "tail":
        for q in range(4):
            fill[9 + 16 * q].append(f"buffer_store_dwordx4 v[12:15], v{V_TOK}, s[84:87], s88 offen offset:{1024 * q} sc1")
    fill[31].append(f"s_cmp_eq_u32 s{S_RD}, {STAGE*(RING-1)}")
    fill[31].append(f"s_cselect_b32 s{S_DELTA}, s{S_NEG}, s{S_POS}")
    fill[35].append(f"s_add_u32 s{S_RD}, s{S_RD}, s{S_DELTA}")
    fill[37].append(f"v_add_u32 v{V_AQ0}, s{S_DELTA}, v{V_AQ0}")
    fill[39].append(f"v_add_u32 v{V_AQ1}, s{S_DELTA}, v{V_AQ1}")
    g = 20 - D
    fill[4 * (19 - D) + 3].append(f"v_add_u32 v{V_AG}, s{S_DELTA}, v{V_AG}")
    for n in range(20):
        if tail == 3 and n + D > 20:
            k(f"s_waitcnt lgkmcnt({2 * (19 - n)})")
        elif XOPT["halfwait"]:
            if n % 2 == 0:
                k(f"s_waitcnt lgkmcnt({2 * (D - 2)})")
        else:
            k(f"s_waitcnt lgkmcnt({2 * (D - 1)})")
        for tt_ in range(4):
            m = 4 * n + tt_
            t = (3 - tt_) if (XOPT.get("snake", False) and n % 2 == 1) else tt_
            k(mfma(n, t, setn))
            for x in fill[m]:
                if x.startswith("ds_read") and (not XOPT["lds"] or (XOPT["ldsfrac"] == 2 and n % 2 == 1)): continue
                if x.endswith(" lds") and not XOPT["dma"]: continue
                if x.startswith("buffer_load_dwordx4 a") and not XOPT["tok"]: continue
                k(x)


def debug_epilogue(k):
    k("s_waitcnt vmcnt(0) lgkmcnt(0)")
    k.nop(16)
    k("s_lshl_b32 s51, s2, 2")
    k("s_add_u32 s51, s51, s47")
    k("s_mul_i32 s51, s51, 81920")
    k(f"s_add_u32 s8, s62, {DBG_OFF}")
    k("s_addc_u32 s9, s63, 0")
    k("s_add_u32 s8, s8, s51")
    k("s_addc_u32 s9, s9, 0")
    k("s_mov_b32 s10, 81920")
    k("s_mov_b32 s11, 0x00020000")
    k("s_mov_b32 s52, 0")
    for n in range(20):
        for t in range(4):
            k(f"buffer_store_dwordx4 {acc(n, t)}, v{V_TOK}, s[8:11], s52 offen")
            k("s_add_u32 s52, s52, 1024")


STAMP_OFF = 60 << 20
def stamp(k, i):
    k("s_memtime s[100:101]")
    k("s_memrealtime s[98:99]")
    k("s_waitcnt lgkmcnt(0)")
    k(f"s_mov_b32 s{90+2*i}, s100")
    k(f"s_mov_b32 s{91+2*i}, s98")

def stamp_store(k, n, wsreg=62, kid=0):
    k(f"s_add_u32 s8, s{wsreg}, {STAMP_OFF + kid * 65536}")
    k(f"s_addc_u32 s9, s{wsreg+1}, 0")
    k("s_mov_b32 s10, 65536")
    k("s_mov_b32 s11, 0x00020000")
    k("s_lshl_b32 s51, s2, 8")
    k("v_mov_b32 v10, s51")
    k("v_cmp_eq_u32 vcc, 0, v0")
    k(f"s_and_saveexec_b64 s[52:53], vcc")
    k("s_cmp_eq_u32 s47, 0")
    k("s_cbranch_scc0 L_nostamp")
    for i in range(n):
        k(f"v_mov_b32 v11, s{90+2*i}")
        k(f"v_mov_b32 v12, s{91+2*i}")
        k(f"buffer_store_dword v11, v10, s[8:11], 0 offen offset:{8*i}")
        k(f"buffer_store_dword v12, v10, s[8:11], 0 offen offset:{8*i+4}")
    k.lab("L_nostamp")
    k("s_mov_b64 exec, s[52:53]")

def gen_k2(D=4, debug=False, epilogue=None, stamps=False, stepfn=None):
    k = Kern("k2_gemm1_kernel")
    if stamps:
        stamp(k, 0)
    prologue(k, D)
    if stamps and FINE:
        stamp(k, 4)
        stamp_store(k, 5)
        k("s_endpgm")
    if stamps:
        stamp(k, 1)
        k("s_nop 0")
        for n in range(D):
            pass
    k(f"s_mov_b32 s{S_CNT}, 0")
    k.lab("L_k2_loop")
    if XOPT['side'] is True:
        side_jobs(k)
    for s in range(NS):
        (stepfn or step)(k, s, D)
    k(f"s_add_u32 s{S_CNT}, s{S_CNT}, 1")
    k(f"s_cmp_lt_u32 s{S_CNT}, {32 // NS - 1}")
    k("s_cbranch_scc1 L_k2_loop")
    for s in range(NS):
        step(k, s, D, tail=s)
    if stamps:
        stamp(k, 2)
    if debug:
        debug_epilogue(k)
    elif epilogue:
        epilogue(k)
    if stamps:
        k("s_waitcnt vmcnt(0)")
        stamp(k, 3)
        stamp_store(k, 4)
    k.lab("L_k2_end")
    k("s_endpgm")
    nv = 256 + 254
    return k, descriptor("k2_gemm1_kernel", nv, 256), f"; @launch kernel=k2_gemm1_kernel grid=(256,1,1) block=(256,1,1) lds={STAGE*RING + 4096}"
```

```python
from dsl import *
from k1 import XN_OFF, A2_OFF, PHIQ_OFF, KVP_OFF, ZP_OFF, XCH_OFF, FLG_OFF

A2_TT = 144 * 1024
STAGE = 16384
RING = 4
NS = 4
NB = 8
D = 6
WIN = 9
SCR = STAGE * RING
VPS = 8
NHEAD = 1
NTAIL = 3

V_L16 = 1
V_DMA = 2
V_TOK = 6
V_POLL = 8
V_OUT = 9
V_CNTA = 10
V_T = 11
V_RD = 16
V_TABW, V_TABT = 20, 21
ACC = 24
XRES = 88
OW = 24
RCV = 104
NV = 160
A_TOK = 0
A_WF = 16 * NS
NAGPR = A_WF + 4 * NB

S_A2 = 8
S_W = 12
S_WOFF = 16
S_TOFF = 17
S_RING = 18
S_RLIM = 19
S_RD = 20
S_DELTA = 21
S_IT = 22
S_WAVE = 23
S_NEG, S_POS = 24, 25
S_WOLO, S_WOHI, S_WOSZ = 26, 27, 28
S_WDSZ = 29
S_T = 30
S_RB, S_CT, S_KH = 31, 32, 33
S_CNT = 36
S_OUT = 44
S_BIG = 48
S_TNEXT = 49
S_POS1 = 40
S_M0B = 41
S_XO = 92
S_H, S_RP = 50, 51
S_X = 68
S_C32K = 72
S_TH, S_TO = 73, 74
S_IDX, S_WB, S_ROT, S_P = 76, 77, 78, 79
S_WDLO, S_WDHI = 4, 5
OPT = dict(rot=True, mfma=True, lds=True, tok=True, w=True, bar=True, owork=True, order='lead', nlead=2, vmw=12)


class VQ:
    def __init__(self):
        self.q = []

    def issue(self, tag, n=1):
        self.q += [tag] * n

    def need(self, *tags):
        last = -1
        for i, t in enumerate(self.q):
            if t in tags:
                last = i
        assert last >= 0, tags
        n = len(self.q) - 1 - last
        assert n <= 63, n
        return n


def acc(cg):
    return ACC + 16 * cg


def tok(setn, q):
    return ar(A_TOK + 16 * setn + 4 * q, 4)


def wf(n):
    return A_WF + 4 * (n % NB)


def frag_reads(n, slot):
    if n >= 16:
        slot = (slot + 1) % RING
    q, cg = (n % 16) >> 2, n & 3
    kbl, hh = q >> 1, q & 1
    b = wf(n)
    return [f"ds_read_b64_tr_b16 {ar(b + 2 * t, 2)}, v{V_RD + cg} offset:{slot * STAGE + kbl * 8192 + t * 4096 + hh * 2048}" for t in range(2)]


def dma_m0(slot):
    return f"s_add_u32 m0, s{S_M0B}, {slot * STAGE}"


def dma(i):
    return f"buffer_load_dwordx4 v{V_DMA + i}, s[{S_W}:{S_W + 3}], s{S_WOFF} offen offset:{i * 1024} lds"


def tab_reads():
    return [f"v_readlane_b32 s{S_WOFF}, v{V_TABW}, s{S_POS1}",
            f"v_readlane_b32 s{S_TOFF}, v{V_TABT}, s{S_POS1}",
            f"s_add_u32 s{S_POS1}, s{S_POS1}, 1"]


def tokload(setn, q):
    return f"buffer_load_dwordx4 {tok(setn, q)}, v{V_TOK}, s[{S_A2}:{S_A2 + 3}], s{S_TOFF} offen offset:{512 * q} sc1"


KR = OW
ZR = KR + 64
ER = ZR + 32
TMP = ER + 32


def o_setup(k):
    k(f"s_and_b32 s{S_H}, s2, 31")
    k(f"s_lshr_b32 s{S_RP}, s2, 5")
    k(f"s_and_b32 s{S_RP}, s{S_RP}, 7")
    for s, off, size in ((52, KVP_OFF, 2 << 20), (56, ZP_OFF, 64 << 10), (60, PHIQ_OFF, 8 << 20)):
        k(f"s_add_u32 s{s}, s6, {off}")
        k(f"s_addc_u32 s{s+1}, s7, 0")
        k(f"s_mov_b32 s{s+2}, {size}")
        k(f"s_mov_b32 s{s+3}, 0x00020000")
    k(f"s_lshl_b32 s64, s{S_H}, 16")
    k(f"s_lshl_b32 s65, s{S_WAVE}, 11")
    k("s_add_u32 s64, s64, s65")
    k(f"s_lshl_b32 s66, s{S_H}, 11")
    k(f"s_lshl_b32 s65, s{S_WAVE}, 6")
    k("s_add_u32 s66, s66, s65")
    k(f"s_lshl_b32 s65, s{S_RP}, 4")
    k(f"s_lshl_b32 s67, s{S_WAVE}, 2")
    k("s_add_u32 s65, s65, s67")
    k(f"s_lshl_b32 s67, s{S_H}, 18")
    k("s_lshl_b32 s75, s65, 11")
    k("s_add_u32 s67, s67, s75")
    k(f"v_lshrrev_b32 v{V_T}, 4, v0")
    k(f"v_lshlrev_b32 v{V_T}, 4, v{V_T}")


def o_loads():
    L = []
    for r in range(8):
        L.append(("kv", [f"buffer_load_dwordx4 v[{KR+8*r}:{KR+8*r+3}], v{V_L16}, s[52:55], s64 offen"]))
        L.append(("kv", [f"buffer_load_dwordx4 v[{KR+8*r+4}:{KR+8*r+7}], v{V_L16}, s[52:55], s64 offen offset:1024",
                         "s_add_u32 s64, s64, 8192"]))
    for r in range(8):
        L.append(("z", [f"buffer_load_dwordx4 v[{ZR+4*r}:{ZR+4*r+3}], v{V_T}, s[56:59], s66 offen offset:{256*r}"]))
    for t in range(4):
        L.append(("e", [f"buffer_load_dwordx4 v[{ER+8*t}:{ER+8*t+3}], v{V_L16}, s[60:63], s67 offen"]))
        L.append(("e", [f"buffer_load_dwordx4 v[{ER+8*t+4}:{ER+8*t+7}], v{V_L16}, s[60:63], s67 offen offset:1024",
                        "s_add_u32 s67, s67, 2048"]))
    return L


def o_block_a(k):
    for r in range(0, 8, 2):
        for q in range(0, 8, 2):
            a = KR + 8 * r + q
            k(f"v_pk_add_f32 v[{a}:{a+1}], v[{a}:{a+1}], v[{a+8}:{a+9}]")
        for q in range(0, 4, 2):
            a = ZR + 4 * r + q
            k(f"v_pk_add_f32 v[{a}:{a+1}], v[{a}:{a+1}], v[{a+4}:{a+5}]")
    for r in range(0, 8, 4):
        for q in range(0, 8, 2):
            a = KR + 8 * r + q
            k(f"v_pk_add_f32 v[{a}:{a+1}], v[{a}:{a+1}], v[{a+16}:{a+17}]")
        for q in range(0, 4, 2):
            a = ZR + 4 * r + q
            k(f"v_pk_add_f32 v[{a}:{a+1}], v[{a}:{a+1}], v[{a+8}:{a+9}]")
    for q in range(0, 8, 2):
        a = KR + q
        k(f"v_pk_add_f32 v[{a}:{a+1}], v[{a}:{a+1}], v[{a+32}:{a+33}]")
    for q in range(0, 4, 2):
        a = ZR + q
        k(f"v_pk_add_f32 v[{a}:{a+1}], v[{a}:{a+1}], v[{a+16}:{a+17}]")
    for q in range(4):
        k(f"v_cvt_pk_bf16_f32 v{KR+q}, v{KR+2*q}, v{KR+2*q+1}")
    k(f"s_lshl_b32 s75, s{S_WAVE}, 10")
    k(f"s_add_u32 s75, s75, {SCR}")
    k(f"v_add_u32 v{V_T+1}, s75, v{V_L16}")
    k(f"ds_write_b128 v{V_T+1}, v[{KR}:{KR+3}]")
    k(f"s_lshl_b32 s75, s{S_WAVE}, 6")
    k(f"s_add_u32 s75, s75, {SCR + 4096}")
    k(f"v_add_u32 v{V_T+2}, s75, v{V_T}")
    k(f"ds_write_b128 v{V_T+2}, v[{ZR}:{ZR+3}]")


def o_block_b0(k):
    KA, ZZ, ZA = KR, KR + 16, KR + 32
    k(f"v_add_u32 v{V_T+1}, {SCR}, v{V_L16}")
    for i in range(4):
        k(f"ds_read_b128 v[{KA+4*i}:{KA+4*i+3}], v{V_T+1} offset:{1024*i}")
    k(f"v_add_u32 v{V_T+2}, {SCR + 4096}, v{V_T}")
    for i in range(4):
        k(f"ds_read_b128 v[{ZZ+4*i}:{ZZ+4*i+3}], v{V_T+2} offset:{64*i}")
    k(f"v_and_b32 v{V_T+1}, 3, v0")
    k(f"v_cmp_eq_u32 vcc, 0, v{V_T+1}")
    k(f"v_cmp_eq_u32 s[42:43], 1, v{V_T+1}")
    k(f"v_mov_b32 v{V_T+2}, 0x3f803f80")
    k("s_waitcnt lgkmcnt(0)")
    for s in range(2):
        for ft in range(2):
            z = ZZ + 4 * (2 * s + ft)
            k(f"v_cvt_pk_bf16_f32 v{z}, v{z}, v{z+1}")
            k(f"v_cvt_pk_bf16_f32 v{z+1}, v{z+2}, v{z+3}")
    for s in range(2):
        for ft in range(2):
            z = ZZ + 4 * (2 * s + ft)
            for q in range(2):
                d = ZA + 4 * s + 2 * ft + q
                k(f"v_cndmask_b32 v{d}, 0, v{z+q}, vcc")
                k(f"v_cndmask_b32 v{d}, v{d}, v{V_T+2}, s[42:43]")
    k(f"s_mul_i32 s64, s65, {A2_TT}")
    k(f"s_lshl_b32 s75, s{S_H}, 10")
    k("s_add_u32 s64, s64, s75")
    k(f"v_mov_b32 v{V_T+2}, 0x358637bd")


def o_block_b1(k, pair):
    KA, ZA, NR, OF = KR, KR + 32, KR + 40, KR + 88
    EPS = V_T + 2
    for ti in range(2):
        t = 2 * pair + ti
        b = NR + 24 * ti
        for s in range(2):
            E = ER + 8 * t + 4 * s
            k(f"v_mfma_f32_16x16x32_bf16 v[{b+16+4*s}:{b+19+4*s}], v[{ZA+4*s}:{ZA+4*s+3}], v[{E}:{E+3}], 0")
        for s in range(2):
            E = ER + 8 * t + 4 * s
            for dt in range(2):
                A = KA + 4 * (2 * s + dt)
                o = b + 8 * s + 4 * dt
                k(f"v_mfma_f32_16x16x32_bf16 v[{o}:{o+3}], v[{A}:{A+3}], v[{E}:{E+3}], 0")
    k.nop(4)
    for ti in range(2):
        b = NR + 24 * ti
        k(f"v_rcp_f32 v{b+17}, v{b+17}")
        k(f"v_rcp_f32 v{b+21}, v{b+21}")
    k.nop(1)
    for ti in range(2):
        b = NR + 24 * ti
        k(f"v_fma_f32 v{b+18}, v{b+16}, v{b+17}, v{EPS}")
        k(f"v_fma_f32 v{b+18}, v{b+20}, v{b+21}, v{b+18}")
    for ti in range(2):
        b = NR + 24 * ti
        k(f"v_rcp_f32 v{b+18}, v{b+18}")
    k.nop(3)
    for ti in range(2):
        b = NR + 24 * ti
        k(f"v_mul_f32 v{b+16}, v{b+17}, v{b+18}")
        k(f"v_mul_f32 v{b+20}, v{b+21}, v{b+18}")
    for ti in range(2):
        b = NR + 24 * ti
        for q in range(0, 8, 2):
            k(f"v_pk_mul_f32 v[{b+q}:{b+q+1}], v[{b+q}:{b+q+1}], v[{b+16}:{b+17}] op_sel_hi:[1,0]")
        for q in range(0, 8, 2):
            k(f"v_pk_fma_f32 v[{b+q}:{b+q+1}], v[{b+8+q}:{b+9+q}], v[{b+20}:{b+21}], v[{b+q}:{b+q+1}] op_sel_hi:[1,0,1]")
    for ti in range(2):
        b = NR + 24 * ti
        o = OF + 4 * ti
        for q in range(4):
            k(f"v_cvt_pk_bf16_f32 v{o+q}, v{b+2*q}, v{b+2*q+1}")
        k(f"buffer_store_dwordx4 v[{o}:{o+3}], v{V_L16}, s[{S_A2}:{S_A2+3}], s64 offen sc1")
        k(f"s_add_u32 s64, s64, {A2_TT}")
    k.nop(2)


def helper(k):
    if OPT.get("hprio", "late") == "early":
        k("s_setprio 3")
    o_setup(k)
    for tag, ins in o_loads():
        for x in ins:
            k(x)
    k("s_waitcnt vmcnt(8)")
    if OPT.get("hprio", "late") == "late":
        k("s_setprio 3")
    o_block_a(k)
    k("s_waitcnt lgkmcnt(0)")
    k("s_barrier")
    o_block_b0(k)
    k("s_waitcnt vmcnt(0)")
    k.nop(1)
    o_block_b1(k, 0)
    o_block_b1(k, 1)
    k("s_waitcnt vmcnt(0)")
    k("s_barrier")
    publish(k)
    k("s_waitcnt vmcnt(0)")
    k("s_endpgm")


def publish(k):
    k(f"s_cmp_eq_u32 s{S_WAVE}, 0")
    k("s_cbranch_scc0 L_k3_nopub")
    k(f"s_lshl_b32 s64, s{S_RP}, 10")
    k(f"v_mov_b32 v{V_T+1}, s64")
    k(f"v_mov_b32 v{V_T+2}, 1")
    k("s_mov_b64 exec, 1")
    k(f"buffer_atomic_add v{V_T+2}, v{V_T+1}, s[{S_CNT}:{S_CNT+3}], 0 offen")
    k("s_mov_b64 exec, -1")
    k.lab("L_k3_nopub")


def prologue(k, vq):
    k("s_cmp_ge_u32 s2, 512")
    k("s_cbranch_scc1 L_k3_end")
    k(f"s_load_dwordx2 s[{S_WDLO}:{S_WDHI}], s[0:1], 56")
    k("s_load_dwordx2 s[6:7], s[0:1], 80")
    k(f"s_load_dwordx2 s[{S_WOLO}:{S_WOHI}], s[0:1], 24")
    k(f"s_load_dwordx2 s[{S_X}:{S_X+1}], s[0:1], 0")
    k(f"s_load_dwordx2 s[{S_OUT}:{S_OUT+1}], s[0:1], 64")
    k(f"v_lshrrev_b32 v{V_T}, 6, v0")
    k("v_and_b32 v0, 63, v0")
    k(f"v_lshlrev_b32 v{V_L16}, 4, v0")
    k(f"v_readfirstlane_b32 s{S_WAVE}, v{V_T}")
    k("s_and_b32 s50, s2, 7")
    k("s_lshr_b32 s51, s2, 3")
    k(f"s_and_b32 s{S_KH}, s50, 1")
    k("s_lshr_b32 s52, s50, 1")
    k("s_lshl_b32 s52, s52, 2")
    k("s_lshr_b32 s53, s51, 3")
    k(f"s_add_u32 s{S_RB}, s52, s53")
    k(f"s_and_b32 s{S_CT}, s51, 7")
    k(f"v_lshrrev_b32 v{V_T}, 4, v0")
    k(f"v_bfe_u32 v{V_T+1}, v0, 1, 3")
    k(f"v_lshlrev_b32 v{V_T+2}, 1, v{V_T}")
    k(f"v_xor_b32 v{V_T+1}, v{V_T+1}, v{V_T+2}")
    k(f"v_and_b32 v{V_T+3}, 1, v0")
    k(f"v_lshlrev_b32 v{V_T+3}, 4, v{V_T+3}")
    k(f"v_lshl_add_u32 v{V_T+3}, v{V_T}, 11, v{V_T+3}")
    k(f"v_lshl_add_u32 v{V_T+1}, v{V_T+1}, 5, v{V_T+3}")
    k(f"s_lshl_b32 s54, s{S_CT}, 8")
    k(f"s_lshl_b32 s55, s{S_WAVE}, 15")
    k("s_add_u32 s54, s54, s55")
    k(f"v_add_u32 v{V_DMA}, s54, v{V_T+1}")
    for i in range(1, 4):
        k(f"v_add_u32 v{V_DMA+i}, {7168*i}, v{V_DMA}")
    k(f"s_lshl_b32 s54, s{S_RB}, 3")
    k(f"s_lshl_b32 s55, s{S_WAVE}, 1")
    k("s_add_u32 s54, s54, s55")
    k(f"s_mul_i32 s55, s54, {A2_TT}")
    k(f"v_bfe_u32 v{V_T}, v0, 4, 1")
    k(f"v_mul_u32_u24 v{V_T}, {A2_TT}, v{V_T}")
    k(f"v_lshrrev_b32 v{V_T+1}, 5, v0")
    k(f"v_lshl_add_u32 v{V_T}, v{V_T+1}, 8, v{V_T}")
    k(f"v_and_b32 v{V_T+1}, 15, v0")
    k(f"v_lshl_add_u32 v{V_T}, v{V_T+1}, 4, v{V_T}")
    k(f"v_add_u32 v{V_TOK}, s55, v{V_T}")
    k(f"s_and_b32 s56, s{S_RB}, 3")
    k("s_lshl_b32 s56, s56, 1")
    k(f"s_add_u32 s55, s{S_CT}, s56")
    if not OPT["rot"]:
        k("s_mov_b32 s55, 0")
    k("s_and_b32 s57, s55, 7")
    k("s_cmp_ge_u32 s55, 7")
    k("s_cselect_b32 s56, 7, 0")
    k("s_sub_u32 s55, s55, s56")
    T0, T1, T2, T3 = V_T, V_T + 1, V_T + 2, V_T + 3
    if OPT["order"] == "win":
        k(f"v_mul_u32_u24 v{T0}, 9363, v0")
        k(f"v_lshrrev_b32 v{T0}, 16, v{T0}")
        k(f"v_mul_u32_u24 v{T0}, 7, v{T0}")
        k(f"v_sub_u32 v{T1}, v0, v{T0}")
        k(f"v_add_u32 v{T1}, s55, v{T1}")
        k(f"v_subrev_u32 v{T2}, 7, v{T1}")
        k(f"v_cmp_le_u32 vcc, 7, v{T1}")
        k.nop(2)
        k(f"v_cndmask_b32 v{T1}, v{T1}, v{T2}, vcc")
        k(f"v_add_u32 v{T0}, v{T0}, v{T1}")
    elif OPT["order"] == "lead4":
        k(f"s_add_u32 s56, s{S_CT}, s{S_RB}")
        k(f"v_subrev_u32 v{T1}, s56, v0")
        k(f"v_and_b32 v{T1}, 3, v{T1}")
        k(f"v_add_u32 v{T0}, 24, v0")
        k(f"v_subrev_u32 v{T2}, 28, v{T0}")
        k(f"v_cmp_le_u32 vcc, 28, v{T0}")
        k.nop(2)
        k(f"v_cndmask_b32 v{T0}, v{T0}, v{T2}, vcc")
        k(f"v_cmp_gt_u32 vcc, {OPT['nlead']}, v{T1}")
        k.nop(2)
        k(f"v_cndmask_b32 v{T0}, v{T0}, v0, vcc")
    else:
        k("s_sub_u32 s56, 7, s55")
        k(f"v_add_u32 v{T0}, s56, v0")
        k(f"v_mul_u32_u24 v{T1}, 9363, v{T0}")
        k(f"v_lshrrev_b32 v{T1}, 16, v{T1}")
        k(f"v_mul_u32_u24 v{T1}, 7, v{T1}")
        k(f"v_sub_u32 v{T1}, v{T0}, v{T1}")
        k(f"v_add_u32 v{T0}, 21, v0")
        k(f"v_subrev_u32 v{T2}, 28, v{T0}")
        k(f"v_cmp_le_u32 vcc, 28, v{T0}")
        k.nop(2)
        k(f"v_cndmask_b32 v{T0}, v{T0}, v{T2}, vcc")
        k(f"v_cmp_gt_u32 vcc, {OPT['nlead']}, v{T1}")
        k.nop(2)
        k(f"v_cndmask_b32 v{T0}, v{T0}, v0, vcc")
    k(f"v_subrev_u32 v{T1}, 28, v0")
    k(f"v_add_u32 v{T1}, s57, v{T1}")
    k(f"v_and_b32 v{T1}, 7, v{T1}")
    k(f"s_mul_i32 s{S_TH}, s{S_KH}, {56 * 1024}")
    k(f"s_add_u32 s{S_TH}, s{S_TH}, 32768")
    k(f"s_lshl_b32 s{S_TO}, s{S_KH}, 14")
    k(f"v_lshlrev_b32 v{T2}, 11, v{T0}")
    k(f"v_add_u32 v{T2}, s{S_TH}, v{T2}")
    k(f"v_lshlrev_b32 v{T3}, 11, v{T1}")
    k(f"v_add_u32 v{T3}, s{S_TO}, v{T3}")
    k("v_cmp_le_u32 vcc, 28, v0")
    k.nop(2)
    k(f"v_cndmask_b32 v{V_TABT}, v{T2}, v{T3}, vcc")
    k(f"v_cndmask_b32 v{T0}, v{T0}, v{T1}, vcc")
    k(f"v_lshlrev_b32 v{V_TABW}, 17, v{T0}")
    k("v_cmp_le_u32 vcc, 36, v0")
    k(f"v_mov_b32 v{T0}, 0x40000000")
    k.nop(1)
    k(f"v_cndmask_b32 v{V_TABT}, v{V_TABT}, v{T0}, vcc")
    k(f"v_cndmask_b32 v{V_TABW}, v{V_TABW}, v{T0}, vcc")
    k(f"s_mov_b32 s{S_POS1}, 0")
    k(f"s_lshl_b32 s{S_M0B}, s{S_WAVE}, 12")
    k("s_waitcnt lgkmcnt(0)")
    k(f"s_mul_i32 s55, s{S_KH}, {1792 * 2048}")
    k(f"s_add_u32 s{S_WDLO}, s{S_WDLO}, s55")
    k(f"s_addc_u32 s{S_WDHI}, s{S_WDHI}, 0")
    k(f"s_lshl_b32 s55, s{S_KH}, 20")
    k(f"s_add_u32 s{S_WOLO}, s{S_WOLO}, s55")
    k(f"s_addc_u32 s{S_WOHI}, s{S_WOHI}, 0")
    k(f"s_mov_b32 s{S_WDSZ}, {1792 * 2048}")
    k(f"s_mov_b32 s{S_WOSZ}, {512 * 2048}")
    k(f"s_mov_b32 s{S_W+3}, 0x00020000")
    k(f"s_add_u32 s{S_A2}, s6, {A2_OFF}")
    k(f"s_addc_u32 s{S_A2+1}, s7, 0")
    k(f"s_mov_b32 s{S_A2+2}, {128 * A2_TT}")
    k(f"s_mov_b32 s{S_A2+3}, 0x00020000")
    k(f"s_add_u32 s{S_CNT}, s6, {FLG_OFF + 32768}")
    k(f"s_addc_u32 s{S_CNT+1}, s7, 0")
    k(f"s_mov_b32 s{S_CNT+2}, 8192")
    k(f"s_mov_b32 s{S_CNT+3}, 0x00020000")
    k("s_cmp_ge_u32 s2, 256")
    k("s_cbranch_scc1 L_k3_helper")
    k(f"s_mov_b32 s{S_W}, s{S_WDLO}")
    k(f"s_mov_b32 s{S_W+1}, s{S_WDHI}")
    k(f"s_mov_b32 s{S_W+2}, s{S_WDSZ}")

    def group(st):
        for x in tab_reads():
            k(x)
        k(dma_m0(st % RING))
        k.nop(3)
        for i in range(4):
            k(dma(i))
            vq.issue(f"W{st}")
        for q in range(4):
            k(tokload(st % NS, q))
            vq.issue(f"T{st}")

    group(0)
    group(1)
    k(f"s_mov_b32 s{S_OUT+2}, 4194304")
    k(f"s_mov_b32 s{S_OUT+3}, 0x00020000")
    k(f"s_mov_b32 s{S_X+2}, 4194304")
    k(f"s_mov_b32 s{S_X+3}, 0x00020000")
    k(f"v_lshrrev_b32 v{V_T}, 3, v0")
    k(f"v_lshlrev_b32 v{V_T}, 11, v{V_T}")
    k(f"v_and_b32 v{V_T+1}, 7, v0")
    k(f"v_lshl_add_u32 v{V_T}, v{V_T+1}, 4, v{V_T}")
    k("s_lshl_b32 s55, s54, 15")
    k(f"s_lshl_b32 s56, s{S_CT}, 8")
    k("s_add_u32 s55, s55, s56")
    k(f"s_lshl_b32 s56, s{S_KH}, 7")
    k("s_add_u32 s55, s55, s56")
    k(f"v_add_u32 v{V_OUT}, s55, v{V_T}")
    for i in range(4):
        k(f"s_mov_b32 s{S_XO + i}, {i * 8 * 2048}")
    k(f"v_lshrrev_b32 v{V_T}, 5, v0")
    k(f"v_bfe_u32 v{V_T+1}, v0, 2, 2")
    k(f"v_lshl_add_u32 v{V_T}, v{V_T}, 2, v{V_T+1}")
    k(f"v_lshlrev_b32 v{V_T+1}, 1, v{V_T+1}")
    k(f"v_bfe_u32 v{V_T+2}, v0, 4, 1")
    k(f"v_xor_b32 v{V_T+1}, v{V_T+1}, v{V_T+2}")
    k(f"v_lshlrev_b32 v{V_T+1}, 5, v{V_T+1}")
    k(f"v_and_b32 v{V_T+2}, 3, v0")
    k(f"v_lshlrev_b32 v{V_T+2}, 3, v{V_T+2}")
    k(f"v_lshl_add_u32 v{V_T+2}, v{V_T}, 8, v{V_T+2}")
    for cg in range(4):
        k(f"v_xor_b32 v{V_T+3}, {cg*64}, v{V_T+1}")
        k(f"v_add_u32 v{V_RD+cg}, v{V_T+3}, v{V_T+2}")
    k(f"s_lshr_b32 s55, s{S_RB}, 1")
    k("s_lshl_b32 s55, s55, 10")
    k(f"v_mov_b32 v{V_CNTA}, s55")
    for i in range(ACC, ACC + 64):
        k(f"v_mov_b32 v{i}, 0")
    group(2)
    k(f"s_waitcnt vmcnt({vq.need('W0')})")
    k("s_barrier")
    for n in range(D):
        for x in frag_reads(n, 0):
            k(x)


def stage(k, sg, setn, vq=None, extra=(), pre=None, loads=True, last=False):
    if vq is not None:
        need = [f"T{sg}"] + ([] if last else [f"W{sg+1}"])
        k(f"s_waitcnt vmcnt({vq.need(*need)})")
    else:
        k(f"s_waitcnt vmcnt({OPT['vmw']})")
    if OPT["bar"]:
        k("s_barrier")
    if pre:
        pre(k)
    fill = {m: [] for m in range(16)}
    vm = {m: [] for m in range(16)}
    for n in range(16):
        if not (last and n + D >= 16):
            fill[n] += frag_reads(n + D, setn)
    if loads:
        tr = tab_reads()
        fill[0] += tr[:2]
        fill[1] += [tr[2], dma_m0((setn + 3) % RING)]
        for i in range(4):
            fill[3 + i].append(dma(i))
            vm[3 + i].append(f"W{sg + 3}" if vq else None)
        for q in range(4):
            fill[7 + q].append(tokload((setn + 3) % NS, q))
            vm[7 + q].append(f"T{sg + 3}" if vq else None)
    slots = [11, 12, 13, 14, 15, 15, 2, 1, 0, 0, 0, 0]
    slots = [11, 12, 13, 14, 15, 11, 12, 13]
    order = sorted(range(len(extra)), key=lambda e: (slots[e], e))
    for e, (tag, ins) in enumerate(extra):
        pass
    sl = [11, 11, 12, 12, 13, 14, 15, 15]
    for e, (tag, ins) in enumerate(extra):
        fill[sl[e]] += ins
        vm[sl[e]].append(tag)
    for n in range(16):
        if n % 2 == 0:
            nrem = 2 * (D - 2)
            if last:
                nrem = max(0, min(nrem, 2 * (16 - n - 2)))
            k(f"s_waitcnt lgkmcnt({nrem})")
        q, cg = n >> 2, n & 3
        c = acc(cg)
        if OPT["mfma"]:
            k(f"v_mfma_f32_32x32x16_bf16 v[{c}:{c+15}], {ar(wf(n), 4)}, {tok(setn, q)}, v[{c}:{c+15}]")
        for x in fill[n]:
            if x.startswith("ds_read") and not OPT["lds"]: continue
            if x.startswith("buffer_load_dwordx4 a") and not OPT["tok"]: continue
            if x.endswith(" lds") and not OPT["w"]: continue
            k(x)
        if vq is not None:
            for tg in vm[n]:
                vq.issue(tg)


def epilogue(k):
    XS = 52
    PITCH = 272
    k("s_waitcnt vmcnt(0) lgkmcnt(0)")
    k(f"s_add_u32 s{XS}, s6, {XCH_OFF}")
    k(f"s_addc_u32 s{XS+1}, s7, 0")
    k(f"s_mov_b32 s{XS+2}, {4 << 20}")
    k(f"s_mov_b32 s{XS+3}, 0x00020000")
    k("s_lshl_b32 s60, s2, 2")
    k(f"s_add_u32 s60, s60, s{S_WAVE}")
    k("s_xor_b32 s61, s60, 4")
    k("s_lshl_b32 s62, s60, 12")
    k("s_lshl_b32 s63, s61, 12")
    R = RCV
    PK = RCV + 16
    WA, RA = V_T, V_T + 1
    k(f"s_mul_i32 s64, s{S_WAVE}, {32 * PITCH}")
    k(f"v_and_b32 v{WA}, 31, v0")
    k(f"v_mul_u32_u24 v{WA}, {PITCH}, v{WA}")
    k(f"v_lshrrev_b32 v{V_T+2}, 5, v0")
    k(f"v_lshl_add_u32 v{WA}, v{V_T+2}, 4, v{WA}")
    k(f"v_add_u32 v{WA}, s64, v{WA}")
    k(f"v_lshrrev_b32 v{RA}, 3, v0")
    k(f"v_mul_u32_u24 v{RA}, {PITCH}, v{RA}")
    k(f"v_and_b32 v{V_T+2}, 7, v0")
    k(f"v_lshl_add_u32 v{RA}, v{V_T+2}, 5, v{RA}")
    k(f"v_add_u32 v{RA}, s64, v{RA}")
    k("s_barrier")
    for kh in range(2):
        if kh == 0:
            k(f"s_cmp_eq_u32 s{S_KH}, 0")
            k("s_cbranch_scc0 L_k3_kh1")
        else:
            k.lab("L_k3_kh1")
        send = 2 * (1 - kh)
        keep = 2 * kh
        for t in range(2):
            for q in range(8):
                c = acc(send + t) + 2 * q
                k(f"v_cvt_pk_bf16_f32 v{PK + 8*t + q}, v{c}, v{c+1}")
        for f in range(4):
            k(f"buffer_store_dwordx4 v[{PK+4*f}:{PK+4*f+3}], v{V_L16}, s[{XS}:{XS+3}], s62 offen offset:{1024*f} sc1")
        k("s_mov_b32 s67, 100000")
        k.lab(f"L_k3_xp{kh}")
        for f in range(4):
            k(f"buffer_load_dwordx4 v[{R+4*f}:{R+4*f+3}], v{V_L16}, s[{XS}:{XS+3}], s63 offen offset:{1024*f} sc1")
        k("s_waitcnt vmcnt(0)")
        k(f"v_max3_u32 v{V_T+2}, v{R}, v{R+1}, v{R+2}")
        k(f"v_max3_u32 v{V_T+3}, v{R+3}, v{R+4}, v{R+5}")
        for q in range(6, 14, 4):
            k(f"v_max3_u32 v{V_T+2}, v{V_T+2}, v{R+q}, v{R+q+1}")
            k(f"v_max3_u32 v{V_T+3}, v{V_T+3}, v{R+q+2}, v{R+q+3}")
        k(f"v_max3_u32 v{V_T+2}, v{V_T+2}, v{R+14}, v{R+15}")
        k(f"v_max_u32 v{V_T+2}, v{V_T+2}, v{V_T+3}")
        k(f"v_cmp_eq_u32 vcc, -1, v{V_T+2}")
        k("s_sub_u32 s67, s67, 1")
        k("s_cmp_eq_u32 s67, 0")
        k(f"s_cbranch_scc1 L_k3_xd{kh}")
        k(f"s_cbranch_vccnz L_k3_xp{kh}")
        k.lab(f"L_k3_xd{kh}")
        for t in range(2):
            for f in range(4):
                c = acc(keep + t) + 4 * f
                r = R + 8 * t + 2 * f
                k(f"v_lshlrev_b32 v{PK}, 16, v{r}")
                k(f"v_and_b32 v{PK+1}, 0xffff0000, v{r}")
                k(f"v_lshlrev_b32 v{PK+2}, 16, v{r+1}")
                k(f"v_and_b32 v{PK+3}, 0xffff0000, v{r+1}")
                k(f"v_pk_add_f32 v[{c}:{c+1}], v[{c}:{c+1}], v[{PK}:{PK+1}]")
                k(f"v_pk_add_f32 v[{c+2}:{c+3}], v[{c+2}:{c+3}], v[{PK+2}:{PK+3}]")
                k(f"ds_write_b128 v{WA}, v[{c}:{c+3}] offset:{(32*t + 8*f) * 4}")
        if kh == 0:
            k("s_branch L_k3_fin")
    k.lab("L_k3_fin")
    k("s_waitcnt lgkmcnt(0)")
    T = ACC
    for i in range(4):
        k(f"ds_read_b128 v[{T+8*i}:{T+8*i+3}], v{RA} offset:{i * 8 * PITCH}")
        k(f"ds_read_b128 v[{T+8*i+4}:{T+8*i+7}], v{RA} offset:{i * 8 * PITCH + 16}")
    for i in range(4):
        x = XRES + 4 * i
        b = T + 8 * i
        U = RCV
        for q in range(4):
            k(f"v_lshlrev_b32 v{U+2*q}, 16, v{x+q}")
            k(f"v_and_b32 v{U+2*q+1}, 0xffff0000, v{x+q}")
        k(f"s_waitcnt lgkmcnt({6 - 2*i})")
        for q in range(4):
            k(f"v_pk_add_f32 v[{b+2*q}:{b+2*q+1}], v[{b+2*q}:{b+2*q+1}], v[{U+2*q}:{U+2*q+1}]")
        for q in range(4):
            k(f"v_cvt_pk_bf16_f32 v{b+q}, v{b+2*q}, v{b+2*q+1}")
        k(f"buffer_store_dwordx4 v[{b}:{b+3}], v{V_OUT}, s[{S_OUT}:{S_OUT+3}], s{S_XO + i} offen")


def gen_k3(stamps=False):
    k = Kern("k3_gemm2_kernel")
    vq = VQ()
    if stamps:
        stamp(k, 0)
    prologue(k, vq)
    if stamps:
        stamp(k, 1)
    stage(k, 0, 0, vq=vq)
    if stamps:
        stamp(k, 2)
    k(f"s_mov_b32 s{S_IT}, 0")
    k.lab("L_k3_loop")
    if stamps:
        k("s_memtime s[98:99]")
        k("s_waitcnt lgkmcnt(0)")
        k(f"s_mov_b32 m0, s{S_IT}")
        k("s_nop 3")
        k("v_writelane_b32 v23, s98, m0")
    nloop = (36 - NHEAD - NTAIL) // NS
    for sub in range(NS):
        extra, pre = [], None
        setn = (NHEAD + sub) % NS
        if sub == 1:
            def pre(k):
                k(f"s_cmp_eq_u32 s{S_IT}, 5")
                k("s_cbranch_scc0 L_k3_nopoll")
                k(f"buffer_load_dword v{V_POLL}, v{V_CNTA}, s[{S_CNT}:{S_CNT+3}], 0 offen sc1")
                k.lab("L_k3_nopoll")
        if sub == 0:
            def pre(k):
                k(f"s_cmp_eq_u32 s{S_IT}, 6")
                k("s_cbranch_scc0 L_k3_nochk")
                k(f"s_mov_b32 s{S_W}, s{S_WOLO}")
                k(f"s_mov_b32 s{S_W+1}, s{S_WOHI}")
                k(f"s_mov_b32 s{S_W+2}, s{S_WOSZ}")
                k("s_mov_b32 s75, 400000")
                k.lab("L_k3_chk")
                k(f"v_readfirstlane_b32 s{S_T}, v{V_POLL}")
                k.nop(1)
                k(f"s_cmp_ge_u32 s{S_T}, 32")
                k("s_cbranch_scc1 L_k3_nochk")
                k("s_sub_u32 s75, s75, 1")
                k("s_cmp_eq_u32 s75, 0")
                k("s_cbranch_scc1 L_k3_nochk")
                k(f"buffer_load_dword v{V_POLL}, v{V_CNTA}, s[{S_CNT}:{S_CNT+3}], 0 offen sc1")
                k("s_waitcnt vmcnt(0)")
                k("s_branch L_k3_chk")
                k.lab("L_k3_nochk")
        stage(k, None, setn, extra=extra, pre=pre)
    k(f"s_add_u32 s{S_IT}, s{S_IT}, 1")
    k(f"s_cmp_lt_u32 s{S_IT}, {nloop}")
    k("s_cbranch_scc1 L_k3_loop")
    vq2 = VQ()
    for st in (33, 34, 35):
        vq2.issue(f"W{st}", 4); vq2.issue(f"T{st}", 4)
    for sg in range(33, 36):
        extra = []
        if sg == 33:
            for i in range(4):
                r = XRES + 4 * i
                extra.append(("x", [f"buffer_load_dwordx4 v[{r}:{r+3}], v{V_OUT}, s[{S_X}:{S_X+3}], s{S_XO + i} offen"]))
        stage(k, sg, sg % NS, vq=vq2, loads=False, last=(sg == 35), extra=extra)
    if stamps:
        stamp(k, 3)
    k.nop(12)
    epilogue(k)
    if stamps:
        k("s_waitcnt vmcnt(0)")
        stamp(k, 4)
        stamp_store(k, 5)
    k.lab("L_k3_end")
    k("s_endpgm")
    k.lab("L_k3_helper")
    helper(k)
    return k, descriptor("k3_gemm2_kernel", NV + NAGPR, NV), f"; @launch kernel=k3_gemm2_kernel grid=(512,1,1) block=(256,1,1) lds={SCR + 8192}"


STAMP_OFF = 60 << 20
def stamp(k, i):
    k(f"s_memtime s[{76+4*i}:{77+4*i}]")
    k(f"s_memrealtime s[{78+4*i}:{79+4*i}]")
    k("s_waitcnt lgkmcnt(0)")


def stamp_store(k, n=4, kid=1):
    k(f"s_add_u32 s8, s6, {STAMP_OFF + kid * 65536}")
    k("s_addc_u32 s9, s7, 0")
    k("s_mov_b32 s10, 65536")
    k("s_mov_b32 s11, 0x00020000")
    k("s_lshl_b32 s51, s2, 8")
    k("v_mov_b32 v104, s51")
    k("v_cmp_eq_u32 vcc, 0, v0")
    k("s_and_saveexec_b64 s[52:53], vcc")
    k(f"s_cmp_eq_u32 s{S_WAVE}, 0")
    k("s_cbranch_scc0 L_k3_nostamp")
    for i in range(n):
        k(f"v_mov_b32 v105, s{76+4*i}")
        k(f"v_mov_b32 v106, s{78+4*i}")
        k(f"buffer_store_dword v105, v104, s[8:11], 0 offen offset:{8*i}")
        k(f"buffer_store_dword v106, v104, s[8:11], 0 offen offset:{8*i+4}")
    k("s_mov_b64 exec, s[52:53]")
    k("v_lshlrev_b32 v105, 2, v0")
    k("v_add_u32 v105, s51, v105")
    k("v_cmp_gt_u32 vcc, 16, v0")
    k("s_and_saveexec_b64 s[52:53], vcc")
    k("buffer_store_dword v23, v105, s[8:11], 0 offen offset:128")
    k.lab("L_k3_nostamp")
    k("s_mov_b64 exec, s[52:53]")
```

```python
from dsl import *
from k1 import XN_OFF, A2_OFF, PHIQ_OFF, KVP_OFF, ZP_OFF, XCH_OFF, FLG_OFF

A2_TT = 144 * 1024
STAGE = 16384
RING = 4
NS = 4
NB = 8
D = 6
WIN = 9
SCR = STAGE * RING
VPS = 8
NHEAD = 1
NTAIL = 3

V_L16 = 1
V_DMA = 2
V_TOK = 6
V_POLL = 8
V_OUT = 9
V_CNTA = 10
V_T = 11
V_RD = 136
V_TABW, V_TABT = 20, 21
ACC = 24
XRES = 88
OW = 24
RCV = 104
NV = 160
A_TOK = 0
A_WF = 16 * NS
NAGPR = A_WF + 4 * NB

S_A2 = 8
S_W = 12
S_WOFF = 16
S_TOFF = 17
S_RING = 18
S_RLIM = 19
S_RD = 20
S_DELTA = 21
S_IT = 22
S_WAVE = 23
S_NEG, S_POS = 24, 25
S_WOLO, S_WOHI, S_WOSZ = 26, 27, 28
S_WDSZ = 29
S_T = 30
S_RB, S_CT, S_KH = 31, 32, 33
S_CNT = 36
S_OUT = 44
S_BIG = 48
S_TNEXT = 49
S_POS1 = 40
S_M0B = 41
S_XO = 92
S_H, S_RP = 50, 51
S_X = 68
S_C32K = 72
S_TH, S_TO = 73, 74
S_IDX, S_WB, S_ROT, S_P = 76, 77, 78, 79
S_WDLO, S_WDHI = 4, 5
OPT = dict(rot=True, mfma=True, lds=True, tok=True, w=True, bar=True, owork=True, order='lead', nlead=2, vmw=12)


class VQ:
    def __init__(self):
        self.q = []

    def issue(self, tag, n=1):
        self.q += [tag] * n

    def need(self, *tags):
        last = -1
        for i, t in enumerate(self.q):
            if t in tags:
                last = i
        assert last >= 0, tags
        n = len(self.q) - 1 - last
        assert n <= 63, n
        return n


def acc(t, u):
    return ACC + 4 * (8 * t + u)


def tok(setn, t, ks):
    return ar(A_TOK + 16 * setn + 4 * (2 * t + ks), 4)


def wf(n):
    return A_WF + 4 * (n % NB)


def frag_reads(n, slot):
    if n >= 16:
        slot = (slot + 1) % RING
    ks, u = (n % 16) >> 3, n & 7
    b = wf(n)
    return [f"ds_read_b64_tr_b16 {ar(b + 2 * t, 2)}, v{V_RD + u} offset:{slot * STAGE + ks * 8192 + t * 4096}" for t in range(2)]


def dma_m0(slot):
    return f"s_add_u32 m0, s{S_M0B}, {slot * STAGE}"


def dma(i):
    return f"buffer_load_dwordx4 v{V_DMA + i}, s[{S_W}:{S_W + 3}], s{S_WOFF} offen offset:{i * 1024} lds"


def tab_reads():
    return [f"v_readlane_b32 s{S_WOFF}, v{V_TABW}, s{S_POS1}",
            f"v_readlane_b32 s{S_TOFF}, v{V_TABT}, s{S_POS1}",
            f"s_add_u32 s{S_POS1}, s{S_POS1}, 1"]


def tokload(setn, q):
    t, ks = q >> 1, q & 1
    return f"buffer_load_dwordx4 {tok(setn, t, ks)}, v{V_TOK + t}, s[{S_A2}:{S_A2 + 3}], s{S_TOFF} offen offset:{1024 * ks} sc1"


KR = OW
ZR = KR + 64
ER = ZR + 32
TMP = ER + 32


def o_setup(k):
    k(f"s_and_b32 s{S_H}, s2, 31")
    k(f"s_lshr_b32 s{S_RP}, s2, 5")
    k(f"s_and_b32 s{S_RP}, s{S_RP}, 7")
    for s, off, size in ((52, KVP_OFF, 2 << 20), (56, ZP_OFF, 64 << 10), (60, PHIQ_OFF, 8 << 20)):
        k(f"s_add_u32 s{s}, s6, {off}")
        k(f"s_addc_u32 s{s+1}, s7, 0")
        k(f"s_mov_b32 s{s+2}, {size}")
        k(f"s_mov_b32 s{s+3}, 0x00020000")
    k(f"s_lshl_b32 s64, s{S_H}, 16")
    k(f"s_lshl_b32 s65, s{S_WAVE}, 11")
    k("s_add_u32 s64, s64, s65")
    k(f"s_lshl_b32 s66, s{S_H}, 11")
    k(f"s_lshl_b32 s65, s{S_WAVE}, 6")
    k("s_add_u32 s66, s66, s65")
    k(f"s_lshl_b32 s65, s{S_RP}, 4")
    k(f"s_lshl_b32 s67, s{S_WAVE}, 2")
    k("s_add_u32 s65, s65, s67")
    k(f"s_lshl_b32 s67, s{S_H}, 18")
    k("s_lshl_b32 s75, s65, 11")
    k("s_add_u32 s67, s67, s75")
    k(f"v_lshrrev_b32 v{V_T}, 4, v0")
    k(f"v_lshlrev_b32 v{V_T}, 4, v{V_T}")


def o_loads():
    L = []
    for r in range(8):
        L.append(("kv", [f"buffer_load_dwordx4 v[{KR+8*r}:{KR+8*r+3}], v{V_L16}, s[52:55], s64 offen"]))
        L.append(("kv", [f"buffer_load_dwordx4 v[{KR+8*r+4}:{KR+8*r+7}], v{V_L16}, s[52:55], s64 offen offset:1024",
                         "s_add_u32 s64, s64, 8192"]))
    for r in range(8):
        L.append(("z", [f"buffer_load_dwordx4 v[{ZR+4*r}:{ZR+4*r+3}], v{V_T}, s[56:59], s66 offen offset:{256*r}"]))
    for t in range(4):
        L.append(("e", [f"buffer_load_dwordx4 v[{ER+8*t}:{ER+8*t+3}], v{V_L16}, s[60:63], s67 offen"]))
        L.append(("e", [f"buffer_load_dwordx4 v[{ER+8*t+4}:{ER+8*t+7}], v{V_L16}, s[60:63], s67 offen offset:1024",
                        "s_add_u32 s67, s67, 2048"]))
    return L


def o_block_a(k):
    for r in range(0, 8, 2):
        for q in range(0, 8, 2):
            a = KR + 8 * r + q
            k(f"v_pk_add_f32 v[{a}:{a+1}], v[{a}:{a+1}], v[{a+8}:{a+9}]")
        for q in range(0, 4, 2):
            a = ZR + 4 * r + q
            k(f"v_pk_add_f32 v[{a}:{a+1}], v[{a}:{a+1}], v[{a+4}:{a+5}]")
    for r in range(0, 8, 4):
        for q in range(0, 8, 2):
            a = KR + 8 * r + q
            k(f"v_pk_add_f32 v[{a}:{a+1}], v[{a}:{a+1}], v[{a+16}:{a+17}]")
        for q in range(0, 4, 2):
            a = ZR + 4 * r + q
            k(f"v_pk_add_f32 v[{a}:{a+1}], v[{a}:{a+1}], v[{a+8}:{a+9}]")
    for q in range(0, 8, 2):
        a = KR + q
        k(f"v_pk_add_f32 v[{a}:{a+1}], v[{a}:{a+1}], v[{a+32}:{a+33}]")
    for q in range(0, 4, 2):
        a = ZR + q
        k(f"v_pk_add_f32 v[{a}:{a+1}], v[{a}:{a+1}], v[{a+16}:{a+17}]")
    for q in range(4):
        k(f"v_cvt_pk_bf16_f32 v{KR+q}, v{KR+2*q}, v{KR+2*q+1}")
    k(f"s_lshl_b32 s75, s{S_WAVE}, 10")
    k(f"s_add_u32 s75, s75, {SCR}")
    k(f"v_add_u32 v{V_T+1}, s75, v{V_L16}")
    k(f"ds_write_b128 v{V_T+1}, v[{KR}:{KR+3}]")
    k(f"s_lshl_b32 s75, s{S_WAVE}, 6")
    k(f"s_add_u32 s75, s75, {SCR + 4096}")
    k(f"v_add_u32 v{V_T+2}, s75, v{V_T}")
    k(f"ds_write_b128 v{V_T+2}, v[{ZR}:{ZR+3}]")


def o_block_b0(k):
    KA, ZZ, ZA = KR, KR + 16, KR + 32
    k(f"v_add_u32 v{V_T+1}, {SCR}, v{V_L16}")
    for i in range(4):
        k(f"ds_read_b128 v[{KA+4*i}:{KA+4*i+3}], v{V_T+1} offset:{1024*i}")
    k(f"v_add_u32 v{V_T+2}, {SCR + 4096}, v{V_T}")
    for i in range(4):
        k(f"ds_read_b128 v[{ZZ+4*i}:{ZZ+4*i+3}], v{V_T+2} offset:{64*i}")
    k(f"v_and_b32 v{V_T+1}, 3, v0")
    k(f"v_cmp_eq_u32 vcc, 0, v{V_T+1}")
    k(f"v_cmp_eq_u32 s[42:43], 1, v{V_T+1}")
    k(f"v_mov_b32 v{V_T+2}, 0x3f803f80")
    k("s_waitcnt lgkmcnt(0)")
    for s in range(2):
        for ft in range(2):
            z = ZZ + 4 * (2 * s + ft)
            k(f"v_cvt_pk_bf16_f32 v{z}, v{z}, v{z+1}")
            k(f"v_cvt_pk_bf16_f32 v{z+1}, v{z+2}, v{z+3}")
    for s in range(2):
        for ft in range(2):
            z = ZZ + 4 * (2 * s + ft)
            for q in range(2):
                d = ZA + 4 * s + 2 * ft + q
                k(f"v_cndmask_b32 v{d}, 0, v{z+q}, vcc")
                k(f"v_cndmask_b32 v{d}, v{d}, v{V_T+2}, s[42:43]")
    k(f"s_mul_i32 s64, s65, {A2_TT}")
    k(f"s_lshl_b32 s75, s{S_H}, 10")
    k("s_add_u32 s64, s64, s75")
    k(f"v_mov_b32 v{V_T+2}, 0x358637bd")


def o_block_b1(k, pair):
    KA, ZA, NR, OF = KR, KR + 32, KR + 40, KR + 88
    EPS = V_T + 2
    for ti in range(2):
        t = 2 * pair + ti
        b = NR + 24 * ti
        for s in range(2):
            E = ER + 8 * t + 4 * s
            k(f"v_mfma_f32_16x16x32_bf16 v[{b+16+4*s}:{b+19+4*s}], v[{ZA+4*s}:{ZA+4*s+3}], v[{E}:{E+3}], 0")
        for s in range(2):
            E = ER + 8 * t + 4 * s
            for dt in range(2):
                A = KA + 4 * (2 * s + dt)
                o = b + 8 * s + 4 * dt
                k(f"v_mfma_f32_16x16x32_bf16 v[{o}:{o+3}], v[{A}:{A+3}], v[{E}:{E+3}], 0")
    k.nop(4)
    for ti in range(2):
        b = NR + 24 * ti
        k(f"v_rcp_f32 v{b+17}, v{b+17}")
        k(f"v_rcp_f32 v{b+21}, v{b+21}")
    k.nop(1)
    for ti in range(2):
        b = NR + 24 * ti
        k(f"v_fma_f32 v{b+18}, v{b+16}, v{b+17}, v{EPS}")
        k(f"v_fma_f32 v{b+18}, v{b+20}, v{b+21}, v{b+18}")
    for ti in range(2):
        b = NR + 24 * ti
        k(f"v_rcp_f32 v{b+18}, v{b+18}")
    k.nop(3)
    for ti in range(2):
        b = NR + 24 * ti
        k(f"v_mul_f32 v{b+16}, v{b+17}, v{b+18}")
        k(f"v_mul_f32 v{b+20}, v{b+21}, v{b+18}")
    for ti in range(2):
        b = NR + 24 * ti
        for q in range(0, 8, 2):
            k(f"v_pk_mul_f32 v[{b+q}:{b+q+1}], v[{b+q}:{b+q+1}], v[{b+16}:{b+17}] op_sel_hi:[1,0]")
        for q in range(0, 8, 2):
            k(f"v_pk_fma_f32 v[{b+q}:{b+q+1}], v[{b+8+q}:{b+9+q}], v[{b+20}:{b+21}], v[{b+q}:{b+q+1}] op_sel_hi:[1,0,1]")
    for ti in range(2):
        b = NR + 24 * ti
        o = OF + 4 * ti
        for q in range(4):
            k(f"v_cvt_pk_bf16_f32 v{o+q}, v{b+2*q}, v{b+2*q+1}")
        k(f"buffer_store_dwordx4 v[{o}:{o+3}], v{V_L16}, s[{S_A2}:{S_A2+3}], s64 offen sc1")
        k(f"s_add_u32 s64, s64, {A2_TT}")
    k.nop(2)


def helper(k):
    if OPT.get("hprio", "late") == "early":
        k("s_setprio 3")
    o_setup(k)
    for tag, ins in o_loads():
        for x in ins:
            k(x)
    k("s_waitcnt vmcnt(8)")
    if OPT.get("hprio", "late") == "late":
        k("s_setprio 3")
    o_block_a(k)
    k("s_waitcnt lgkmcnt(0)")
    k("s_barrier")
    o_block_b0(k)
    k("s_waitcnt vmcnt(0)")
    k.nop(1)
    o_block_b1(k, 0)
    o_block_b1(k, 1)
    k("s_waitcnt vmcnt(0)")
    k("s_barrier")
    publish(k)
    k("s_waitcnt vmcnt(0)")
    k("s_endpgm")


def publish(k):
    k(f"s_cmp_eq_u32 s{S_WAVE}, 0")
    k("s_cbranch_scc0 L_k3_nopub")
    k(f"s_lshl_b32 s64, s{S_RP}, 10")
    k(f"v_mov_b32 v{V_T+1}, s64")
    k(f"v_mov_b32 v{V_T+2}, 1")
    k("s_mov_b64 exec, 1")
    k(f"buffer_atomic_add v{V_T+2}, v{V_T+1}, s[{S_CNT}:{S_CNT+3}], 0 offen")
    k("s_mov_b64 exec, -1")
    k.lab("L_k3_nopub")


def prologue(k, vq):
    k("s_cmp_ge_u32 s2, 512")
    k("s_cbranch_scc1 L_k3_end")
    k(f"s_load_dwordx2 s[{S_WDLO}:{S_WDHI}], s[0:1], 56")
    k("s_load_dwordx2 s[6:7], s[0:1], 80")
    k(f"s_load_dwordx2 s[{S_WOLO}:{S_WOHI}], s[0:1], 24")
    k(f"s_load_dwordx2 s[{S_X}:{S_X+1}], s[0:1], 0")
    k(f"s_load_dwordx2 s[{S_OUT}:{S_OUT+1}], s[0:1], 64")
    k(f"v_lshrrev_b32 v{V_T}, 6, v0")
    k("v_and_b32 v0, 63, v0")
    k(f"v_lshlrev_b32 v{V_L16}, 4, v0")
    k(f"v_readfirstlane_b32 s{S_WAVE}, v{V_T}")
    k("s_and_b32 s50, s2, 7")
    k("s_lshr_b32 s51, s2, 3")
    k(f"s_and_b32 s{S_KH}, s50, 1")
    k("s_lshr_b32 s52, s50, 1")
    k("s_lshl_b32 s52, s52, 2")
    k("s_lshr_b32 s53, s51, 3")
    k(f"s_add_u32 s{S_RB}, s52, s53")
    k(f"s_and_b32 s{S_CT}, s51, 7")
    k(f"v_lshrrev_b32 v{V_T}, 4, v0")
    k(f"v_bfe_u32 v{V_T+1}, v0, 1, 3")
    k(f"v_xor_b32 v{V_T+1}, v{V_T+1}, v{V_T}")
    k(f"v_xor_b32 v{V_T+2}, 4, v{V_T+1}")
    k(f"v_and_b32 v{V_T+3}, 1, v0")
    k(f"v_lshlrev_b32 v{V_T+3}, 4, v{V_T+3}")
    k(f"v_lshl_add_u32 v{V_T+3}, v{V_T}, 11, v{V_T+3}")
    k(f"v_lshl_add_u32 v{V_T+1}, v{V_T+1}, 5, v{V_T+3}")
    k(f"v_lshl_add_u32 v{V_T+2}, v{V_T+2}, 5, v{V_T+3}")
    k(f"s_lshl_b32 s54, s{S_CT}, 8")
    k(f"s_lshl_b32 s55, s{S_WAVE}, 15")
    k("s_add_u32 s54, s54, s55")
    k(f"v_add_u32 v{V_DMA}, s54, v{V_T+1}")
    k(f"v_add_u32 v{V_DMA+1}, s54, v{V_T+2}")
    k(f"v_add_u32 v{V_DMA+1}, {7168}, v{V_DMA+1}")
    k(f"v_add_u32 v{V_DMA+2}, {2*7168}, v{V_DMA}")
    k(f"v_add_u32 v{V_DMA+3}, {2*7168}, v{V_DMA+1}")
    k(f"s_lshl_b32 s54, s{S_RB}, 3")
    k(f"s_lshl_b32 s55, s{S_WAVE}, 1")
    k("s_add_u32 s54, s54, s55")
    k(f"s_mul_i32 s55, s54, {A2_TT}")
    k(f"v_add_u32 v{V_TOK}, s55, v{V_L16}")
    k(f"v_add_u32 v{V_TOK+1}, {A2_TT}, v{V_TOK}")
    k(f"s_and_b32 s56, s{S_RB}, 3")
    k("s_lshl_b32 s56, s56, 1")
    k(f"s_add_u32 s55, s{S_CT}, s56")
    if not OPT["rot"]:
        k("s_mov_b32 s55, 0")
    k("s_and_b32 s57, s55, 7")
    k("s_cmp_ge_u32 s55, 7")
    k("s_cselect_b32 s56, 7, 0")
    k("s_sub_u32 s55, s55, s56")
    T0, T1, T2, T3 = V_T, V_T + 1, V_T + 2, V_T + 3
    if OPT["order"] == "win":
        k(f"v_mul_u32_u24 v{T0}, 9363, v0")
        k(f"v_lshrrev_b32 v{T0}, 16, v{T0}")
        k(f"v_mul_u32_u24 v{T0}, 7, v{T0}")
        k(f"v_sub_u32 v{T1}, v0, v{T0}")
        k(f"v_add_u32 v{T1}, s55, v{T1}")
        k(f"v_subrev_u32 v{T2}, 7, v{T1}")
        k(f"v_cmp_le_u32 vcc, 7, v{T1}")
        k.nop(2)
        k(f"v_cndmask_b32 v{T1}, v{T1}, v{T2}, vcc")
        k(f"v_add_u32 v{T0}, v{T0}, v{T1}")
    elif OPT["order"] == "lead4":
        k(f"s_add_u32 s56, s{S_CT}, s{S_RB}")
        k(f"v_subrev_u32 v{T1}, s56, v0")
        k(f"v_and_b32 v{T1}, 3, v{T1}")
        k(f"v_add_u32 v{T0}, 24, v0")
        k(f"v_subrev_u32 v{T2}, 28, v{T0}")
        k(f"v_cmp_le_u32 vcc, 28, v{T0}")
        k.nop(2)
        k(f"v_cndmask_b32 v{T0}, v{T0}, v{T2}, vcc")
        k(f"v_cmp_gt_u32 vcc, {OPT['nlead']}, v{T1}")
        k.nop(2)
        k(f"v_cndmask_b32 v{T0}, v{T0}, v0, vcc")
    else:
        k("s_sub_u32 s56, 7, s55")
        k(f"v_add_u32 v{T0}, s56, v0")
        k(f"v_mul_u32_u24 v{T1}, 9363, v{T0}")
        k(f"v_lshrrev_b32 v{T1}, 16, v{T1}")
        k(f"v_mul_u32_u24 v{T1}, 7, v{T1}")
        k(f"v_sub_u32 v{T1}, v{T0}, v{T1}")
        k(f"v_add_u32 v{T0}, 21, v0")
        k(f"v_subrev_u32 v{T2}, 28, v{T0}")
        k(f"v_cmp_le_u32 vcc, 28, v{T0}")
        k.nop(2)
        k(f"v_cndmask_b32 v{T0}, v{T0}, v{T2}, vcc")
        k(f"v_cmp_gt_u32 vcc, {OPT['nlead']}, v{T1}")
        k.nop(2)
        k(f"v_cndmask_b32 v{T0}, v{T0}, v0, vcc")
    k(f"v_subrev_u32 v{T1}, 28, v0")
    k(f"v_add_u32 v{T1}, s57, v{T1}")
    k(f"v_and_b32 v{T1}, 7, v{T1}")
    k(f"s_mul_i32 s{S_TH}, s{S_KH}, {56 * 1024}")
    k(f"s_add_u32 s{S_TH}, s{S_TH}, 32768")
    k(f"s_lshl_b32 s{S_TO}, s{S_KH}, 14")
    k(f"v_lshlrev_b32 v{T2}, 11, v{T0}")
    k(f"v_add_u32 v{T2}, s{S_TH}, v{T2}")
    k(f"v_lshlrev_b32 v{T3}, 11, v{T1}")
    k(f"v_add_u32 v{T3}, s{S_TO}, v{T3}")
    k("v_cmp_le_u32 vcc, 28, v0")
    k.nop(2)
    k(f"v_cndmask_b32 v{V_TABT}, v{T2}, v{T3}, vcc")
    k(f"v_cndmask_b32 v{T0}, v{T0}, v{T1}, vcc")
    k(f"v_lshlrev_b32 v{V_TABW}, 17, v{T0}")
    k("v_cmp_le_u32 vcc, 36, v0")
    k(f"v_mov_b32 v{T0}, 0x40000000")
    k.nop(1)
    k(f"v_cndmask_b32 v{V_TABT}, v{V_TABT}, v{T0}, vcc")
    k(f"v_cndmask_b32 v{V_TABW}, v{V_TABW}, v{T0}, vcc")
    k(f"s_mov_b32 s{S_POS1}, 0")
    k(f"s_lshl_b32 s{S_M0B}, s{S_WAVE}, 12")
    k("s_waitcnt lgkmcnt(0)")
    k(f"s_mul_i32 s55, s{S_KH}, {1792 * 2048}")
    k(f"s_add_u32 s{S_WDLO}, s{S_WDLO}, s55")
    k(f"s_addc_u32 s{S_WDHI}, s{S_WDHI}, 0")
    k(f"s_lshl_b32 s55, s{S_KH}, 20")
    k(f"s_add_u32 s{S_WOLO}, s{S_WOLO}, s55")
    k(f"s_addc_u32 s{S_WOHI}, s{S_WOHI}, 0")
    k(f"s_mov_b32 s{S_WDSZ}, {1792 * 2048}")
    k(f"s_mov_b32 s{S_WOSZ}, {512 * 2048}")
    k(f"s_mov_b32 s{S_W+3}, 0x00020000")
    k(f"s_add_u32 s{S_A2}, s6, {A2_OFF}")
    k(f"s_addc_u32 s{S_A2+1}, s7, 0")
    k(f"s_mov_b32 s{S_A2+2}, {128 * A2_TT}")
    k(f"s_mov_b32 s{S_A2+3}, 0x00020000")
    k(f"s_add_u32 s{S_CNT}, s6, {FLG_OFF + 32768}")
    k(f"s_addc_u32 s{S_CNT+1}, s7, 0")
    k(f"s_mov_b32 s{S_CNT+2}, 8192")
    k(f"s_mov_b32 s{S_CNT+3}, 0x00020000")
    k("s_cmp_ge_u32 s2, 256")
    k("s_cbranch_scc1 L_k3_helper")
    k(f"s_mov_b32 s{S_W}, s{S_WDLO}")
    k(f"s_mov_b32 s{S_W+1}, s{S_WDHI}")
    k(f"s_mov_b32 s{S_W+2}, s{S_WDSZ}")

    def group(st):
        for x in tab_reads():
            k(x)
        k(dma_m0(st % RING))
        k.nop(3)
        for i in range(4):
            k(dma(i))
            vq.issue(f"W{st}")
        for q in range(4):
            k(tokload(st % NS, q))
            vq.issue(f"T{st}")

    group(0)
    group(1)
    k(f"s_mov_b32 s{S_OUT+2}, 4194304")
    k(f"s_mov_b32 s{S_OUT+3}, 0x00020000")
    k(f"s_mov_b32 s{S_X+2}, 4194304")
    k(f"s_mov_b32 s{S_X+3}, 0x00020000")
    k(f"v_lshrrev_b32 v{V_T}, 3, v0")
    k(f"v_lshlrev_b32 v{V_T}, 11, v{V_T}")
    k(f"v_and_b32 v{V_T+1}, 7, v0")
    k(f"v_lshl_add_u32 v{V_T}, v{V_T+1}, 4, v{V_T}")
    k("s_lshl_b32 s55, s54, 15")
    k(f"s_lshl_b32 s56, s{S_CT}, 8")
    k("s_add_u32 s55, s55, s56")
    k(f"s_lshl_b32 s56, s{S_KH}, 7")
    k("s_add_u32 s55, s55, s56")
    k(f"v_add_u32 v{V_OUT}, s55, v{V_T}")
    for i in range(4):
        k(f"s_mov_b32 s{S_XO + i}, {i * 8 * 2048}")
    k(f"v_lshrrev_b32 v{V_T}, 4, v0")
    k(f"v_bfe_u32 v{V_T+1}, v0, 2, 2")
    k(f"v_lshl_add_u32 v{V_T}, v{V_T}, 2, v{V_T+1}")
    k(f"v_and_b32 v{V_T+1}, 7, v{V_T}")
    k(f"v_lshlrev_b32 v{V_T+1}, 5, v{V_T+1}")
    k(f"v_and_b32 v{V_T+2}, 3, v0")
    k(f"v_lshlrev_b32 v{V_T+2}, 3, v{V_T+2}")
    k(f"v_lshl_add_u32 v{V_T+2}, v{V_T}, 8, v{V_T+2}")
    for u in range(8):
        k(f"v_xor_b32 v{V_T+3}, {u*32}, v{V_T+1}")
        k(f"v_add_u32 v{V_RD+u}, v{V_T+3}, v{V_T+2}")
    k(f"s_lshr_b32 s55, s{S_RB}, 1")
    k("s_lshl_b32 s55, s55, 10")
    k(f"v_mov_b32 v{V_CNTA}, s55")
    for i in range(ACC, ACC + 64):
        k(f"v_mov_b32 v{i}, 0")
    group(2)
    k(f"s_waitcnt vmcnt({vq.need('W0')})")
    k("s_barrier")
    for n in range(D):
        for x in frag_reads(n, 0):
            k(x)


def stage(k, sg, setn, vq=None, extra=(), pre=None, loads=True, last=False):
    if vq is not None:
        need = [f"T{sg}"] + ([] if last else [f"W{sg+1}"])
        k(f"s_waitcnt vmcnt({vq.need(*need)})")
    else:
        k(f"s_waitcnt vmcnt({OPT['vmw']})")
    if OPT["bar"]:
        k("s_barrier")
    if pre:
        pre(k)
    fill = {m: [] for m in range(16)}
    vm = {m: [] for m in range(16)}
    for n in range(16):
        if not (last and n + D >= 16):
            fill[n] += frag_reads(n + D, setn)
    if loads:
        tr = tab_reads()
        fill[0] += tr[:2]
        fill[1] += [tr[2], dma_m0((setn + 3) % RING)]
        for i in range(4):
            fill[3 + i].append(dma(i))
            vm[3 + i].append(f"W{sg + 3}" if vq else None)
        for q in range(4):
            fill[7 + q].append(tokload((setn + 3) % NS, q))
            vm[7 + q].append(f"T{sg + 3}" if vq else None)
    slots = [11, 12, 13, 14, 15, 15, 2, 1, 0, 0, 0, 0]
    slots = [11, 12, 13, 14, 15, 11, 12, 13]
    order = sorted(range(len(extra)), key=lambda e: (slots[e], e))
    for e, (tag, ins) in enumerate(extra):
        pass
    sl = [11, 11, 12, 12, 13, 14, 15, 15]
    for e, (tag, ins) in enumerate(extra):
        fill[sl[e]] += ins
        vm[sl[e]].append(tag)
    for n in range(16):
        if n % 2 == 0:
            nrem = 2 * (D - 2)
            if last:
                nrem = max(0, min(nrem, 2 * (16 - n - 2)))
            k(f"s_waitcnt lgkmcnt({nrem})")
        ks, u = n >> 3, n & 7
        half = [fill[n][:len(fill[n]) // 2], fill[n][len(fill[n]) // 2:]]
        for t in range(2):
            c = acc(t, u)
            if OPT["mfma"]:
                k(f"v_mfma_f32_16x16x32_bf16 v[{c}:{c+3}], {ar(wf(n), 4)}, {tok(setn, t, ks)}, v[{c}:{c+3}]")
            for x in half[t]:
                if x.startswith("ds_read") and not OPT["lds"]: continue
                if x.startswith("buffer_load_dwordx4 a") and not OPT["tok"]: continue
                if x.endswith(" lds") and not OPT["w"]: continue
                k(x)
        if vq is not None:
            for tg in vm[n]:
                vq.issue(tg)


def epilogue(k):
    XS = 52
    PITCH = 272
    k("s_waitcnt vmcnt(0) lgkmcnt(0)")
    k(f"s_add_u32 s{XS}, s6, {XCH_OFF}")
    k(f"s_addc_u32 s{XS+1}, s7, 0")
    k(f"s_mov_b32 s{XS+2}, {4 << 20}")
    k(f"s_mov_b32 s{XS+3}, 0x00020000")
    k("s_lshl_b32 s60, s2, 2")
    k(f"s_add_u32 s60, s60, s{S_WAVE}")
    k("s_xor_b32 s61, s60, 4")
    k("s_lshl_b32 s62, s60, 12")
    k("s_lshl_b32 s63, s61, 12")
    R = RCV
    PK = RCV + 16
    WA, RA = V_T, V_T + 1
    k(f"s_mul_i32 s64, s{S_WAVE}, {32 * PITCH}")
    k(f"v_and_b32 v{WA}, 15, v0")
    k(f"v_mul_u32_u24 v{WA}, {PITCH}, v{WA}")
    k(f"v_lshrrev_b32 v{V_T+2}, 4, v0")
    k(f"v_lshl_add_u32 v{WA}, v{V_T+2}, 4, v{WA}")
    k(f"v_add_u32 v{WA}, s64, v{WA}")
    k(f"v_lshrrev_b32 v{RA}, 3, v0")
    k(f"v_mul_u32_u24 v{RA}, {PITCH}, v{RA}")
    k(f"v_and_b32 v{V_T+2}, 7, v0")
    k(f"v_lshl_add_u32 v{RA}, v{V_T+2}, 5, v{RA}")
    k(f"v_add_u32 v{RA}, s64, v{RA}")
    k("s_barrier")
    for kh in range(2):
        if kh == 0:
            k(f"s_cmp_eq_u32 s{S_KH}, 0")
            k("s_cbranch_scc0 L_k3_kh1")
        else:
            k.lab("L_k3_kh1")
        send = 4 * (1 - kh)
        keep = 4 * kh
        for t in range(2):
            for q in range(8):
                c = acc(t, send) + 2 * q
                k(f"v_cvt_pk_bf16_f32 v{PK + 8*t + q}, v{c}, v{c+1}")
        for f in range(4):
            k(f"buffer_store_dwordx4 v[{PK+4*f}:{PK+4*f+3}], v{V_L16}, s[{XS}:{XS+3}], s62 offen offset:{1024*f} sc1")
        k("s_mov_b32 s67, 100000")
        k.lab(f"L_k3_xp{kh}")
        for f in range(4):
            k(f"buffer_load_dwordx4 v[{R+4*f}:{R+4*f+3}], v{V_L16}, s[{XS}:{XS+3}], s63 offen offset:{1024*f} sc1")
        k("s_waitcnt vmcnt(0)")
        k(f"v_max3_u32 v{V_T+2}, v{R}, v{R+1}, v{R+2}")
        k(f"v_max3_u32 v{V_T+3}, v{R+3}, v{R+4}, v{R+5}")
        for q in range(6, 14, 4):
            k(f"v_max3_u32 v{V_T+2}, v{V_T+2}, v{R+q}, v{R+q+1}")
            k(f"v_max3_u32 v{V_T+3}, v{V_T+3}, v{R+q+2}, v{R+q+3}")
        k(f"v_max3_u32 v{V_T+2}, v{V_T+2}, v{R+14}, v{R+15}")
        k(f"v_max_u32 v{V_T+2}, v{V_T+2}, v{V_T+3}")
        k(f"v_cmp_eq_u32 vcc, -1, v{V_T+2}")
        k("s_sub_u32 s67, s67, 1")
        k("s_cmp_eq_u32 s67, 0")
        k(f"s_cbranch_scc1 L_k3_xd{kh}")
        k(f"s_cbranch_vccnz L_k3_xp{kh}")
        k.lab(f"L_k3_xd{kh}")
        for t in range(2):
            for f in range(4):
                c = acc(t, keep + f)
                r = R + 8 * t + 2 * f
                k(f"v_lshlrev_b32 v{PK}, 16, v{r}")
                k(f"v_and_b32 v{PK+1}, 0xffff0000, v{r}")
                k(f"v_lshlrev_b32 v{PK+2}, 16, v{r+1}")
                k(f"v_and_b32 v{PK+3}, 0xffff0000, v{r+1}")
                k(f"v_pk_add_f32 v[{c}:{c+1}], v[{c}:{c+1}], v[{PK}:{PK+1}]")
                k(f"v_pk_add_f32 v[{c+2}:{c+3}], v[{c+2}:{c+3}], v[{PK+2}:{PK+3}]")
                k(f"ds_write_b128 v{WA}, v[{c}:{c+3}] offset:{16*t*PITCH + 64*f}")
        if kh == 0:
            k("s_branch L_k3_fin")
    k.lab("L_k3_fin")
    k("s_waitcnt lgkmcnt(0)")
    T = ACC
    for i in range(4):
        k(f"ds_read_b128 v[{T+8*i}:{T+8*i+3}], v{RA} offset:{i * 8 * PITCH}")
        k(f"ds_read_b128 v[{T+8*i+4}:{T+8*i+7}], v{RA} offset:{i * 8 * PITCH + 16}")
    for i in range(4):
        x = XRES + 4 * i
        b = T + 8 * i
        U = RCV
        for q in range(4):
            k(f"v_lshlrev_b32 v{U+2*q}, 16, v{x+q}")
            k(f"v_and_b32 v{U+2*q+1}, 0xffff0000, v{x+q}")
        k(f"s_waitcnt lgkmcnt({6 - 2*i})")
        for q in range(4):
            k(f"v_pk_add_f32 v[{b+2*q}:{b+2*q+1}], v[{b+2*q}:{b+2*q+1}], v[{U+2*q}:{U+2*q+1}]")
        for q in range(4):
            k(f"v_cvt_pk_bf16_f32 v{b+q}, v{b+2*q}, v{b+2*q+1}")
        k(f"buffer_store_dwordx4 v[{b}:{b+3}], v{V_OUT}, s[{S_OUT}:{S_OUT+3}], s{S_XO + i} offen")


def gen_k3(stamps=False):
    k = Kern("k3_gemm2_kernel")
    vq = VQ()
    if stamps:
        stamp(k, 0)
    prologue(k, vq)
    if stamps:
        stamp(k, 1)
    stage(k, 0, 0, vq=vq)
    if stamps:
        stamp(k, 2)
    k(f"s_mov_b32 s{S_IT}, 0")
    k.lab("L_k3_loop")
    if stamps:
        k("s_memtime s[98:99]")
        k("s_waitcnt lgkmcnt(0)")
        k(f"s_mov_b32 m0, s{S_IT}")
        k("s_nop 3")
        k("v_writelane_b32 v23, s98, m0")
    nloop = (36 - NHEAD - NTAIL) // NS
    for sub in range(NS):
        extra, pre = [], None
        setn = (NHEAD + sub) % NS
        if sub == 1:
            def pre(k):
                k(f"s_cmp_eq_u32 s{S_IT}, 5")
                k("s_cbranch_scc0 L_k3_nopoll")
                k(f"buffer_load_dword v{V_POLL}, v{V_CNTA}, s[{S_CNT}:{S_CNT+3}], 0 offen sc1")
                k.lab("L_k3_nopoll")
        if sub == 0:
            def pre(k):
                k(f"s_cmp_eq_u32 s{S_IT}, 6")
                k("s_cbranch_scc0 L_k3_nochk")
                k(f"s_mov_b32 s{S_W}, s{S_WOLO}")
                k(f"s_mov_b32 s{S_W+1}, s{S_WOHI}")
                k(f"s_mov_b32 s{S_W+2}, s{S_WOSZ}")
                k("s_mov_b32 s75, 400000")
                k.lab("L_k3_chk")
                k(f"v_readfirstlane_b32 s{S_T}, v{V_POLL}")
                k.nop(1)
                k(f"s_cmp_ge_u32 s{S_T}, 32")
                k("s_cbranch_scc1 L_k3_nochk")
                k("s_sub_u32 s75, s75, 1")
                k("s_cmp_eq_u32 s75, 0")
                k("s_cbranch_scc1 L_k3_nochk")
                k(f"buffer_load_dword v{V_POLL}, v{V_CNTA}, s[{S_CNT}:{S_CNT+3}], 0 offen sc1")
                k("s_waitcnt vmcnt(0)")
                k("s_branch L_k3_chk")
                k.lab("L_k3_nochk")
        stage(k, None, setn, extra=extra, pre=pre)
    k(f"s_add_u32 s{S_IT}, s{S_IT}, 1")
    k(f"s_cmp_lt_u32 s{S_IT}, {nloop}")
    k("s_cbranch_scc1 L_k3_loop")
    vq2 = VQ()
    for st in (33, 34, 35):
        vq2.issue(f"W{st}", 4); vq2.issue(f"T{st}", 4)
    for sg in range(33, 36):
        extra = []
        if sg == 33:
            for i in range(4):
                r = XRES + 4 * i
                extra.append(("x", [f"buffer_load_dwordx4 v[{r}:{r+3}], v{V_OUT}, s[{S_X}:{S_X+3}], s{S_XO + i} offen"]))
        stage(k, sg, sg % NS, vq=vq2, loads=False, last=(sg == 35), extra=extra)
    if stamps:
        stamp(k, 3)
    k.nop(8)
    epilogue(k)
    if stamps:
        k("s_waitcnt vmcnt(0)")
        stamp(k, 4)
        stamp_store(k, 5)
    k.lab("L_k3_end")
    k("s_endpgm")
    k.lab("L_k3_helper")
    helper(k)
    return k, descriptor("k3_gemm2_kernel", NV + NAGPR, NV), f"; @launch kernel=k3_gemm2_kernel grid=(512,1,1) block=(256,1,1) lds={SCR + 8192}"


STAMP_OFF = 60 << 20
def stamp(k, i):
    k(f"s_memtime s[{76+4*i}:{77+4*i}]")
    k(f"s_memrealtime s[{78+4*i}:{79+4*i}]")
    k("s_waitcnt lgkmcnt(0)")


def stamp_store(k, n=4, kid=1):
    k(f"s_add_u32 s8, s6, {STAMP_OFF + kid * 65536}")
    k("s_addc_u32 s9, s7, 0")
    k("s_mov_b32 s10, 65536")
    k("s_mov_b32 s11, 0x00020000")
    k("s_lshl_b32 s51, s2, 8")
    k("v_mov_b32 v104, s51")
    k("v_cmp_eq_u32 vcc, 0, v0")
    k("s_and_saveexec_b64 s[52:53], vcc")
    k(f"s_cmp_eq_u32 s{S_WAVE}, 0")
    k("s_cbranch_scc0 L_k3_nostamp")
    for i in range(n):
        k(f"v_mov_b32 v105, s{76+4*i}")
        k(f"v_mov_b32 v106, s{78+4*i}")
        k(f"buffer_store_dword v105, v104, s[8:11], 0 offen offset:{8*i}")
        k(f"buffer_store_dword v106, v104, s[8:11], 0 offen offset:{8*i+4}")
    k("s_mov_b64 exec, s[52:53]")
    k("v_lshlrev_b32 v105, 2, v0")
    k("v_add_u32 v105, s51, v105")
    k("v_cmp_gt_u32 vcc, 16, v0")
    k("s_and_saveexec_b64 s[52:53], vcc")
    k("buffer_store_dword v23, v105, s[8:11], 0 offen offset:128")
    k.lab("L_k3_nostamp")
    k("s_mov_b64 exec, s[52:53]")
```

```python
from dsl import *
from k1 import XN_OFF, A2_OFF, PHIQ_OFF, KVP_OFF, ZP_OFF, XCH_OFF
import k2
from k2 import V_TOK, WPHI_OFF, S_WAVE, S_J, S_R

A2_TT = 144 * 1024
LOG2E = 0x3fb8aa3b
POL = ''
QB = [16, 96, 176, 200]
XR = [40, 48, 56, 64]
ER = [120, 128, 136, 144]
ST = [72, 76, 80, 84]
WP0, WP1, SEL0, SEL1, ONES = 224, 228, 232, 236, 240
S_L2E = 74
S_SRD = 8
S_SRD2 = 12


def h_part(k):
    k(f"s_add_u32 s8, s62, {A2_OFF}")
    k("s_addc_u32 s9, s63, 0")
    k(f"s_mov_b32 s10, {128 * A2_TT}")
    k("s_mov_b32 s11, 0x00020000")
    k(f"s_lshl_b32 s52, s{S_R}, 4")
    k(f"s_lshl_b32 s53, s{S_WAVE}, 2")
    k("s_add_u32 s52, s52, s53")
    k(f"s_mul_i32 s53, s{S_J}, 7")
    k("s_lshr_b32 s53, s53, 1")
    k("s_add_u32 s53, s53, 32")
    k("s_lshl_b32 s53, s53, 10")
    k(f"s_mul_i32 s54, s52, {A2_TT}")
    k("s_add_u32 s54, s54, s53")

    def compute(G0, H, srcs):
        for u in range(7):
            G, U = srcs[u]
            for jj in range(4):
                k(f"v_max_f32 v{G+jj}, 0, v{G+jj}")
            k(f"v_pk_mul_f32 v[{G}:{G+1}], v[{G}:{G+1}], v[{U}:{U+1}]")
            k(f"v_pk_mul_f32 v[{G+2}:{G+3}], v[{G+2}:{G+3}], v[{U+2}:{U+3}]")
            k(f"v_cvt_pk_bf16_f32 v{H+2*u}, v{G}, v{G+1}")
            k(f"v_cvt_pk_bf16_f32 v{H+2*u+1}, v{G+2}, v{G+3}")

    def stores(H, t):
        k(f"s_bitcmp1_b32 s{S_J}, 0")
        k(f"s_cbranch_scc1 L_hodd{t}")
        k(f"buffer_store_dwordx4 v[{H}:{H+3}], v{V_TOK}, s[8:11], s54 offen{POL}")
        k(f"buffer_store_dwordx4 v[{H+4}:{H+7}], v{V_TOK}, s[8:11], s54 offen offset:1024{POL}")
        k(f"buffer_store_dwordx4 v[{H+8}:{H+11}], v{V_TOK}, s[8:11], s54 offen offset:2048{POL}")
        k(f"buffer_store_dwordx2 v[{H+12}:{H+13}], v{V_TOK}, s[8:11], s54 offen offset:3072{POL}")
        k(f"s_branch L_hdone{t}")
        k.lab(f"L_hodd{t}")
        k(f"buffer_store_dwordx2 v[{H}:{H+1}], v{V_TOK}, s[8:11], s54 offen offset:8{POL}")
        k(f"buffer_store_dwordx4 v[{H+2}:{H+5}], v{V_TOK}, s[8:11], s54 offen offset:1024{POL}")
        k(f"buffer_store_dwordx4 v[{H+6}:{H+9}], v{V_TOK}, s[8:11], s54 offen offset:2048{POL}")
        k(f"buffer_store_dwordx4 v[{H+10}:{H+13}], v{V_TOK}, s[8:11], s54 offen offset:3072{POL}")
        k.lab(f"L_hdone{t}")
        k(f"s_add_u32 s54, s54, {A2_TT}")

    for t in range(3):
        base = 16 + 80 * t
        srcs = [(base + 24 + 8 * u, base + 28 + 8 * u) for u in range(7)]
        compute(base + 24, base + 24, srcs)
        stores(base + 24, t)
    H = 40
    srcs = []
    for u in range(5):
        for q in range(8):
            k(f"v_accvgpr_read_b32 v{56+8*u+q}, a{24+8*u+q}")
        srcs.append((56 + 8 * u, 60 + 8 * u))
    for u in range(5, 7):
        for q in range(8):
            k(f"v_accvgpr_read_b32 v{136+8*(u-5)+q}, a{24+8*u+q}")
        srcs.append((136 + 8 * (u - 5), 140 + 8 * (u - 5)))
    compute(None, H, srcs)
    stores(H, 3)
    for q in range(24):
        k(f"v_accvgpr_read_b32 v{200+q}, a{q}")


def consts(k):
    k("v_lshrrev_b32 v10, 4, v0")
    k("v_bfe_u32 v11, v0, 2, 2")
    k("v_and_b32 v12, 3, v0")
    k("v_lshl_add_u32 v13, v10, 2, v11")
    k("v_lshlrev_b32 v13, 6, v13")
    k("v_lshl_add_u32 v13, v12, 3, v13")
    k(f"v_add_u32 v13, {WPHI_OFF}, v13")
    for ft, W in ((0, WP0), (1, WP1)):
        for t in range(2):
            k(f"ds_read_b64_tr_b16 v[{W+2*t}:{W+2*t+1}], v13 offset:{t*1024 + ft*32}")
    k("v_and_b32 v12, 15, v0")
    k("v_lshlrev_b32 v11, 2, v10")
    k("v_sub_u32 v12, v12, v11")
    k("v_mov_b32 v14, 0x3f80")
    k("v_mov_b32 v15, 0x3f800000")
    for rg, (dl, dh) in enumerate(((0, 1), (2, 3))):
        k(f"v_cmp_eq_u32 vcc, {dl}, v12")
        k.nop(2)
        k(f"v_cndmask_b32 v{SEL0+rg}, 0, v14, vcc")
        k(f"v_cmp_eq_u32 vcc, {dh}, v12")
        k.nop(2)
        k(f"v_cndmask_b32 v{SEL0+rg}, v{SEL0+rg}, v15, vcc")
    k(f"v_mov_b32 v{SEL0+2}, 0")
    k(f"v_mov_b32 v{SEL0+3}, 0")
    k(f"v_mov_b32 v{SEL1}, 0")
    k(f"v_mov_b32 v{SEL1+1}, 0")
    k(f"v_mov_b32 v{SEL1+2}, v{SEL0}")
    k(f"v_mov_b32 v{SEL1+3}, v{SEL0+1}")
    for q in range(4):
        k(f"v_mov_b32 v{ONES+q}, 0x3f803f80")
    k(f"s_mov_b32 s{S_L2E}, {LOG2E}")
    k(f"s_mov_b32 s{S_L2E+1}, {LOG2E}")
    k(f"s_mov_b32 s{S_L2E+2}, {LOG2E | 0x80000000}")
    k(f"s_mov_b32 s{S_L2E+3}, {LOG2E | 0x80000000}")
    k("s_waitcnt lgkmcnt(0)")


def features(k, o, proj_only=False):
    for t in range(4):
        b = QB[t] + o
        for q in range(4):
            k(f"v_cvt_pk_bf16_f32 v{b+q}, v{b+2*q}, v{b+2*q+1}")
    k.nop(1)
    for t in range(4):
        b = QB[t] + o
        X = XR[t]
        k(f"v_mfma_f32_16x16x32_bf16 v[{X}:{X+3}], v[{WP0}:{WP0+3}], v[{b}:{b+3}], 0")
        k(f"v_mfma_f32_16x16x32_bf16 v[{X+4}:{X+7}], v[{WP1}:{WP1+3}], v[{b}:{b+3}], 0")
    k.nop(2)
    if proj_only:
        k.nop(6)
        for t in range(4):
            X = XR[t]
            for q in range(4):
                k(f"v_cvt_pk_bf16_f32 v{X+q}, v{X+2*q}, v{X+2*q+1}")
        return
    for t in range(4):
        X, a, b = XR[t], ST[t], ST[t] + 1
        if t == 0:
            k.nop(2)
        k(f"v_max3_f32 v{a}, v{X}, v{X+1}, v{X+2}")
        k(f"v_max3_f32 v{b}, -v{X}, -v{X+1}, -v{X+2}")
        k(f"v_max3_f32 v{a}, v{a}, v{X+3}, v{X+3}")
        k(f"v_max3_f32 v{b}, v{b}, -v{X+3}, -v{X+3}")
        if t == 0:
            k.nop(2)
    for t in range(4):
        X, a, b = XR[t], ST[t], ST[t] + 1
        k(f"v_max3_f32 v{a}, v{a}, v{X+4}, v{X+5}")
        k(f"v_max3_f32 v{b}, v{b}, -v{X+4}, -v{X+5}")
        k(f"v_max3_f32 v{a}, v{a}, v{X+6}, v{X+7}")
        k(f"v_max3_f32 v{b}, v{b}, -v{X+6}, -v{X+7}")
    for t in range(4):
        a, b = ST[t], ST[t] + 1
        k(f"v_permlane16_swap_b32 v{a}, v{b}")
    for t in range(4):
        a, b, c = ST[t], ST[t] + 1, ST[t] + 2
        k(f"v_max_f32 v{a}, v{a}, v{b}")
        k(f"v_mov_b32 v{c}, v{a}")
    for t in range(4):
        a, c = ST[t], ST[t] + 2
        if t == 3:
            k.nop(1)
        k(f"v_permlane32_swap_b32 v{a}, v{c}")
    for t in range(4):
        a, b, c = ST[t], ST[t] + 1, ST[t] + 2
        k(f"v_max_f32 v{a}, v{a}, v{c}")
        k(f"v_mov_b32 v{c}, v{a}")
    for t in range(4):
        a, c = ST[t], ST[t] + 2
        if t == 3:
            k.nop(1)
        k(f"v_permlane16_swap_b32 v{a}, v{c}")
    for t in range(4):
        a, c = ST[t], ST[t] + 2
        k(f"v_mul_f32 v{a}, s{S_L2E+2}, v{a}")
        k(f"v_mul_f32 v{c}, s{S_L2E+2}, v{c}")
    for t in range(4):
        X, E, a, c = XR[t], ER[t], ST[t], ST[t] + 2
        for q in range(0, 8, 2):
            k(f"v_pk_fma_f32 v[{E+q}:{E+q+1}], v[{X+q}:{X+q+1}], s[{S_L2E+2}:{S_L2E+3}], v[{c}:{c+1}] op_sel_hi:[1,1,0]")
        for q in range(0, 8, 2):
            k(f"v_pk_fma_f32 v[{X+q}:{X+q+1}], v[{X+q}:{X+q+1}], s[{S_L2E}:{S_L2E+1}], v[{a}:{a+1}] op_sel_hi:[1,1,0]")
    for t in range(4):
        X, E = XR[t], ER[t]
        for q in range(8):
            k(f"v_exp_f32 v{X+q}, v{X+q}")
            k(f"v_exp_f32 v{E+q}, v{E+q}")
    for t in range(4):
        X, E = XR[t], ER[t]
        for q in range(4):
            k(f"v_cvt_pk_bf16_f32 v{X+q}, v{X+2*q}, v{X+2*q+1}")
        for q in range(4):
            k(f"v_cvt_pk_bf16_f32 v{E+q}, v{E+2*q}, v{E+2*q+1}")


def q_part(k):
    features(k, 0, proj_only=True)
    k(f"s_add_u32 s12, s62, {PHIQ_OFF}")
    k("s_addc_u32 s13, s63, 0")
    k(f"s_mov_b32 s14, {4 << 20}")
    k("s_mov_b32 s15, 0x00020000")
    k(f"s_lshl_b32 s53, s{S_J}, 17")
    k("s_lshl_b32 s55, s52, 10")
    k("s_add_u32 s53, s53, s55")
    for t in range(4):
        X = XR[t]
        k(f"buffer_store_dwordx4 v[{X}:{X+3}], v{V_TOK}, s[12:15], s53 offen offset:{1024*t}{POL}")
    k.nop(2)


def KV(s, ft, dt):
    i = s * 4 + ft * 2 + dt
    return [16, 96, 176][i // 4] + 4 * (i % 4) if i < 8 else None


def tileaddr(i):
    return QB[i // 4] + 4 * (i % 4)


def k_part(k):
    features(k, 8)
    first = True
    for p in range(2):
        t0, t1 = 2 * p, 2 * p + 1
        TT = {t0: 72, t1: 152}
        for t in (t0, t1):
            X, E, T = XR[t], ER[t], TT[t]
            for s, src in ((0, X), (1, E)):
                o = T + 12 * s
                k(f"v_mfma_f32_16x16x32_bf16 v[{o+8}:{o+11}], v[{src}:{src+3}], v[{ONES}:{ONES+3}], 0")
                k(f"v_mfma_f32_16x16x32_bf16 v[{o}:{o+3}], v[{src}:{src+3}], v[{SEL0}:{SEL0+3}], 0")
                k(f"v_mfma_f32_16x16x32_bf16 v[{o+4}:{o+7}], v[{src}:{src+3}], v[{SEL1}:{SEL1+3}], 0")
        VF = 244
        for dt in range(2):
            a0 = QB[t0] + 16 + 4 * dt
            a1 = QB[t1] + 16 + 4 * dt
            k(f"v_cvt_pk_bf16_f32 v{VF+4*dt}, v{a0}, v{a0+1}")
            k(f"v_cvt_pk_bf16_f32 v{VF+4*dt+1}, v{a0+2}, v{a0+3}")
            k(f"v_cvt_pk_bf16_f32 v{VF+4*dt+2}, v{a1}, v{a1+1}")
            k(f"v_cvt_pk_bf16_f32 v{VF+4*dt+3}, v{a1+2}, v{a1+3}")
        for t in (t0, t1):
            T = TT[t]
            for s in range(2):
                o = T + 12 * s
                for q in range(4):
                    k(f"v_rcp_f32 v{o+8+q}, v{o+8+q}")
        k.nop(1)
        PK = XR[t0]
        for ti, t in enumerate((t0, t1)):
            T = TT[t]
            for s in range(2):
                o = T + 12 * s
                for ft in range(2):
                    a = o + 4 * ft
                    k(f"v_pk_mul_f32 v[{a}:{a+1}], v[{a}:{a+1}], v[{o+8}:{o+9}]")
                    k(f"v_pk_mul_f32 v[{a+2}:{a+3}], v[{a+2}:{a+3}], v[{o+10}:{o+11}]")
        for ti, t in enumerate((t0, t1)):
            T = TT[t]
            for s in range(2):
                o = T + 12 * s
                for ft in range(2):
                    a = o + 4 * ft
                    d = PK + 8 * s + 4 * ft + 2 * ti
                    k(f"v_cvt_pk_bf16_f32 v{d}, v{a}, v{a+1}")
                    k(f"v_cvt_pk_bf16_f32 v{d+1}, v{a+2}, v{a+3}")
        k.nop(2)
        for s in range(2):
            for ft in range(2):
                A = PK + 8 * s + 4 * ft
                for dt in range(2):
                    c = tileaddr(s * 4 + ft * 2 + dt)
                    src = "0" if p == 0 else f"v[{c}:{c+3}]"
                    k(f"v_mfma_f32_16x16x32_bf16 v[{c}:{c+3}], v[{A}:{A+3}], v[{VF+4*dt}:{VF+4*dt+3}], {src}")
                c = tileaddr(8 + s * 2 + ft)
                src = "0" if p == 0 else f"v[{c}:{c+3}]"
                k(f"v_mfma_f32_16x16x32_bf16 v[{c}:{c+3}], v[{A}:{A+3}], v[{ONES}:{ONES+3}], {src}")
    k.nop(8)
    k(f"s_mul_i32 s53, s{S_WAVE}, 12288")
    k(f"v_add_u32 v10, s53, v{V_TOK}")
    for i in range(12):
        c = tileaddr(i)
        k(f"ds_write_b128 v10, v[{c}:{c+3}] offset:{i*1024}")
    k("s_waitcnt lgkmcnt(0)")
    k("s_barrier")
    k(f"s_lshr_b32 s53, s{S_WAVE}, 1")
    k("s_lshl_b32 s53, s53, 2")
    k(f"s_and_b32 s55, s{S_WAVE}, 1")
    k("s_add_u32 s53, s53, s55")
    k("s_lshl_b32 s53, s53, 10")
    k(f"v_add_u32 v10, s53, v{V_TOK}")
    k(f"s_add_u32 s53, s{S_WAVE}, 8")
    k("s_lshl_b32 s53, s53, 10")
    k(f"v_add_u32 v11, s53, v{V_TOK}")
    R = 40
    for ww in range(4):
        k(f"ds_read_b128 v[{R+12*ww}:{R+12*ww+3}], v10 offset:{ww*12288}")
        k(f"ds_read_b128 v[{R+12*ww+4}:{R+12*ww+7}], v10 offset:{ww*12288+2048}")
        k(f"ds_read_b128 v[{R+12*ww+8}:{R+12*ww+11}], v11 offset:{ww*12288}")
    k(f"s_lshl_b32 s53, s{S_J}, 3")
    k(f"s_add_u32 s53, s53, s{S_R}")
    k(f"s_add_u32 s8, s62, {KVP_OFF}")
    k("s_addc_u32 s9, s63, 0")
    k(f"s_mov_b32 s10, {1 << 20}")
    k("s_mov_b32 s11, 0x00020000")
    k(f"s_add_u32 s12, s62, {ZP_OFF}")
    k("s_addc_u32 s13, s63, 0")
    k(f"s_mov_b32 s14, {64 << 10}")
    k("s_mov_b32 s15, 0x00020000")
    k("s_lshl_b32 s55, s53, 12")
    k(f"s_lshl_b32 s56, s{S_WAVE}, 10")
    k("s_add_u32 s55, s55, s56")
    k("s_lshl_b32 s56, s53, 8")
    k(f"s_lshl_b32 s57, s{S_WAVE}, 6")
    k("s_add_u32 s56, s56, s57")
    k("v_lshrrev_b32 v12, 4, v0")
    k("v_lshlrev_b32 v12, 4, v12")
    k("s_waitcnt lgkmcnt(0)")
    for q in range(0, 12, 2):
        k(f"v_pk_add_f32 v[{R+q}:{R+q+1}], v[{R+q}:{R+q+1}], v[{R+12+q}:{R+13+q}]")
        k(f"v_pk_add_f32 v[{R+24+q}:{R+25+q}], v[{R+24+q}:{R+25+q}], v[{R+36+q}:{R+37+q}]")
    for q in range(0, 12, 2):
        k(f"v_pk_add_f32 v[{R+q}:{R+q+1}], v[{R+q}:{R+q+1}], v[{R+24+q}:{R+25+q}]")
    for q in range(4):
        k(f"v_cvt_pk_bf16_f32 v{R+q}, v{R+2*q}, v{R+2*q+1}")
    k(f"buffer_store_dwordx4 v[{R}:{R+3}], v{V_TOK}, s[8:11], s55 offen{POL}")
    k("s_mov_b32 exec_lo, 0x00010001")
    k("s_mov_b32 exec_hi, 0x00010001")
    k(f"buffer_store_dwordx4 v[{R+8}:{R+11}], v12, s[12:15], s56 offen")
    k("s_mov_b64 exec, -1")


OPT = dict(pf=True, sent=True)


def prefetch_w2(k):
    if not OPT["pf"]:
        k.nop(8)
        return
    k("s_load_dwordx2 s[12:13], s[0:1], 56")
    k("s_load_dwordx2 s[16:17], s[0:1], 24")
    k("s_lshl_b32 s52, s2, 2")
    k(f"s_add_u32 s52, s52, s{S_WAVE}")
    k("v_lshlrev_b32 v10, 7, v0")
    k("v_and_b32 v12, 0x7ff, v10")
    k("s_mov_b32 s14, 7340032")
    k("s_mov_b32 s15, 0x00020000")
    k("s_mov_b32 s18, 2097152")
    k("s_mov_b32 s19, 0x00020000")
    k(f"s_mul_i32 s53, s52, {56 * 128}")
    k("s_lshl_b32 s54, s52, 11")
    k("s_waitcnt lgkmcnt(0)")
    k("buffer_load_dword v11, v10, s[12:15], s53 offen")
    k("buffer_load_dword v13, v12, s[16:19], s54 offen")


def sentinel_stores(k):
    if not OPT["sent"]:
        return
    k(f"s_add_u32 s20, s62, {XCH_OFF}")
    k("s_addc_u32 s21, s63, 0")
    k(f"s_mov_b32 s22, {8 << 20}")
    k("s_mov_b32 s23, 0x00020000")
    k("s_lshl_b32 s55, s2, 2")
    k(f"s_add_u32 s55, s55, s{S_WAVE}")
    k("s_lshl_b32 s55, s55, 13")
    k("s_add_u32 s56, s55, 4096")
    for q in range(4):
        k(f"v_mov_b32 v{252+q}, -1")
    for h in range(2):
        for q in range(4):
            k(f"buffer_store_dwordx4 v[252:255], v{V_TOK}, s[20:23], s{55 + h} offen offset:{1024 * q}")


def epilogue(k):
    k("s_waitcnt lgkmcnt(0)")
    k("s_barrier")
    k.nop(8)
    h_part(k)
    consts(k)
    q_part(k)
    k_part(k)
```

```python
from dsl import *
from k1 import XN_OFF, A2_OFF, PHIQ_OFF, KVP_OFF, ZP_OFF, XCH_OFF, FLG_OFF

A2_TT = 144 * 1024
STAGE = 16384
RING = 4
NS = 4
NB = 8
D = 6
WIN = 9
SCR = STAGE * RING
VPS = 8
NHEAD = 1
NTAIL = 3

V_L16 = 1
V_DMA = 2
V_TOK = 6
V_POLL = 8
V_OUT = 9
V_CNTA = 10
V_T = 11
V_RD = 136
V_TABW, V_TABT = 20, 21
ACC = 24
XRES = 88
OW = 24
RCV = 104
NV = 160
A_TOK = 0
A_WF = 16 * NS
NAGPR = A_WF + 4 * NB

S_A2 = 8
S_W = 12
S_WOFF = 16
S_TOFF = 17
S_RING = 18
S_RLIM = 19
S_RD = 20
S_DELTA = 21
S_IT = 22
S_WAVE = 23
S_NEG, S_POS = 24, 25
S_WOLO, S_WOHI, S_WOSZ = 26, 27, 28
S_WDSZ = 29
S_T = 30
S_RB, S_CT, S_KH = 31, 32, 33
S_CNT = 36
S_OUT = 44
S_BIG = 48
S_TNEXT = 49
S_POS1 = 40
S_M0B = 41
S_XO = 92
S_H, S_RP = 50, 51
S_X = 68
S_C32K = 72
S_TH, S_TO = 73, 74
S_IDX, S_WB, S_ROT, S_P = 76, 77, 78, 79
S_WDLO, S_WDHI = 4, 5
OPT = dict(rot=True, mfma=True, lds=True, tok=True, w=True, bar=True, owork=True, order='lead', nlead=2, vmw=12)


class VQ:
    def __init__(self):
        self.q = []

    def issue(self, tag, n=1):
        self.q += [tag] * n

    def need(self, *tags):
        last = -1
        for i, t in enumerate(self.q):
            if t in tags:
                last = i
        assert last >= 0, tags
        n = len(self.q) - 1 - last
        assert n <= 63, n
        return n


def acc(t, u):
    return ACC + 4 * (8 * t + u)


def tok(setn, t, ks):
    return ar(A_TOK + 16 * setn + 4 * (2 * t + ks), 4)


def wf(n):
    return A_WF + 4 * (n % NB)


def frag_reads(n, slot):
    if n >= 16:
        slot = (slot + 1) % RING
    ks, u = (n % 16) >> 3, n & 7
    b = wf(n)
    return [f"ds_read_b64_tr_b16 {ar(b + 2 * t, 2)}, v{V_RD + u} offset:{slot * STAGE + ks * 8192 + t * 4096}" for t in range(2)]


def dma_m0(slot):
    return f"s_add_u32 m0, s{S_M0B}, {slot * STAGE}"


def dma(i):
    return f"buffer_load_dwordx4 v{V_DMA + i}, s[{S_W}:{S_W + 3}], s{S_WOFF} offen offset:{i * 1024}{OPT.get('wpol', '')} lds"


def tab_reads():
    return [f"v_readlane_b32 s{S_WOFF}, v{V_TABW}, s{S_POS1}",
            f"v_readlane_b32 s{S_TOFF}, v{V_TABT}, s{S_POS1}",
            f"s_add_u32 s{S_POS1}, s{S_POS1}, 1"]


def tokload(setn, q):
    t, ks = q >> 1, q & 1
    return f"buffer_load_dwordx4 {tok(setn, t, ks)}, v{V_TOK + t}, s[{S_A2}:{S_A2 + 3}], s{S_TOFF} offen offset:{1024 * ks} sc1"


KR = OW
ZR = 56
PQ = 60
XR_ = [76, 84, 92, 100]
E2_ = [108, 116, 124, 132]
ST_ = [140, 144, 148, 152]
EP, EM = 60, 40
TMP = 156


def EOP(t, s):
    return (EP if s == 0 else EM) + 4 * t


def o_setup(k):
    k(f"s_and_b32 s{S_H}, s2, 31")
    k(f"s_lshr_b32 s{S_RP}, s2, 5")
    k(f"s_and_b32 s{S_RP}, s{S_RP}, 7")
    for s, off, size in ((52, KVP_OFF, 1 << 20), (56, ZP_OFF, 64 << 10), (60, PHIQ_OFF, 4 << 20)):
        k(f"s_add_u32 s{s}, s6, {off}")
        k(f"s_addc_u32 s{s+1}, s7, 0")
        k(f"s_mov_b32 s{s+2}, {size}")
        k(f"s_mov_b32 s{s+3}, 0x00020000")
    k(f"s_lshl_b32 s64, s{S_H}, 15")
    k(f"s_lshl_b32 s65, s{S_WAVE}, 10")
    k("s_add_u32 s64, s64, s65")
    k(f"s_lshl_b32 s66, s{S_H}, 11")
    k(f"s_lshl_b32 s65, s{S_WAVE}, 6")
    k("s_add_u32 s66, s66, s65")
    k(f"s_lshl_b32 s65, s{S_RP}, 4")
    k(f"s_lshl_b32 s67, s{S_WAVE}, 2")
    k("s_add_u32 s65, s65, s67")
    k(f"s_lshl_b32 s67, s{S_H}, 17")
    k("s_lshl_b32 s75, s65, 10")
    k("s_add_u32 s67, s67, s75")
    k(f"v_lshrrev_b32 v{V_T}, 4, v0")
    k(f"v_lshlrev_b32 v{V_T}, 4, v{V_T}")
    k(f"v_and_b32 v{V_T+1}, 7, v0")
    k(f"v_lshl_add_u32 v{V_T+1}, v{V_T+1}, 8, v{V_T}")


def o_loads():
    L = []
    for r in range(8):
        L.append(("kv", [f"buffer_load_dwordx4 v[{KR+4*r}:{KR+4*r+3}], v{V_L16}, s[52:55], s64 offen"] + (["s_add_u32 s64, s64, 4096"] if r < 7 else [])))
    L.append(("z", [f"buffer_load_dwordx4 v[{ZR}:{ZR+3}], v{V_T+1}, s[56:59], s66 offen"]))
    for t in range(4):
        L.append(("e", [f"buffer_load_dwordx4 v[{PQ+4*t}:{PQ+4*t+3}], v{V_L16}, s[60:63], s67 offen offset:{1024*t}"]))
    return L


def o_block_a(k):
    A = XR_[0]
    U = XR_[1]
    k(f"s_mov_b32 s75, 0xffff0000")
    for r in range(8):
        D = A if r == 0 else U
        for q in range(4):
            k(f"v_lshlrev_b32 v{D+2*q}, 16, v{KR+4*r+q}")
            k(f"v_and_b32 v{D+2*q+1}, s75, v{KR+4*r+q}")
        if r:
            for q in range(0, 8, 2):
                k(f"v_pk_add_f32 v[{A+q}:{A+q+1}], v[{A+q}:{A+q+1}], v[{U+q}:{U+q+1}]")
    for q in range(4):
        k(f"v_cvt_pk_bf16_f32 v{KR+q}, v{A+2*q}, v{A+2*q+1}")
    for sh in (1, 2, 4):
        k.nop(1)
        for q in range(4):
            k(f"v_add_f32_dpp v{ZR+q}, v{ZR+q}, v{ZR+q} row_ror:{sh} row_mask:0xf bank_mask:0xf")
    k(f"s_lshl_b32 s75, s{S_WAVE}, 10")
    k(f"s_add_u32 s75, s75, {SCR}")
    k(f"v_add_u32 v{V_T+1}, s75, v{V_L16}")
    k(f"ds_write_b128 v{V_T+1}, v[{KR}:{KR+3}]")
    k(f"s_lshl_b32 s75, s{S_WAVE}, 6")
    k(f"s_add_u32 s75, s75, {SCR + 4096}")
    k(f"v_add_u32 v{V_T+2}, s75, v{V_T}")
    k(f"ds_write_b128 v{V_T+2}, v[{ZR}:{ZR+3}]")


def o_features(k):
    LOG2E = 0x3fb8aa3b
    k(f"s_mov_b32 s80, {LOG2E}")
    k(f"s_mov_b32 s81, {LOG2E}")
    k(f"s_mov_b32 s82, {LOG2E | 0x80000000}")
    k(f"s_mov_b32 s83, {LOG2E | 0x80000000}")
    k(f"s_mov_b32 s75, 0xffff0000")
    XR, ER_, ST = XR_, E2_, ST_
    for t in range(4):
        for q in range(4):
            k(f"v_lshlrev_b32 v{XR[t]+2*q}, 16, v{PQ+4*t+q}")
            k(f"v_and_b32 v{XR[t]+2*q+1}, s75, v{PQ+4*t+q}")
    for t in range(4):
        X, a, b = XR[t], ST[t], ST[t] + 1
        k(f"v_max3_f32 v{a}, v{X}, v{X+1}, v{X+2}")
        k(f"v_max3_f32 v{b}, -v{X}, -v{X+1}, -v{X+2}")
        k(f"v_max3_f32 v{a}, v{a}, v{X+3}, v{X+4}")
        k(f"v_max3_f32 v{b}, v{b}, -v{X+3}, -v{X+4}")
        k(f"v_max3_f32 v{a}, v{a}, v{X+5}, v{X+6}")
        k(f"v_max3_f32 v{b}, v{b}, -v{X+5}, -v{X+6}")
        k(f"v_max_f32 v{a}, v{a}, v{X+7}")
        k(f"v_max_f32 v{b}, v{b}, -v{X+7}") if False else k(f"v_max3_f32 v{b}, v{b}, -v{X+7}, -v{X+7}")
    for t in range(4):
        a, b = ST[t], ST[t] + 1
        if t == 0:
            k.nop(1)
        k(f"v_permlane16_swap_b32 v{a}, v{b}")
    for t in range(4):
        a, b, c = ST[t], ST[t] + 1, ST[t] + 2
        k(f"v_max_f32 v{a}, v{a}, v{b}")
        k(f"v_mov_b32 v{c}, v{a}")
    for t in range(4):
        a, c = ST[t], ST[t] + 2
        if t == 3:
            k.nop(1)
        k(f"v_permlane32_swap_b32 v{a}, v{c}")
    for t in range(4):
        a, b, c = ST[t], ST[t] + 1, ST[t] + 2
        k(f"v_max_f32 v{a}, v{a}, v{c}")
        k(f"v_mov_b32 v{c}, v{a}")
    for t in range(4):
        a, c = ST[t], ST[t] + 2
        if t == 3:
            k.nop(1)
        k(f"v_permlane16_swap_b32 v{a}, v{c}")
    for t in range(4):
        a, c = ST[t], ST[t] + 2
        k(f"v_mul_f32 v{a}, s82, v{a}")
        k(f"v_mul_f32 v{c}, s82, v{c}")
    for t in range(4):
        X, E, a, c = XR[t], ER_[t], ST[t], ST[t] + 2
        for q in range(0, 8, 2):
            k(f"v_pk_fma_f32 v[{E+q}:{E+q+1}], v[{X+q}:{X+q+1}], s[82:83], v[{c}:{c+1}] op_sel_hi:[1,1,0]")
        for q in range(0, 8, 2):
            k(f"v_pk_fma_f32 v[{X+q}:{X+q+1}], v[{X+q}:{X+q+1}], s[80:81], v[{a}:{a+1}] op_sel_hi:[1,1,0]")
    for t in range(4):
        X, E = XR[t], ER_[t]
        for q in range(8):
            k(f"v_exp_f32 v{X+q}, v{X+q}")
            k(f"v_exp_f32 v{E+q}, v{E+q}")
    for t in range(4):
        X, E = XR[t], ER_[t]
        for q in range(4):
            k(f"v_cvt_pk_bf16_f32 v{EP+4*t+q}, v{X+2*q}, v{X+2*q+1}")
        for q in range(4):
            k(f"v_cvt_pk_bf16_f32 v{EM+4*t+q}, v{E+2*q}, v{E+2*q+1}")


def o_block_b0(k):
    KA, ZZ, ZA = KR, 76, 92
    k(f"v_add_u32 v{V_T+1}, {SCR}, v{V_L16}")
    for i in range(4):
        k(f"ds_read_b128 v[{KA+4*i}:{KA+4*i+3}], v{V_T+1} offset:{1024*i}")
    k(f"v_add_u32 v{V_T+2}, {SCR + 4096}, v{V_T}")
    for i in range(4):
        k(f"ds_read_b128 v[{ZZ+4*i}:{ZZ+4*i+3}], v{V_T+2} offset:{64*i}")
    k(f"v_and_b32 v{V_T+1}, 3, v0")
    k(f"v_cmp_eq_u32 vcc, 0, v{V_T+1}")
    k(f"v_cmp_eq_u32 s[42:43], 1, v{V_T+1}")
    k(f"v_mov_b32 v{V_T+2}, 0x3f803f80")
    k("s_waitcnt lgkmcnt(0)")
    for s in range(2):
        for ft in range(2):
            z = ZZ + 4 * (2 * s + ft)
            k(f"v_cvt_pk_bf16_f32 v{z}, v{z}, v{z+1}")
            k(f"v_cvt_pk_bf16_f32 v{z+1}, v{z+2}, v{z+3}")
    for s in range(2):
        for ft in range(2):
            z = ZZ + 4 * (2 * s + ft)
            for q in range(2):
                d = ZA + 4 * s + 2 * ft + q
                k(f"v_cndmask_b32 v{d}, 0, v{z+q}, vcc")
                k(f"v_cndmask_b32 v{d}, v{d}, v{V_T+2}, s[42:43]")
    k(f"s_mul_i32 s64, s65, {A2_TT}")
    k(f"s_lshl_b32 s75, s{S_H}, 10")
    k("s_add_u32 s64, s64, s75")
    k(f"v_mov_b32 v{V_T+2}, 0x358637bd")


def o_block_b1(k, pair):
    KA, ZA, NR, OF = KR, 92, 100, 148
    EPS = V_T + 2
    for ti in range(2):
        t = 2 * pair + ti
        b = NR + 24 * ti
        for s in range(2):
            E = EOP(t, s)
            k(f"v_mfma_f32_16x16x32_bf16 v[{b+16+4*s}:{b+19+4*s}], v[{ZA+4*s}:{ZA+4*s+3}], v[{E}:{E+3}], 0")
        for s in range(2):
            E = EOP(t, s)
            for dt in range(2):
                A = KA + 4 * (2 * s + dt)
                o = b + 8 * s + 4 * dt
                k(f"v_mfma_f32_16x16x32_bf16 v[{o}:{o+3}], v[{A}:{A+3}], v[{E}:{E+3}], 0")
    k.nop(4)
    for ti in range(2):
        b = NR + 24 * ti
        k(f"v_rcp_f32 v{b+17}, v{b+17}")
        k(f"v_rcp_f32 v{b+21}, v{b+21}")
    k.nop(1)
    for ti in range(2):
        b = NR + 24 * ti
        k(f"v_fma_f32 v{b+18}, v{b+16}, v{b+17}, v{EPS}")
        k(f"v_fma_f32 v{b+18}, v{b+20}, v{b+21}, v{b+18}")
    for ti in range(2):
        b = NR + 24 * ti
        k(f"v_rcp_f32 v{b+18}, v{b+18}")
    k.nop(3)
    for ti in range(2):
        b = NR + 24 * ti
        k(f"v_mul_f32 v{b+16}, v{b+17}, v{b+18}")
        k(f"v_mul_f32 v{b+20}, v{b+21}, v{b+18}")
    for ti in range(2):
        b = NR + 24 * ti
        for q in range(0, 8, 2):
            k(f"v_pk_mul_f32 v[{b+q}:{b+q+1}], v[{b+q}:{b+q+1}], v[{b+16}:{b+17}] op_sel_hi:[1,0]")
        for q in range(0, 8, 2):
            k(f"v_pk_fma_f32 v[{b+q}:{b+q+1}], v[{b+8+q}:{b+9+q}], v[{b+20}:{b+21}], v[{b+q}:{b+q+1}] op_sel_hi:[1,0,1]")
    for ti in range(2):
        b = NR + 24 * ti
        o = OF + 4 * ti
        for q in range(4):
            k(f"v_cvt_pk_bf16_f32 v{o+q}, v{b+2*q}, v{b+2*q+1}")
        k(f"buffer_store_dwordx4 v[{o}:{o+3}], v{V_L16}, s[{S_A2}:{S_A2+3}], s64 offen sc1")
        k(f"s_add_u32 s64, s64, {A2_TT}")
    k.nop(2)


def helper(k):
    if OPT.get("hprio", "late") == "early":
        k("s_setprio 3")
    o_setup(k)
    for tag, ins in o_loads():
        for x in ins:
            k(x)
    k("s_waitcnt vmcnt(4)")
    if OPT.get("hprio", "late") == "late":
        k("s_setprio 3")
    o_block_a(k)
    k("s_waitcnt vmcnt(0)")
    o_features(k)
    k("s_waitcnt lgkmcnt(0)")
    k("s_barrier")
    o_block_b0(k)
    k.nop(1)
    o_block_b1(k, 0)
    o_block_b1(k, 1)
    k("s_waitcnt vmcnt(0)")
    k("s_barrier")
    publish(k)
    k("s_waitcnt vmcnt(0)")
    k("s_endpgm")


def publish(k):
    k(f"s_cmp_eq_u32 s{S_WAVE}, 0")
    k("s_cbranch_scc0 L_k3_nopub")
    k(f"s_lshl_b32 s64, s{S_RP}, 10")
    k(f"v_mov_b32 v{V_T+1}, s64")
    k(f"v_mov_b32 v{V_T+2}, 1")
    k("s_mov_b64 exec, 1")
    k(f"buffer_atomic_add v{V_T+2}, v{V_T+1}, s[{S_CNT}:{S_CNT+3}], 0 offen")
    k("s_mov_b64 exec, -1")
    k.lab("L_k3_nopub")


def prologue(k, vq):
    k("s_cmp_ge_u32 s2, 512")
    k("s_cbranch_scc1 L_k3_end")
    k(f"s_load_dwordx2 s[{S_WDLO}:{S_WDHI}], s[0:1], 56")
    k("s_load_dwordx2 s[6:7], s[0:1], 80")
    k(f"s_load_dwordx2 s[{S_WOLO}:{S_WOHI}], s[0:1], 24")
    k(f"s_load_dwordx2 s[{S_X}:{S_X+1}], s[0:1], 0")
    k(f"s_load_dwordx2 s[{S_OUT}:{S_OUT+1}], s[0:1], 64")
    k(f"v_lshrrev_b32 v{V_T}, 6, v0")
    k("v_and_b32 v0, 63, v0")
    k(f"v_lshlrev_b32 v{V_L16}, 4, v0")
    k(f"v_readfirstlane_b32 s{S_WAVE}, v{V_T}")
    k("s_and_b32 s50, s2, 7")
    k("s_lshr_b32 s51, s2, 3")
    k(f"s_and_b32 s{S_KH}, s50, 1")
    k("s_lshr_b32 s52, s50, 1")
    k("s_lshl_b32 s52, s52, 2")
    k("s_lshr_b32 s53, s51, 3")
    k(f"s_add_u32 s{S_RB}, s52, s53")
    k(f"s_and_b32 s{S_CT}, s51, 7")
    k(f"v_lshrrev_b32 v{V_T}, 4, v0")
    k(f"v_bfe_u32 v{V_T+1}, v0, 1, 3")
    k(f"v_xor_b32 v{V_T+1}, v{V_T+1}, v{V_T}")
    k(f"v_xor_b32 v{V_T+2}, 4, v{V_T+1}")
    k(f"v_and_b32 v{V_T+3}, 1, v0")
    k(f"v_lshlrev_b32 v{V_T+3}, 4, v{V_T+3}")
    k(f"v_lshl_add_u32 v{V_T+3}, v{V_T}, 11, v{V_T+3}")
    k(f"v_lshl_add_u32 v{V_T+1}, v{V_T+1}, 5, v{V_T+3}")
    k(f"v_lshl_add_u32 v{V_T+2}, v{V_T+2}, 5, v{V_T+3}")
    k(f"s_lshl_b32 s54, s{S_CT}, 8")
    k(f"s_lshl_b32 s55, s{S_WAVE}, 15")
    k("s_add_u32 s54, s54, s55")
    k(f"v_add_u32 v{V_DMA}, s54, v{V_T+1}")
    k(f"v_add_u32 v{V_DMA+1}, s54, v{V_T+2}")
    k(f"v_add_u32 v{V_DMA+1}, {7168}, v{V_DMA+1}")
    k(f"v_add_u32 v{V_DMA+2}, {2*7168}, v{V_DMA}")
    k(f"v_add_u32 v{V_DMA+3}, {2*7168}, v{V_DMA+1}")
    k(f"s_lshl_b32 s54, s{S_RB}, 3")
    k(f"s_lshl_b32 s55, s{S_WAVE}, 1")
    k("s_add_u32 s54, s54, s55")
    k(f"s_mul_i32 s55, s54, {A2_TT}")
    k(f"v_add_u32 v{V_TOK}, s55, v{V_L16}")
    k(f"v_add_u32 v{V_TOK+1}, {A2_TT}, v{V_TOK}")
    k(f"s_and_b32 s56, s{S_RB}, 3")
    k("s_lshl_b32 s56, s56, 1")
    k(f"s_add_u32 s55, s{S_CT}, s56")
    if not OPT["rot"]:
        k("s_mov_b32 s55, 0")
    k("s_and_b32 s57, s55, 7")
    k("s_cmp_ge_u32 s55, 7")
    k("s_cselect_b32 s56, 7, 0")
    k("s_sub_u32 s55, s55, s56")
    T0, T1, T2, T3 = V_T, V_T + 1, V_T + 2, V_T + 3
    if OPT["order"] == "win":
        k(f"v_mul_u32_u24 v{T0}, 9363, v0")
        k(f"v_lshrrev_b32 v{T0}, 16, v{T0}")
        k(f"v_mul_u32_u24 v{T0}, 7, v{T0}")
        k(f"v_sub_u32 v{T1}, v0, v{T0}")
        k(f"v_add_u32 v{T1}, s55, v{T1}")
        k(f"v_subrev_u32 v{T2}, 7, v{T1}")
        k(f"v_cmp_le_u32 vcc, 7, v{T1}")
        k.nop(2)
        k(f"v_cndmask_b32 v{T1}, v{T1}, v{T2}, vcc")
        k(f"v_add_u32 v{T0}, v{T0}, v{T1}")
    elif OPT["order"] == "lead4":
        k(f"s_add_u32 s56, s{S_CT}, s{S_RB}")
        k(f"v_subrev_u32 v{T1}, s56, v0")
        k(f"v_and_b32 v{T1}, 3, v{T1}")
        k(f"v_add_u32 v{T0}, 24, v0")
        k(f"v_subrev_u32 v{T2}, 28, v{T0}")
        k(f"v_cmp_le_u32 vcc, 28, v{T0}")
        k.nop(2)
        k(f"v_cndmask_b32 v{T0}, v{T0}, v{T2}, vcc")
        k(f"v_cmp_gt_u32 vcc, {OPT['nlead']}, v{T1}")
        k.nop(2)
        k(f"v_cndmask_b32 v{T0}, v{T0}, v0, vcc")
    else:
        k("s_sub_u32 s56, 7, s55")
        k(f"v_add_u32 v{T0}, s56, v0")
        k(f"v_mul_u32_u24 v{T1}, 9363, v{T0}")
        k(f"v_lshrrev_b32 v{T1}, 16, v{T1}")
        k(f"v_mul_u32_u24 v{T1}, 7, v{T1}")
        k(f"v_sub_u32 v{T1}, v{T0}, v{T1}")
        k(f"v_add_u32 v{T0}, 21, v0")
        k(f"v_subrev_u32 v{T2}, 28, v{T0}")
        k(f"v_cmp_le_u32 vcc, 28, v{T0}")
        k.nop(2)
        k(f"v_cndmask_b32 v{T0}, v{T0}, v{T2}, vcc")
        k(f"v_cmp_gt_u32 vcc, {OPT['nlead']}, v{T1}")
        k.nop(2)
        k(f"v_cndmask_b32 v{T0}, v{T0}, v0, vcc")
    k(f"v_subrev_u32 v{T1}, 28, v0")
    if OPT.get("olead", True) and OPT["order"] == "lead4":
        k(f"v_add_u32 v{T2}, 4, v{T1}")
        k(f"v_and_b32 v{T2}, 7, v{T2}")
        k(f"v_and_b32 v{T1}, 7, v{T1}")
        k(f"v_cndmask_b32 v{T1}, v{T2}, v{T1}, vcc")
    else:
        k(f"v_add_u32 v{T1}, s57, v{T1}")
        k(f"v_and_b32 v{T1}, 7, v{T1}")
    k(f"s_mul_i32 s{S_TH}, s{S_KH}, {56 * 1024}")
    k(f"s_add_u32 s{S_TH}, s{S_TH}, 32768")
    k(f"s_lshl_b32 s{S_TO}, s{S_KH}, 14")
    k(f"v_lshlrev_b32 v{T2}, 11, v{T0}")
    k(f"v_add_u32 v{T2}, s{S_TH}, v{T2}")
    k(f"v_lshlrev_b32 v{T3}, 11, v{T1}")
    k(f"v_add_u32 v{T3}, s{S_TO}, v{T3}")
    k("v_cmp_le_u32 vcc, 28, v0")
    k.nop(2)
    k(f"v_cndmask_b32 v{V_TABT}, v{T2}, v{T3}, vcc")
    k(f"v_cndmask_b32 v{T0}, v{T0}, v{T1}, vcc")
    k(f"v_lshlrev_b32 v{V_TABW}, 17, v{T0}")
    k("v_cmp_le_u32 vcc, 36, v0")
    k(f"v_mov_b32 v{T0}, 0x40000000")
    k.nop(1)
    k(f"v_cndmask_b32 v{V_TABT}, v{V_TABT}, v{T0}, vcc")
    k(f"v_cndmask_b32 v{V_TABW}, v{V_TABW}, v{T0}, vcc")
    k(f"s_mov_b32 s{S_POS1}, 0")
    k(f"s_lshl_b32 s{S_M0B}, s{S_WAVE}, 12")
    k("s_waitcnt lgkmcnt(0)")
    k(f"s_mul_i32 s55, s{S_KH}, {1792 * 2048}")
    k(f"s_add_u32 s{S_WDLO}, s{S_WDLO}, s55")
    k(f"s_addc_u32 s{S_WDHI}, s{S_WDHI}, 0")
    k(f"s_lshl_b32 s55, s{S_KH}, 20")
    k(f"s_add_u32 s{S_WOLO}, s{S_WOLO}, s55")
    k(f"s_addc_u32 s{S_WOHI}, s{S_WOHI}, 0")
    k(f"s_mov_b32 s{S_WDSZ}, {1792 * 2048}")
    k(f"s_mov_b32 s{S_WOSZ}, {512 * 2048}")
    k(f"s_mov_b32 s{S_W+3}, 0x00020000")
    k(f"s_add_u32 s{S_A2}, s6, {A2_OFF}")
    k(f"s_addc_u32 s{S_A2+1}, s7, 0")
    k(f"s_mov_b32 s{S_A2+2}, {128 * A2_TT}")
    k(f"s_mov_b32 s{S_A2+3}, 0x00020000")
    k(f"s_add_u32 s{S_CNT}, s6, {FLG_OFF + 32768}")
    k(f"s_addc_u32 s{S_CNT+1}, s7, 0")
    k(f"s_mov_b32 s{S_CNT+2}, 8192")
    k(f"s_mov_b32 s{S_CNT+3}, 0x00020000")
    k("s_cmp_ge_u32 s2, 256")
    k("s_cbranch_scc1 L_k3_helper")
    k(f"s_mov_b32 s{S_W}, s{S_WDLO}")
    k(f"s_mov_b32 s{S_W+1}, s{S_WDHI}")
    k(f"s_mov_b32 s{S_W+2}, s{S_WDSZ}")

    def group(st):
        for x in tab_reads():
            k(x)
        k(dma_m0(st % RING))
        k.nop(3)
        for i in range(4):
            k(dma(i))
            vq.issue(f"W{st}")
        for q in range(4):
            k(tokload(st % NS, q))
            vq.issue(f"T{st}")

    group(0)
    group(1)
    k(f"s_mov_b32 s{S_OUT+2}, 4194304")
    k(f"s_mov_b32 s{S_OUT+3}, 0x00020000")
    k(f"s_mov_b32 s{S_X+2}, 4194304")
    k(f"s_mov_b32 s{S_X+3}, 0x00020000")
    k(f"v_lshrrev_b32 v{V_T}, 3, v0")
    k(f"v_lshlrev_b32 v{V_T}, 11, v{V_T}")
    k(f"v_and_b32 v{V_T+1}, 7, v0")
    k(f"v_lshl_add_u32 v{V_T}, v{V_T+1}, 4, v{V_T}")
    k("s_lshl_b32 s55, s54, 15")
    k(f"s_lshl_b32 s56, s{S_CT}, 8")
    k("s_add_u32 s55, s55, s56")
    k(f"s_lshl_b32 s56, s{S_KH}, 7")
    k("s_add_u32 s55, s55, s56")
    k(f"v_add_u32 v{V_OUT}, s55, v{V_T}")
    for i in range(4):
        k(f"s_mov_b32 s{S_XO + i}, {i * 8 * 2048}")
    k(f"v_lshrrev_b32 v{V_T}, 4, v0")
    k(f"v_bfe_u32 v{V_T+1}, v0, 2, 2")
    k(f"v_lshl_add_u32 v{V_T}, v{V_T}, 2, v{V_T+1}")
    k(f"v_and_b32 v{V_T+1}, 7, v{V_T}")
    k(f"v_lshlrev_b32 v{V_T+1}, 5, v{V_T+1}")
    k(f"v_and_b32 v{V_T+2}, 3, v0")
    k(f"v_lshlrev_b32 v{V_T+2}, 3, v{V_T+2}")
    k(f"v_lshl_add_u32 v{V_T+2}, v{V_T}, 8, v{V_T+2}")
    for u in range(8):
        k(f"v_xor_b32 v{V_T+3}, {u*32}, v{V_T+1}")
        k(f"v_add_u32 v{V_RD+u}, v{V_T+3}, v{V_T+2}")
    k(f"s_lshr_b32 s55, s{S_RB}, 1")
    k("s_lshl_b32 s55, s55, 10")
    k(f"v_mov_b32 v{V_CNTA}, s55")
    for i in range(ACC, ACC + 64):
        k(f"v_mov_b32 v{i}, 0")
    group(2)
    k(f"s_waitcnt vmcnt({vq.need('W0')})")
    k("s_barrier")
    for n in range(D):
        for x in frag_reads(n, 0):
            k(x)


def stage(k, sg, setn, vq=None, extra=(), pre=None, loads=True, last=False):
    if vq is not None:
        need = [f"T{sg}"] + ([] if last else [f"W{sg+1}"])
        k(f"s_waitcnt vmcnt({vq.need(*need)})")
    else:
        k(f"s_waitcnt vmcnt({OPT['vmw']})")
    if OPT["bar"]:
        k("s_barrier")
    if pre:
        pre(k)
    fill = {m: [] for m in range(16)}
    vm = {m: [] for m in range(16)}
    for n in range(16):
        if not (last and n + D >= 16):
            fill[n] += frag_reads(n + D, setn)
    if loads:
        tr = tab_reads()
        fill[0] += tr[:2]
        fill[1] += [tr[2], dma_m0((setn + 3) % RING)]
        for i in range(4):
            fill[3 + i].append(dma(i))
            vm[3 + i].append(f"W{sg + 3}" if vq else None)
        for q in range(4):
            fill[7 + q].append(tokload((setn + 3) % NS, q))
            vm[7 + q].append(f"T{sg + 3}" if vq else None)
    slots = [11, 12, 13, 14, 15, 15, 2, 1, 0, 0, 0, 0]
    slots = [11, 12, 13, 14, 15, 11, 12, 13]
    order = sorted(range(len(extra)), key=lambda e: (slots[e], e))
    for e, (tag, ins) in enumerate(extra):
        pass
    sl = [11, 11, 12, 12, 13, 14, 15, 15]
    for e, (tag, ins) in enumerate(extra):
        fill[sl[e]] += ins
        vm[sl[e]].append(tag)
    for n in range(16):
        if n % 2 == 0:
            nrem = 2 * (D - 2)
            if last:
                nrem = max(0, min(nrem, 2 * (16 - n - 2)))
            k(f"s_waitcnt lgkmcnt({nrem})")
        ks, u = n >> 3, n & 7
        half = [fill[n][:len(fill[n]) // 2], fill[n][len(fill[n]) // 2:]]
        for t in range(2):
            c = acc(t, u)
            if OPT["mfma"]:
                k(f"v_mfma_f32_16x16x32_bf16 v[{c}:{c+3}], {ar(wf(n), 4)}, {tok(setn, t, ks)}, v[{c}:{c+3}]")
            for x in half[t]:
                if x.startswith("ds_read") and not OPT["lds"]: continue
                if x.startswith("buffer_load_dwordx4 a") and not OPT["tok"]: continue
                if x.endswith(" lds") and not OPT["w"]: continue
                k(x)
        if vq is not None:
            for tg in vm[n]:
                vq.issue(tg)


def epilogue(k):
    XS = 52
    PITCH = 272
    k("s_waitcnt vmcnt(0) lgkmcnt(0)")
    k(f"s_add_u32 s{XS}, s6, {XCH_OFF}")
    k(f"s_addc_u32 s{XS+1}, s7, 0")
    k(f"s_mov_b32 s{XS+2}, {4 << 20}")
    k(f"s_mov_b32 s{XS+3}, 0x00020000")
    k("s_lshl_b32 s60, s2, 2")
    k(f"s_add_u32 s60, s60, s{S_WAVE}")
    k("s_xor_b32 s61, s60, 4")
    k("s_lshl_b32 s62, s60, 12")
    k("s_lshl_b32 s63, s61, 12")
    R = RCV
    PK = RCV + 16
    WA, RA = V_T, V_T + 1
    k(f"s_mul_i32 s64, s{S_WAVE}, {32 * PITCH}")
    k(f"v_and_b32 v{WA}, 15, v0")
    k(f"v_mul_u32_u24 v{WA}, {PITCH}, v{WA}")
    k(f"v_lshrrev_b32 v{V_T+2}, 4, v0")
    k(f"v_lshl_add_u32 v{WA}, v{V_T+2}, 4, v{WA}")
    k(f"v_add_u32 v{WA}, s64, v{WA}")
    k(f"v_lshrrev_b32 v{RA}, 3, v0")
    k(f"v_mul_u32_u24 v{RA}, {PITCH}, v{RA}")
    k(f"v_and_b32 v{V_T+2}, 7, v0")
    k(f"v_lshl_add_u32 v{RA}, v{V_T+2}, 5, v{RA}")
    k(f"v_add_u32 v{RA}, s64, v{RA}")
    k("s_barrier")
    for kh in range(2):
        if kh == 0:
            k(f"s_cmp_eq_u32 s{S_KH}, 0")
            k("s_cbranch_scc0 L_k3_kh1")
        else:
            k.lab("L_k3_kh1")
        send = 4 * (1 - kh)
        keep = 4 * kh
        for t in range(2):
            for q in range(8):
                c = acc(t, send) + 2 * q
                k(f"v_cvt_pk_bf16_f32 v{PK + 8*t + q}, v{c}, v{c+1}")
        for f in range(4):
            k(f"buffer_store_dwordx4 v[{PK+4*f}:{PK+4*f+3}], v{V_L16}, s[{XS}:{XS+3}], s62 offen offset:{1024*f} sc1")
        k("s_mov_b32 s67, 100000")
        k.lab(f"L_k3_xp{kh}")
        for f in range(4):
            k(f"buffer_load_dwordx4 v[{R+4*f}:{R+4*f+3}], v{V_L16}, s[{XS}:{XS+3}], s63 offen offset:{1024*f} sc1")
        k("s_waitcnt vmcnt(0)")
        k(f"v_max3_u32 v{V_T+2}, v{R}, v{R+1}, v{R+2}")
        k(f"v_max3_u32 v{V_T+3}, v{R+3}, v{R+4}, v{R+5}")
        for q in range(6, 14, 4):
            k(f"v_max3_u32 v{V_T+2}, v{V_T+2}, v{R+q}, v{R+q+1}")
            k(f"v_max3_u32 v{V_T+3}, v{V_T+3}, v{R+q+2}, v{R+q+3}")
        k(f"v_max3_u32 v{V_T+2}, v{V_T+2}, v{R+14}, v{R+15}")
        k(f"v_max_u32 v{V_T+2}, v{V_T+2}, v{V_T+3}")
        k(f"v_cmp_eq_u32 vcc, -1, v{V_T+2}")
        k("s_sub_u32 s67, s67, 1")
        k("s_cmp_eq_u32 s67, 0")
        k(f"s_cbranch_scc1 L_k3_xd{kh}")
        k(f"s_cbranch_vccnz L_k3_xp{kh}")
        k.lab(f"L_k3_xd{kh}")
        for t in range(2):
            for f in range(4):
                c = acc(t, keep + f)
                r = R + 8 * t + 2 * f
                k(f"v_lshlrev_b32 v{PK}, 16, v{r}")
                k(f"v_and_b32 v{PK+1}, 0xffff0000, v{r}")
                k(f"v_lshlrev_b32 v{PK+2}, 16, v{r+1}")
                k(f"v_and_b32 v{PK+3}, 0xffff0000, v{r+1}")
                k(f"v_pk_add_f32 v[{c}:{c+1}], v[{c}:{c+1}], v[{PK}:{PK+1}]")
                k(f"v_pk_add_f32 v[{c+2}:{c+3}], v[{c+2}:{c+3}], v[{PK+2}:{PK+3}]")
                k(f"ds_write_b128 v{WA}, v[{c}:{c+3}] offset:{16*t*PITCH + 64*f}")
        if kh == 0:
            k("s_branch L_k3_fin")
    k.lab("L_k3_fin")
    k("s_waitcnt lgkmcnt(0)")
    T = ACC
    for i in range(4):
        k(f"ds_read_b128 v[{T+8*i}:{T+8*i+3}], v{RA} offset:{i * 8 * PITCH}")
        k(f"ds_read_b128 v[{T+8*i+4}:{T+8*i+7}], v{RA} offset:{i * 8 * PITCH + 16}")
    for i in range(4):
        x = XRES + 4 * i
        b = T + 8 * i
        U = RCV
        for q in range(4):
            k(f"v_lshlrev_b32 v{U+2*q}, 16, v{x+q}")
            k(f"v_and_b32 v{U+2*q+1}, 0xffff0000, v{x+q}")
        k(f"s_waitcnt lgkmcnt({6 - 2*i})")
        for q in range(4):
            k(f"v_pk_add_f32 v[{b+2*q}:{b+2*q+1}], v[{b+2*q}:{b+2*q+1}], v[{U+2*q}:{U+2*q+1}]")
        for q in range(4):
            k(f"v_cvt_pk_bf16_f32 v{b+q}, v{b+2*q}, v{b+2*q+1}")
        k(f"buffer_store_dwordx4 v[{b}:{b+3}], v{V_OUT}, s[{S_OUT}:{S_OUT+3}], s{S_XO + i} offen{OPT.get('opol', '')}")


def gen_k3(stamps=False):
    k = Kern("k3_gemm2_kernel")
    vq = VQ()
    if stamps:
        stamp(k, 0)
    prologue(k, vq)
    if stamps:
        stamp(k, 1)
    stage(k, 0, 0, vq=vq)
    if stamps:
        stamp(k, 2)
    k(f"s_mov_b32 s{S_IT}, 0")
    k.lab("L_k3_loop")
    if stamps:
        k("s_memtime s[98:99]")
        k("s_waitcnt lgkmcnt(0)")
        k(f"s_mov_b32 m0, s{S_IT}")
        k("s_nop 3")
        k("v_writelane_b32 v23, s98, m0")
    nloop = (36 - NHEAD - NTAIL) // NS
    for sub in range(NS):
        extra, pre = [], None
        setn = (NHEAD + sub) % NS
        if sub == 1:
            def pre(k):
                k(f"s_cmp_eq_u32 s{S_IT}, 5")
                k("s_cbranch_scc0 L_k3_nopoll")
                k(f"buffer_load_dword v{V_POLL}, v{V_CNTA}, s[{S_CNT}:{S_CNT+3}], 0 offen sc1")
                k.lab("L_k3_nopoll")
        if sub == 0:
            def pre(k):
                k(f"s_cmp_eq_u32 s{S_IT}, 6")
                k("s_cbranch_scc0 L_k3_nochk")
                k(f"s_mov_b32 s{S_W}, s{S_WOLO}")
                k(f"s_mov_b32 s{S_W+1}, s{S_WOHI}")
                k(f"s_mov_b32 s{S_W+2}, s{S_WOSZ}")
                k("s_mov_b32 s75, 400000")
                k.lab("L_k3_chk")
                k(f"v_readfirstlane_b32 s{S_T}, v{V_POLL}")
                k.nop(1)
                k(f"s_cmp_ge_u32 s{S_T}, 32")
                k("s_cbranch_scc1 L_k3_nochk")
                k("s_sub_u32 s75, s75, 1")
                k("s_cmp_eq_u32 s75, 0")
                k("s_cbranch_scc1 L_k3_nochk")
                k("s_sleep 4")
                k(f"buffer_load_dword v{V_POLL}, v{V_CNTA}, s[{S_CNT}:{S_CNT+3}], 0 offen sc1")
                k("s_waitcnt vmcnt(0)")
                k("s_branch L_k3_chk")
                k.lab("L_k3_nochk")
        stage(k, None, setn, extra=extra, pre=pre)
    k(f"s_add_u32 s{S_IT}, s{S_IT}, 1")
    k(f"s_cmp_lt_u32 s{S_IT}, {nloop}")
    k("s_cbranch_scc1 L_k3_loop")
    vq2 = VQ()
    for st in (33, 34, 35):
        vq2.issue(f"W{st}", 4); vq2.issue(f"T{st}", 4)
    for sg in range(33, 36):
        extra = []
        if sg == 33:
            for i in range(4):
                r = XRES + 4 * i
                extra.append(("x", [f"buffer_load_dwordx4 v[{r}:{r+3}], v{V_OUT}, s[{S_X}:{S_X+3}], s{S_XO + i} offen"]))
        stage(k, sg, sg % NS, vq=vq2, loads=False, last=(sg == 35), extra=extra)
    if stamps:
        stamp(k, 3)
    k.nop(8)
    epilogue(k)
    if stamps:
        k("s_waitcnt vmcnt(0)")
        stamp(k, 4)
        stamp_store(k, 5)
    k.lab("L_k3_end")
    k("s_endpgm")
    k.lab("L_k3_helper")
    helper(k)
    return k, descriptor("k3_gemm2_kernel", NV + NAGPR, NV), f"; @launch kernel=k3_gemm2_kernel grid=(512,1,1) block=(256,1,1) lds={SCR + 8192}"


STAMP_OFF = 60 << 20
def stamp(k, i):
    k(f"s_memtime s[{76+4*i}:{77+4*i}]")
    k(f"s_memrealtime s[{78+4*i}:{79+4*i}]")
    k("s_waitcnt lgkmcnt(0)")


def stamp_store(k, n=4, kid=1):
    k(f"s_add_u32 s8, s6, {STAMP_OFF + kid * 65536}")
    k("s_addc_u32 s9, s7, 0")
    k("s_mov_b32 s10, 65536")
    k("s_mov_b32 s11, 0x00020000")
    k("s_lshl_b32 s51, s2, 8")
    k("v_mov_b32 v104, s51")
    k("v_cmp_eq_u32 vcc, 0, v0")
    k("s_and_saveexec_b64 s[52:53], vcc")
    k(f"s_cmp_eq_u32 s{S_WAVE}, 0")
    k("s_cbranch_scc0 L_k3_nostamp")
    for i in range(n):
        k(f"v_mov_b32 v105, s{76+4*i}")
        k(f"v_mov_b32 v106, s{78+4*i}")
        k(f"buffer_store_dword v105, v104, s[8:11], 0 offen offset:{8*i}")
        k(f"buffer_store_dword v106, v104, s[8:11], 0 offen offset:{8*i+4}")
    k("s_mov_b64 exec, s[52:53]")
    k("v_lshlrev_b32 v105, 2, v0")
    k("v_add_u32 v105, s51, v105")
    k("v_cmp_gt_u32 vcc, 16, v0")
    k("s_and_saveexec_b64 s[52:53], vcc")
    k("buffer_store_dword v23, v105, s[8:11], 0 offen offset:128")
    k.lab("L_k3_nostamp")
    k("s_mov_b64 exec, s[52:53]")
```

```python
from dsl import *
from k1 import srd, XN_OFF, A2_OFF, PHIQ_OFF, KVP_OFF, ZP_OFF

STAGE = 20480
RING = 5
NS = 4
ROT = True
XOPT = dict(bar=True, halfwait=False, side=True, nosalu=False, lds=True, dma=True, tok=True, ldsfrac=1)
PD = RING - 2
NB = 10
DBG_OFF = 64 << 20
WPHI_OFF = STAGE * RING

V_TOK = 1
V_DMA = 2
V_AQ0, V_AQ1, V_AG = 7, 8, 9
ACC_V0 = 16
A_TOK = 80
A_WF = A_TOK + 16 * NS
NAGPR = A_WF + 4 * NB

S_XN = 8
S_W = 12
S_SOFF = 32
S_SSTR = 37
S_TOFF = 42
S_RING = 43
S_RLIM = 44
S_RD = 45
S_CNT = 46
S_WAVE = 47
S_J = 48
S_R = 49
S_DELTA = 50
S_T0 = 51
S_IDX, S_WB, S_ROT, S_P = 70, 71, 72, 73
S_NEG = 66
S_POS = 67
S_C1 = 68
S_C2 = 69


def acc(n, t):
    if t < 3:
        return vr(ACC_V0 + 80 * t + 4 * n, 4)
    return ar(4 * n, 4)


def tok(setn, t):
    return ar(A_TOK + 16 * setn + 4 * t, 4)


def wf(n):
    return A_WF + 4 * (n % NB)


def frag_reads(n):
    b = wf(n)
    out = []
    for t in range(2):
        if n < 6:
            m, hf = n >> 1, n & 1
            a = V_AQ1 if hf else V_AQ0
            off = t * 3072 + m * 64
        else:
            u, isu = (n - 6) >> 1, (n - 6) & 1
            a = V_AG
            off = 6144 + isu * 7168 + t * 3584 + u * 32
        out.append(f"ds_read_b64_tr_b16 {ar(b + 2 * t, 2)}, v{a} offset:{off}")
    return out


def mfma(n, t, setn):
    w = ar(wf(n), 4)
    x = tok(setn, t)
    c = acc(n, t)
    if n in (4, 5):
        return f"v_mfma_f32_16x16x32_bf16 {c}, {x}, {w}, {c}"
    return f"v_mfma_f32_16x16x32_bf16 {c}, {w}, {x}, {c}"


def dma(i):
    return [f"s_add_u32 m0, s{S_RING}, {i * 1024}",
            f"s_mul_i32 s{S_SOFF + i}, s{S_P}, s{S_SSTR + i}",
            f"buffer_load_dwordx4 v{V_DMA + i}, s[{S_W + 4 * i}:{S_W + 4 * i + 3}], s{S_SOFF + i} offen{XOPT.get('wpol', '')} lds"]


ORDER = "lead"
NLEAD = 2


def p_adv():
    if ORDER == "win":
        return [[f"s_lshl_b32 s{S_TOFF}, s{S_P}, 12",
                 f"s_add_u32 s{S_IDX}, s{S_IDX}, 1",
                 f"s_and_b32 s{S_IDX}, s{S_IDX}, 7"],
                [f"s_cmp_eq_u32 s{S_IDX}, s{S_ROT}",
                 f"s_cselect_b32 s{S_T0}, 8, 0",
                 f"s_add_u32 s{S_WB}, s{S_WB}, s{S_T0}",
                 f"s_add_u32 s{S_P}, s{S_WB}, s{S_IDX}"]]
    return [[f"s_lshl_b32 s{S_TOFF}, s{S_P}, 12",
             f"s_add_u32 s{S_WB}, s{S_WB}, 1",
             f"s_sub_u32 s{S_T0}, s{S_WB}, s{S_ROT}",
             f"s_and_b32 s{S_T0}, s{S_T0}, 7"],
            [f"s_cmp_lt_u32 s{S_T0}, {NLEAD}",
             f"s_cselect_b32 s{S_T0}, 0, 24",
             f"s_add_u32 s{S_P}, s{S_WB}, s{S_T0}",
             f"s_and_b32 s{S_P}, s{S_P}, 31",
             f"s_cmp_ge_u32 s{S_WB}, 32",
             f"s_cselect_b32 s{S_P}, s{S_WB}, s{S_P}"]]


def ring_adv():
    return [f"s_cmp_eq_u32 s{S_RING}, s{S_RLIM}",
            f"s_cselect_b32 s{S_T0}, s{S_NEG}, s{S_POS}",
            f"s_add_u32 s{S_RING}, s{S_RING}, s{S_T0}"]


def tokload(setn, t):
    return [f"buffer_load_dwordx4 {tok(setn, t)}, v{V_TOK}, s[{S_XN}:{S_XN + 3}], s{S_TOFF} offen offset:{1024 * t}{XOPT.get('tpol', ' sc1')}"]


FINE = False
PSTAMP = False

def pst(k, i):
    if PSTAMP:
        k('s_memrealtime s[98:99]')
        k('s_waitcnt lgkmcnt(0)')
        k(f's_mov_b32 s{80+i}, s98')

def prologue(k, D):
    k("s_cmp_ge_u32 s2, 256")
    k("s_cbranch_scc1 L_k2_end")
    k("s_load_dwordx2 s[4:5], s[0:1], 8")
    k("s_load_dwordx2 s[6:7], s[0:1], 40")
    k("s_load_dwordx2 s[60:61], s[0:1], 48")
    k("s_load_dwordx2 s[62:63], s[0:1], 80")
    k("s_load_dwordx2 s[64:65], s[0:1], 16")
    k("s_load_dwordx2 s[56:57], s[0:1], 0")
    k("s_load_dwordx2 s[76:77], s[0:1], 72")
    k("v_lshrrev_b32 v10, 6, v0")
    k("v_and_b32 v0, 63, v0")
    k("s_and_b32 s51, s2, 7")
    k("v_readfirstlane_b32 s47, v10")
    k("s_lshr_b32 s52, s2, 3")
    k("s_and_b32 s53, s52, 3")
    k("s_lshl_b32 s48, s51, 2")
    k("s_add_u32 s48, s48, s53")
    k("s_lshr_b32 s49, s52, 2")
    k(f"v_lshlrev_b32 v{V_TOK}, 4, v0")
    k("s_waitcnt lgkmcnt(0)")
    k("s_mov_b32 s58, 4194304")
    k("s_mov_b32 s59, 0x00020000")
    k("v_and_b32 v10, 7, v0")
    k("v_lshlrev_b32 v10, 11, v10")
    k("v_lshrrev_b32 v11, 3, v0")
    k("v_lshl_add_u32 v10, v11, 4, v10")
    k("s_lshl_b32 s51, s47, 9")
    k("v_add_u32 v10, s51, v10")
    k("s_lshl_b32 s51, s49, 8")
    k("s_lshl_b32 s52, s48, 3")
    k("s_add_u32 s51, s51, s52")
    k("s_lshl_b32 s51, s51, 11")
    for i in range(4):
        k(f"buffer_load_dwordx4 v[{16+4*i}:{19+4*i}], v10, s[56:59], s51 offen offset:{128*i}")
    if XOPT.get("nonce", True):
        k("s_mov_b32 s78, 256")
        k("s_mov_b32 s79, 0x00020000")
        k("v_mov_b32 v13, 252")
        k("s_or_b32 s51, s2, s47")
        k("s_cmp_eq_u32 s51, 0")
        k("s_cbranch_scc0 L_k2_nonce0")
        k("s_memrealtime s[86:87]")
        k("s_waitcnt lgkmcnt(0)")
        k("s_or_b32 s86, s86, 1")
        k("v_mov_b32 v14, s86")
        k("s_mov_b64 exec, 1")
        k("buffer_store_dword v14, v13, s[76:79], 0 offen sc1")
        k("s_mov_b64 exec, -1")
        k.lab("L_k2_nonce0")
    if XOPT.get("ipf", True):
        k("s_getpc_b64 s[84:85]")
        k.lab("L_k2_pc")
        k("s_sub_u32 s84, s84, L_k2_pc-k2_gemm1_kernel")
        k("s_subb_u32 s85, s85, 0")
        k("s_lshr_b32 s51, s2, 3")
        k("s_lshl_b32 s51, s51, 10")
        k("v_and_b32 v12, 7, v0")
        k("v_lshlrev_b32 v12, 7, v12")
        k("v_add_u32 v12, s51, v12")
        k("v_min_u32 v12, L_code_end-k2_gemm1_kernel-4, v12")
        k("global_load_dword a247, v12, s[84:85]")
    if XOPT.get("tlb", True):
        k("s_mov_b32 s78, 256")
        k("s_mov_b32 s79, 0x00020000")
        k("v_mov_b32 v12, 0")
        k("buffer_load_dword a250, v12, s[76:79], 0 offen offset:252")
        k(f"s_add_u32 s80, s62, {XN_OFF}")
        k("s_addc_u32 s81, s63, 0")
        k("s_mov_b32 s82, 4194304")
        k("s_mov_b32 s83, 0x00020000")
        k("s_lshl_b32 s51, s49, 19")
        k("buffer_load_dword a251, v12, s[80:83], s51 offen")
    k("s_lshl_b32 s51, s49, 2")
    k("s_add_u32 s51, s51, s47")
    k("s_lshl_b32 s51, s51, 17")
    k(f"s_add_u32 s{S_XN}, s62, s51")
    k(f"s_addc_u32 s{S_XN+1}, s63, 0")
    k(f"s_mov_b32 s{S_XN+2}, 131072")
    k(f"s_mov_b32 s{S_XN+3}, 0x00020000")
    if ROT:
        k(f"s_and_b32 s51, s{S_J}, 3")
        k("s_lshl_b32 s51, s51, 1")
        k(f"s_add_u32 s51, s51, s{S_R}")
        k(f"s_and_b32 s{S_ROT}, s51, 7")
    else:
        k(f"s_mov_b32 s{S_ROT}, 0")
    k(f"s_mov_b32 s{S_IDX}, s{S_ROT}")
    k(f"s_mov_b32 s{S_WB}, 0")
    if ORDER == "win":
        k(f"s_mov_b32 s{S_P}, s{S_ROT}")
    else:
        k(f"s_sub_u32 s51, 0, s{S_ROT}")
        k("s_and_b32 s51, s51, 7")
        k(f"s_cmp_lt_u32 s51, {NLEAD}")
        k(f"s_cselect_b32 s{S_P}, 0, 24")
    k(f"s_mov_b32 s{S_C1}, 7340032")
    k(f"s_mov_b32 s{S_C2}, {32*7168}")
    k(f"s_mov_b32 s{S_NEG}, {(-STAGE*(RING-1)) & 0xffffffff}")
    k(f"s_mov_b32 s{S_POS}, {STAGE}")
    k("s_mul_i32 s54, s47, 5")
    k("s_mul_i32 s55, s48, 224")
    k("s_lshl_b32 s56, s48, 6")
    k(f"s_lshl_b32 s{S_RING}, s54, 10")
    k(f"s_add_u32 s{S_RLIM}, s{S_RING}, {STAGE*(RING-1)}")
    k(f"s_mov_b32 s{S_RD}, 0")
    for i in range(5):
        S = S_W + 4 * i
        k(f"s_add_u32 s51, s54, {i}")
        k("s_cmp_lt_u32 s51, 13")
        k(f"s_cselect_b32 s{S}, s6, s60")
        k(f"s_cselect_b32 s{S+1}, s7, s61")
        k("s_cselect_b32 s52, 6, 13")
        k("s_cmp_lt_u32 s51, 6")
        k(f"s_cselect_b32 s{S}, s4, s{S}")
        k(f"s_cselect_b32 s{S+1}, s5, s{S+1}")
        k(f"s_cselect_b32 s{S+2}, 6291456, s{S_C1}")
        k(f"s_mov_b32 s{S+3}, 0x00020000")
        k("s_cselect_b32 s52, 0, s52")
        k(f"s_cselect_b32 s{S_SSTR+i}, {32*6144}, s{S_C2}")
        k("s_sub_u32 s53, s51, s52")
        k("s_lshl_b32 s53, s53, 6")
        k("v_add_u32 v10, s53, v0")
        k("s_cmp_lt_u32 s51, 6")
        k(f"s_cbranch_scc1 L_k2_q{i}")
        k("v_mul_u32_u24 v11, 4682, v10")
        k("v_lshrrev_b32 v11, 16, v11")
        k("v_mul_u32_u24 v12, 14, v11")
        k("v_sub_u32 v12, v10, v12")
        k("v_mul_u32_u24 v11, 7168, v11")
        k("v_lshl_add_u32 v11, v12, 4, v11")
        k(f"v_add_u32 v{V_DMA+i}, s55, v11")
        k(f"s_branch L_k2_qd{i}")
        k.lab(f"L_k2_q{i}")
        k("v_mul_u32_u24 v12, 5462, v10")
        k("v_lshrrev_b32 v12, 16, v12")
        k("v_mul_u32_u24 v13, 12, v12")
        k("v_sub_u32 v13, v10, v13")
        k("v_lshrrev_b32 v14, 2, v13")
        k("v_and_b32 v13, 3, v13")
        k("v_lshrrev_b32 v15, 1, v12")
        k("v_and_b32 v15, 2, v15")
        k("v_xor_b32 v13, v13, v15")
        k("v_mul_u32_u24 v12, 6144, v12")
        k("v_lshl_add_u32 v12, v14, 11, v12")
        k("v_lshl_add_u32 v12, v13, 4, v12")
        k(f"v_add_u32 v{V_DMA+i}, s56, v12")
        k.lab(f"L_k2_qd{i}")
        a, b, c = dma(i)
        k(a); k(b); k(c)

    def adv():
        for g in p_adv():
            for x in g:
                k(x)
        for x in ring_adv():
            k(x)

    def wgroup(st):
        for i in range(5):
            a, b, c = dma(i)
            k(a); k(b); k(c)
        adv()
        k(f"s_mov_b32 s{95 - st}, s{S_TOFF}")

    adv()
    k(f"s_mov_b32 s95, s{S_TOFF}")
    EARLY = XOPT.get("early1", True)
    if EARLY:
        wgroup(1)
    layernorm(k, (5 if EARLY else 0) + 5 + (2 if XOPT.get('tlb', True) else 0) + (1 if XOPT.get('ipf', True) else 0))
    if XOPT.get('wpf', True):
        w1_prefetch(k)
    if FINE: stamp(k, 2)
    k("v_lshrrev_b32 v10, 4, v0")
    k("v_bfe_u32 v11, v0, 2, 2")
    k("v_and_b32 v12, 3, v0")
    k("v_lshl_add_u32 v13, v10, 2, v11")
    k(f"v_mul_u32_u24 v{V_AG}, 224, v13")
    k(f"v_lshl_add_u32 v{V_AG}, v12, 3, v{V_AG}")
    k(f"v_mul_u32_u24 v{V_AQ0}, 192, v13")
    k("v_and_b32 v14, 1, v12")
    k(f"v_lshl_add_u32 v{V_AQ0}, v14, 3, v{V_AQ0}")
    k("v_lshrrev_b32 v14, 1, v12")
    k(f"v_lshl_add_u32 v{V_AQ0}, v14, 4, v{V_AQ0}")
    k("v_and_b32 v14, 1, v10")
    k(f"v_lshl_add_u32 v{V_AQ1}, v14, 5, 0")
    k(f"v_xor_b32 v15, 32, v{V_AQ1}")
    k(f"v_add_u32 v15, v15, v{V_AQ0}")
    k(f"v_add_u32 v{V_AQ0}, v{V_AQ1}, v{V_AQ0}")
    k(f"v_mov_b32 v{V_AQ1}, v15")
    for i in range(ACC_V0, 256):
        k(f"v_mov_b32 v{i}, 0")
    for i in range(80):
        k(f"v_accvgpr_write_b32 a{i}, 0")
    side_jobs_setup(k)
    if XOPT["side"] == "pro":
        k("s_mov_b64 s[56:57], s[76:77]")
        side_jobs_setup2(k)
        side_jobs_body(k)
        k("s_mov_b64 s[76:77], s[56:57]")
        k("s_mov_b32 s78, 256")
        k("s_lshl_b32 s51, s49, 5")
        k("v_mov_b32 v10, s51")
    def wrest():
        for st in range(2 if EARLY else 1, RING - 1):
            wgroup(st)
        k("s_lshl_b32 s51, s48, 11")
        k("s_add_u32 s56, s64, s51")
        k("s_addc_u32 s57, s65, 0")
        k("s_mov_b32 s58, 2048")
        k("s_mov_b32 s59, 0x00020000")
        k(f"s_mov_b32 m0, {WPHI_OFF}")
        k("s_nop 0")
        k(f"buffer_load_dwordx4 v{V_TOK}, s[56:59], 0 offen lds")
        k(f"buffer_load_dwordx4 v{V_TOK}, s[56:59], 0 offen offset:1024 lds")

    if XOPT.get("pollfirst", True):
        k("s_cmp_eq_u32 s47, 0")
        k("s_cbranch_scc1 L_k2_dopoll")
        save = list(k.L)
        wrest()
        body = k.L[len(save):]
        k("s_branch L_k2_nopoll")
        k.lab("L_k2_dopoll")
        k("s_mov_b32 s51, 200000")
        k.lab("L_k2_poll")
        k("buffer_load_dword v11, v10, s[76:79], 0 offen sc1")
        k("s_waitcnt vmcnt(0)")
        if XOPT.get("nonce", True):
            k("v_cmp_ne_u32 vcc, s88, v11")
            k.nop(1)
            k("s_cmp_eq_u64 vcc, 0")
        else:
            k("v_readfirstlane_b32 s52, v11")
            k.nop(1)
            k("s_cmp_ge_u32 s52, 32")
        k("s_cbranch_scc1 L_k2_polled")
        k("s_sub_u32 s51, s51, 1")
        k("s_cmp_eq_u32 s51, 0")
        k("s_cbranch_scc1 L_k2_polled")
        k(f"s_sleep {POLLS}")
        k("s_branch L_k2_poll")
        k.lab("L_k2_polled")
        pst(k, 5)
        k("s_barrier")
        if EARLY and not PSTAMP:
            for st in range(2):
                k(f"s_mov_b32 s{S_T0+1}, s{S_TOFF}")
                k(f"s_mov_b32 s{S_TOFF}, s{95 - st}")
                for t in range(4):
                    k(tokload(st, t)[0])
                k(f"s_mov_b32 s{S_TOFF}, s{S_T0+1}")
            for ln in body:
                k.L.append(ln)
            k(f"s_mov_b32 s{S_TOFF}, s93")
            for t in range(4):
                k(tokload(2, t)[0])
            k(f"s_mov_b32 s{S_TOFF}, s92")
            side_jobs_setup2(k)
            k("s_waitcnt vmcnt(20)")
            k("s_branch L_k2_join")
        else:
            for ln in body:
                k.L.append(ln)
            k("s_branch L_k2_go")
    else:
        wrest()
        k("s_cmp_eq_u32 s47, 0")
        k("s_cbranch_scc0 L_k2_nopoll")
        k("s_mov_b32 s51, 200000")
        if BACKOFF:
            k(f"s_sleep {BACKOFF}")
        k.lab("L_k2_poll")
        k("buffer_load_dword v11, v10, s[76:79], 0 offen sc1")
        k("s_waitcnt vmcnt(0)")
        if XOPT.get("nonce", True):
            k("v_cmp_ne_u32 vcc, s88, v11")
            k.nop(1)
            k("s_cmp_eq_u64 vcc, 0")
        else:
            k("v_readfirstlane_b32 s52, v11")
            k.nop(1)
            k("s_cmp_ge_u32 s52, 32")
        k("s_cbranch_scc1 L_k2_nopoll")
        k("s_sub_u32 s51, s51, 1")
        k("s_cmp_eq_u32 s51, 0")
        k("s_cbranch_scc1 L_k2_nopoll")
        k(f"s_sleep {POLLS}")
        k("s_branch L_k2_poll")

    k.lab("L_k2_nopoll")
    if not XOPT.get("pollfirst", True):
        pst(k, 5)
    k("s_barrier")
    k.lab("L_k2_go")
    if PSTAMP:
        k(f"s_add_u32 s56, s62, {(60 << 20)}")
        k("s_addc_u32 s57, s63, 0")
        k("s_mov_b32 s58, 65536")
        k("s_mov_b32 s59, 0x00020000")
        k("s_lshl_b32 s51, s2, 8")
        k("v_mov_b32 v10, s51")
        k("s_cmp_eq_u32 s47, 0")
        k("s_cbranch_scc0 L_k2_nops")
        k("s_mov_b64 exec, 1")
        for i in range(6):
            k(f"v_mov_b32 v11, s{80+i}")
            k(f"buffer_store_dword v11, v10, s[56:59], 0 offen offset:{128 + 4*i}")
        k("s_mov_b64 exec, -1")
        k.lab("L_k2_nops")
    for st in range(RING - 2):
        k(f"s_mov_b32 s{S_TOFF}, s{95 - st}")
        for t in range(4):
            k(tokload(st, t)[0])
    k(f"s_mov_b32 s{S_TOFF}, s{95 - (RING - 2)}")
    if XOPT["side"] != "pro":
        side_jobs_setup2(k)
    k(f"s_waitcnt vmcnt({8 if XOPT.get('early1', True) and not PSTAMP else 0})")
    k.lab("L_k2_join")
    k("s_barrier")
    for n in range(D):
        for x in frag_reads(n):
            k(x)


def layernorm(k, nyounger):
    from k1 import xreduce_add
    RED = WPHI_OFF + 2048
    pst(k, 0)
    k(f"s_waitcnt vmcnt({nyounger})")
    pst(k, 1)
    k("s_mov_b32 s51, 0xffff0000")
    for i in range(16):
        k(f"v_lshlrev_b32 v{32+2*i}, 16, v{16+i}")
        k(f"v_and_b32 v{33+2*i}, s51, v{16+i}")
    k("v_pk_add_f32 v[64:65], v[32:33], v[34:35]")
    k("v_pk_add_f32 v[66:67], v[36:37], v[38:39]")
    for i in range(4, 16, 2):
        k(f"v_pk_add_f32 v[64:65], v[64:65], v[{32+2*i}:{33+2*i}]")
        k(f"v_pk_add_f32 v[66:67], v[66:67], v[{34+2*i}:{35+2*i}]")
    k("v_and_b32 v68, 7, v0")
    k("v_lshlrev_b32 v68, 4, v68")
    k(f"v_add_u32 v68, {RED}, v68")
    k("s_lshl_b32 s52, s47, 2")
    k("v_add_u32 v69, s52, v68")

    def reduce(off):
        k("v_pk_add_f32 v[64:65], v[64:65], v[66:67]")
        k("v_add_f32 v64, v64, v65")
        k.nop(2)
        k("v_add_f32_dpp v64, v64, v64 row_ror:8 row_mask:0xf bank_mask:0xf")
        xreduce_add(k, 64, 65)
        k(f"ds_write_b32 v69, v64 offset:{off}")
        k("s_waitcnt lgkmcnt(0)")
        k("s_barrier")
        k(f"ds_read_b128 v[64:67], v68 offset:{off}")
        k("s_waitcnt lgkmcnt(0)")
        k("v_pk_add_f32 v[64:65], v[64:65], v[66:67]")
        k("v_add_f32 v64, v64, v65")

    reduce(0)
    k("v_mul_f32 v64, 0xba800000, v64")
    for i in range(16):
        k(f"v_pk_add_f32 v[{32+2*i}:{33+2*i}], v[{32+2*i}:{33+2*i}], v[64:65] op_sel_hi:[1,0]")
    k("v_pk_mul_f32 v[64:65], v[32:33], v[32:33]")
    k("v_pk_mul_f32 v[66:67], v[34:35], v[34:35]")
    for i in range(2, 16, 2):
        k(f"v_pk_fma_f32 v[64:65], v[{32+2*i}:{33+2*i}], v[{32+2*i}:{33+2*i}], v[64:65]")
        k(f"v_pk_fma_f32 v[66:67], v[{34+2*i}:{35+2*i}], v[{34+2*i}:{35+2*i}], v[66:67]")
    reduce(128)
    k("v_mov_b32 v65, 0x3727c5ac")
    k("v_fmac_f32 v65, 0x3a800000, v64")
    k("v_rsq_f32 v64, v65")
    k.nop(1)
    for i in range(16):
        k(f"v_pk_mul_f32 v[{32+2*i}:{33+2*i}], v[{32+2*i}:{33+2*i}], v[64:65] op_sel_hi:[1,0]")
    for i in range(16):
        k(f"v_cvt_pk_bf16_f32 v{16+i}, v{32+2*i}, v{33+2*i}")
    pst(k, 2)
    k("v_lshrrev_b32 v70, 5, v0")
    k("v_lshlrev_b32 v70, 12, v70")
    k("v_bfe_u32 v71, v0, 3, 1")
    k("v_lshl_add_u32 v70, v71, 9, v70")
    k("v_bfe_u32 v71, v0, 4, 1")
    k("v_lshl_add_u32 v70, v71, 3, v70")
    k("v_and_b32 v71, 7, v0")
    k("v_lshl_add_u32 v70, v71, 4, v70")
    k(f"s_add_u32 s56, s62, {XN_OFF}")
    k("s_addc_u32 s57, s63, 0")
    k("s_mov_b32 s58, 4194304")
    k("s_mov_b32 s59, 0x00020000")
    k("s_lshl_b32 s51, s49, 2")
    k("s_lshr_b32 s52, s48, 3")
    k("s_add_u32 s51, s51, s52")
    k("s_lshl_b32 s51, s51, 17")
    k("s_lshl_b32 s52, s47, 15")
    k("s_add_u32 s51, s51, s52")
    k("s_bfe_u32 s52, s48, 0x20001")
    k("s_lshl_b32 s52, s52, 10")
    k("s_add_u32 s51, s51, s52")
    k("s_and_b32 s52, s48, 1")
    k("s_lshl_b32 s52, s52, 7")
    k("s_add_u32 s51, s51, s52")
    for i in range(4):
        b = 16 + 4 * i
        k(f"buffer_store_dwordx2 v[{b}:{b+1}], v70, s[56:59], s51 offen sc1")
        k(f"buffer_store_dwordx2 v[{b+2}:{b+3}], v70, s[56:59], s51 offen offset:256 sc1")
        if i < 3:
            k("s_add_u32 s51, s51, 8192")


NCLR = 0
BACKOFF = 20
POLLS = 8

def w1_prefetch(k):
    k("s_lshr_b32 s51, s2, 3")
    k("s_lshl_b32 s51, s51, 5")
    k("s_lshl_b32 s52, s47, 3")
    k("s_add_u32 s51, s51, s52")
    k("s_and_b32 s52, s2, 7")
    k("v_mul_u32_u24 v72, 10923, v0")
    k("v_lshrrev_b32 v72, 16, v72")
    k("v_mul_u32_u24 v73, 6, v72")
    k("v_sub_u32 v73, v0, v73")
    k("v_mul_u32_u24 v72, 6144, v72")
    k("v_lshrrev_b32 v74, 1, v73")
    k("v_lshl_add_u32 v72, v74, 11, v72")
    k("v_and_b32 v73, 1, v73")
    k("v_lshl_add_u32 v72, v73, 7, v72")
    k("s_mul_i32 s53, s51, 6144")
    k("s_lshl_b32 s54, s52, 8")
    k("s_add_u32 s53, s53, s54")
    k("s_mov_b32 s56, s4"); k("s_mov_b32 s57, s5"); k("s_mov_b32 s58, 6291456"); k("s_mov_b32 s59, 0x00020000")
    k("v_cmp_gt_u32 vcc, 48, v0")
    k("s_and_saveexec_b64 s[86:87], vcc")
    k("buffer_load_dword a248, v72, s[56:59], s53 offen")
    k("s_mov_b64 exec, s[86:87]")
    k("v_mul_u32_u24 v72, 9363, v0")
    k("v_lshrrev_b32 v72, 16, v72")
    k("v_mul_u32_u24 v73, 7, v72")
    k("v_sub_u32 v73, v0, v73")
    k("v_mul_u32_u24 v72, 7168, v72")
    k("v_lshl_add_u32 v72, v73, 7, v72")
    k("s_mul_i32 s53, s51, 7168")
    k("s_mul_i32 s54, s52, 896")
    k("s_add_u32 s53, s53, s54")
    k("v_cmp_gt_u32 vcc, 56, v0")
    k("s_and_saveexec_b64 s[86:87], vcc")
    k("s_mov_b32 s56, s6"); k("s_mov_b32 s57, s7"); k("s_mov_b32 s58, 7340032")
    k("buffer_load_dword a249, v72, s[56:59], s53 offen")
    k("s_mov_b32 s56, s60"); k("s_mov_b32 s57, s61")
    k("buffer_load_dword a250, v72, s[56:59], s53 offen")
    k("s_mov_b64 exec, s[86:87]")


def ln_publish(k):
    from k1 import FLG_OFF
    NFL = FLG_OFF + 49152
    if not XOPT.get("nonce", True):
        k("s_mov_b32 s78, 256")
        k("s_mov_b32 s79, 0x00020000")
        k("s_lshl_b32 s51, s49, 5")
        k("v_mov_b32 v10, s51")
        k("v_mov_b32 v11, 1")
    k("s_cmp_lt_u32 s2, 8")
    k("s_cbranch_scc0 L_k2_noclr")
    k(f"s_add_u32 s56, s62, {FLG_OFF + 32768}")
    k("s_addc_u32 s57, s63, 0")
    k("s_mov_b32 s58, 8192")
    k("s_mov_b32 s59, 0x00020000")
    k("s_lshl_b32 s51, s2, 10")
    k("v_mov_b32 v12, s51")
    k("v_mov_b32 v13, 0")
    k("buffer_store_dword v13, v12, s[56:59], 0 offen")
    k.lab("L_k2_noclr")
    pst(k, 3)
    if XOPT.get("nonce", True):
        k("s_cmp_eq_u32 s47, 0")
        k("s_cbranch_scc0 L_k2_tagdone")
        k("v_mov_b32 v10, 252")
        k("s_mov_b32 s51, 200000")
        k.lab("L_k2_tag")
        k("buffer_load_dword v11, v10, s[76:79], 0 offen sc1")
        k("s_waitcnt vmcnt(0)")
        k("v_readfirstlane_b32 s88, v11")
        k.nop(1)
        k("s_cmp_lg_u32 s88, 0")
        k("s_cbranch_scc1 L_k2_tagdone")
        k("s_sub_u32 s51, s51, 1")
        k("s_cmp_eq_u32 s51, 0")
        k("s_cbranch_scc0 L_k2_tag")
        k.lab("L_k2_tagdone")
    k("s_waitcnt vmcnt(0)")
    pst(k, 4)
    k("s_barrier")
    k("s_cmp_eq_u32 s47, 0")
    k("s_cbranch_scc0 L_k2_nopub")
    if XOPT.get("nonce", True):
        k(f"s_add_u32 s76, s62, {NFL}")
        k("s_addc_u32 s77, s63, 0")
        k("s_mov_b32 s78, 8192")
        k(f"s_lshl_b32 s51, s49, 10")
        k(f"s_lshl_b32 s52, s48, 2")
        k("s_add_u32 s52, s52, s51")
        k("v_mov_b32 v10, s52")
        k("v_mov_b32 v11, s88")
        k("s_mov_b64 exec, 1")
        k("buffer_store_dword v11, v10, s[76:79], 0 offen sc1")
        k("s_mov_b64 exec, -1")
        k("v_and_b32 v10, 31, v0")
        k("v_lshlrev_b32 v10, 2, v10")
        k("v_add_u32 v10, s51, v10")
    else:
        k("s_mov_b64 exec, 1")
        k("buffer_atomic_add v11, v10, s[76:79], 0 offen")
        k("s_mov_b64 exec, -1")
    k.lab("L_k2_nopub")


def side_jobs_setup(k):
    ln_publish(k)


def side_jobs_setup2(k):
    from k1 import XCH_OFF
    k("s_load_dwordx2 s[76:77], s[0:1], 56")
    k("s_load_dwordx2 s[80:81], s[0:1], 24")
    k("s_lshl_b32 s52, s2, 2")
    k(f"s_add_u32 s52, s52, s{S_WAVE}")
    k("v_lshlrev_b32 v10, 7, v0")
    k("v_and_b32 v11, 0x7ff, v10")
    k("s_mov_b32 s78, 7340032")
    k("s_mov_b32 s79, 0x00020000")
    k("s_mov_b32 s82, 2097152")
    k("s_mov_b32 s83, 0x00020000")
    k(f"s_mul_i32 s74, s52, {56 * 128}")
    k("s_lshl_b32 s75, s52, 11")
    k(f"s_add_u32 s84, s62, {XCH_OFF}")
    k("s_addc_u32 s85, s63, 0")
    k(f"s_mov_b32 s86, {4 << 20}")
    k("s_mov_b32 s87, 0x00020000")
    k("s_lshl_b32 s88, s52, 12")
    k("s_lshr_b32 s89, s2, 3")
    k("s_mul_i32 s52, s89, 43")
    k("s_lshr_b32 s52, s52, 8")
    k("s_mul_i32 s52, s52, 6")
    k("s_sub_u32 s89, s89, s52")
    k("s_add_u32 s89, s89, 1")
    for q in range(4):
        k(f"v_mov_b32 v{12+q}, -1")
    k("s_waitcnt lgkmcnt(0)")


def side_jobs_body(k):
    k("buffer_load_dword a252, v10, s[76:79], s74 offen")
    k("buffer_load_dword a253, v11, s[80:83], s75 offen")
    for q in range(4):
        k(f"buffer_store_dwordx4 v[12:15], v{V_TOK}, s[84:87], s88 offen offset:{1024 * q} sc1")


def side_jobs(k):
    k(f"s_cmp_eq_u32 s{S_CNT}, s89")
    k("s_cbranch_scc0 L_k2_noside")
    side_jobs_body(k)
    k.lab("L_k2_noside")


DH = 6


def step_half(k, setn, tail, tiles, second, nside):
    D = DH
    fill = {m: [] for m in range(40)}
    last = (tail == 3)
    for n in range(20):
        nn = n + D
        if last and nn >= 20:
            continue
        rd = frag_reads(nn % 20)
        fill[2 * n].append(rd[0])
        fill[2 * n + 1].append(rd[1])
    if not second:
        if tail == 0:
            for t in range(4):
                fill[3 + 4 * t].append(tokload((setn + RING - 2) % NS, t)[0])
            if XOPT["side"] == "tail":
                fill[21].append("buffer_load_dword a252, v10, s[76:79], s74 offen")
                fill[25].append("buffer_load_dword a253, v11, s[80:83], s75 offen")
        if tail == 1 and XOPT["side"] == "tail":
            for q in range(4):
                fill[5 + 8 * q].append(f"buffer_store_dwordx4 v[12:15], v{V_TOK}, s[84:87], s88 offen offset:{1024 * q} sc1")
    if not last:
        cur, nxt = (28 + tail) % RING, (29 + tail) % RING
        delta = ((nxt - cur) * STAGE) & 0xffffffff
        fill[1].append(f"v_add_u32 v{V_AQ0}, {delta}, v{V_AQ0}")
        fill[3].append(f"v_add_u32 v{V_AQ1}, {delta}, v{V_AQ1}")
        fill[2 * (19 - D) + 3].append(f"v_add_u32 v{V_AG}, {delta}, v{V_AG}")
    for n in range(20):
        if last and n + D > 20:
            k(f"s_waitcnt lgkmcnt({2 * (19 - n)})")
        else:
            k(f"s_waitcnt lgkmcnt({2 * (D - 1)})")
        for i, t in enumerate(tiles if n % 2 == 0 or not XOPT.get("snake", False) else tiles[::-1]):
            k(mfma(n, t, setn))
            for x in fill[2 * n + i]:
                k(x)


def step(k, setn, D, sched=None, tail=None, tiles=(0, 1, 2, 3), second=False):
    nside = [2, 4, 0, 0] if XOPT["side"] == "tail" else [0, 0, 0, 0]
    if second:
        pass
    elif tail is None and setn == 1 and XOPT.get("early1", True):
        k("s_waitcnt vmcnt(13)")
    elif tail is None or tail == 0:
        k(f"s_waitcnt vmcnt({9 * (RING - 3)})")
    elif tail == 1:
        k(f"s_waitcnt vmcnt({9 + 4 + nside[0]})")
    elif tail == 2:
        k(f"s_waitcnt vmcnt({4 + nside[0] + nside[1]})")
    else:
        k(f"s_waitcnt vmcnt({nside[0] + nside[1] + (4 if XOPT.get('tlb', True) else 0)})")
    if XOPT["bar"] and not second:
        k("s_barrier")
    if len(tiles) != 4:
        return step_half(k, setn, tail, tiles, second, nside)
    fill = {m: [] for m in range(80)}
    for n in range(20):
        nn = n + D
        if tail == 3 and nn >= 20:
            continue
        rd = frag_reads(nn % 20)
        fill[4 * n + 0].append(rd[0])
        fill[4 * n + 2].append(rd[1])
    for i in range(5 if tail is None else 0):
        a, b, c = dma(i)
        m = 4 * (2 * i + 1)
        fill[m - 1].append(b)
        fill[m + 1].append(a)
        fill[m + 3].append(c)
    if tail is None or tail == 0:
        for t in range(4):
            fill[4 * (2 + 2 * t) + 1 if tail == 0 else 4 * (11 + 2 * t) + 1].append(tokload((setn + RING - 2) % NS, t)[0])
    if tail is None:
        pa = p_adv()
        fill[73] += pa[0]; fill[75] += pa[1]
        ra = ring_adv()
        fill[77] += ra
    if tail == 0 and XOPT["side"] == "tail":
        fill[45].append("buffer_load_dword a252, v10, s[76:79], s74 offen")
        fill[53].append("buffer_load_dword a253, v11, s[80:83], s75 offen")
    if tail == 2 and XOPT.get("tlb", True):
        from k1 import A2_OFF, PHIQ_OFF, KVP_OFF
        fill[1] += ["v_mov_b32 v12, 0", "s_mov_b32 s12, s62", "s_mov_b32 s13, s63", f"s_mov_b32 s14, {64 << 20}", "s_mov_b32 s15, 0x00020000"]
        fill[5] += [f"s_lshl_b32 s16, s{S_R}, 4", f"s_lshl_b32 s17, s{S_WAVE}, 2", "s_add_u32 s16, s16, s17",
                    f"s_mul_i32 s16, s16, {144 * 1024}", f"s_add_u32 s16, s16, {A2_OFF}"]
        fill[9] += ["buffer_load_dword a250, v12, s[12:15], s16 offen"]
        fill[13] += [f"s_add_u32 s16, s16, {3 * 144 * 1024}"]
        fill[17] += ["buffer_load_dword a250, v12, s[12:15], s16 offen"]
        fill[21] += [f"s_lshl_b32 s16, s{S_J}, 18", f"s_add_u32 s16, s16, {PHIQ_OFF}", f"s_lshl_b32 s17, s{S_R}, 15", "s_add_u32 s16, s16, s17"]
        fill[25] += ["buffer_load_dword a251, v12, s[12:15], s16 offen"]
        fill[29] += [f"s_lshl_b32 s16, s{S_J}, 16", f"s_add_u32 s16, s16, {KVP_OFF}"]
        fill[33] += ["buffer_load_dword a251, v12, s[12:15], s16 offen"]
    if tail == 1 and XOPT["side"] == "tail":
        for q in range(4):
            fill[9 + 16 * q].append(f"buffer_store_dwordx4 v[12:15], v{V_TOK}, s[84:87], s88 offen offset:{1024 * q} sc1")
    fill[31].append(f"s_cmp_eq_u32 s{S_RD}, {STAGE*(RING-1)}")
    fill[31].append(f"s_cselect_b32 s{S_DELTA}, s{S_NEG}, s{S_POS}")
    fill[35].append(f"s_add_u32 s{S_RD}, s{S_RD}, s{S_DELTA}")
    fill[37].append(f"v_add_u32 v{V_AQ0}, s{S_DELTA}, v{V_AQ0}")
    fill[39].append(f"v_add_u32 v{V_AQ1}, s{S_DELTA}, v{V_AQ1}")
    g = 20 - D
    fill[4 * (19 - D) + 3].append(f"v_add_u32 v{V_AG}, s{S_DELTA}, v{V_AG}")
    for n in range(20):
        if tail == 3 and n + D > 20:
            k(f"s_waitcnt lgkmcnt({2 * (19 - n)})")
        elif XOPT["halfwait"]:
            if n % 2 == 0:
                k(f"s_waitcnt lgkmcnt({2 * (D - 2)})")
        else:
            k(f"s_waitcnt lgkmcnt({2 * (D - 1)})")
        for tt_ in range(4):
            m = 4 * n + tt_
            t = (3 - tt_) if (XOPT.get("snake", False) and n % 2 == 1) else tt_
            k(mfma(n, t, setn))
            for x in fill[m]:
                if x.startswith("ds_read") and (not XOPT["lds"] or (XOPT["ldsfrac"] == 2 and n % 2 == 1)): continue
                if x.endswith(" lds") and not XOPT["dma"]: continue
                if x.startswith("buffer_load_dwordx4 a") and not XOPT["tok"]: continue
                k(x)


def debug_epilogue(k):
    k("s_waitcnt vmcnt(0) lgkmcnt(0)")
    k.nop(16)
    k("s_lshl_b32 s51, s2, 2")
    k("s_add_u32 s51, s51, s47")
    k("s_mul_i32 s51, s51, 81920")
    k(f"s_add_u32 s8, s62, {DBG_OFF}")
    k("s_addc_u32 s9, s63, 0")
    k("s_add_u32 s8, s8, s51")
    k("s_addc_u32 s9, s9, 0")
    k("s_mov_b32 s10, 81920")
    k("s_mov_b32 s11, 0x00020000")
    k("s_mov_b32 s52, 0")
    for n in range(20):
        for t in range(4):
            k(f"buffer_store_dwordx4 {acc(n, t)}, v{V_TOK}, s[8:11], s52 offen")
            k("s_add_u32 s52, s52, 1024")


STAMP_OFF = 60 << 20
def stamp(k, i):
    k("s_memtime s[100:101]")
    k("s_memrealtime s[98:99]")
    k("s_waitcnt lgkmcnt(0)")
    k(f"s_mov_b32 s{90+2*i}, s100")
    k(f"s_mov_b32 s{91+2*i}, s98")

def stamp_store(k, n, wsreg=62, kid=0):
    k(f"s_add_u32 s8, s{wsreg}, {STAMP_OFF + kid * 65536}")
    k(f"s_addc_u32 s9, s{wsreg+1}, 0")
    k("s_mov_b32 s10, 65536")
    k("s_mov_b32 s11, 0x00020000")
    k("s_lshl_b32 s51, s2, 8")
    k("v_mov_b32 v10, s51")
    k("v_cmp_eq_u32 vcc, 0, v0")
    k(f"s_and_saveexec_b64 s[52:53], vcc")
    k("s_cmp_eq_u32 s47, 0")
    k("s_cbranch_scc0 L_nostamp")
    for i in range(n):
        k(f"v_mov_b32 v11, s{90+2*i}")
        k(f"v_mov_b32 v12, s{91+2*i}")
        k(f"buffer_store_dword v11, v10, s[8:11], 0 offen offset:{8*i}")
        k(f"buffer_store_dword v12, v10, s[8:11], 0 offen offset:{8*i+4}")
    k.lab("L_nostamp")
    k("s_mov_b64 exec, s[52:53]")

def tail_split(k, D):
    import k2e
    first = True
    for s in range(4):
        if s == 0:
            for n in (4, 5):
                for x in frag_reads(n):
                    k(x)
        step(k, s, D, tail=s, tiles=(0, 1))
    k.nop(8)
    k2e.h_setup(k)
    k2e.h_tiles(k, (0, 1))
    cur, tgt = 31 % RING, 28 % RING
    delta = ((tgt - cur) * STAGE) & 0xffffffff
    for r in (V_AQ0, V_AQ1, V_AG):
        k(f"v_add_u32 v{r}, {delta}, v{r}")
    for n in range(DH):
        for x in frag_reads(n):
            k(x)
    for s in range(4):
        step(k, s, D, tail=s, tiles=(2, 3), second=True)


def gen_k2(D=4, debug=False, epilogue=None, stamps=False, stepfn=None):
    k = Kern("k2_gemm1_kernel")
    if stamps:
        stamp(k, 0)
    prologue(k, D)
    if stamps and FINE:
        stamp(k, 4)
        stamp_store(k, 5)
        k("s_endpgm")
    if stamps:
        stamp(k, 1)
        k("s_nop 0")
        for n in range(D):
            pass
    k(f"s_mov_b32 s{S_CNT}, 0")
    k.lab("L_k2_loop")
    if XOPT['side'] is True:
        side_jobs(k)
    for s in range(NS):
        (stepfn or step)(k, s, D)
    k(f"s_add_u32 s{S_CNT}, s{S_CNT}, 1")
    k(f"s_cmp_lt_u32 s{S_CNT}, {32 // NS - 1}")
    k("s_cbranch_scc1 L_k2_loop")
    if XOPT.get("split_tail", True):
        assert DH == 6 and D == 4
        tail_split(k, D)
    else:
        for s in range(NS):
            step(k, s, D, tail=s)
    if stamps:
        stamp(k, 2)
    if debug:
        debug_epilogue(k)
    elif epilogue:
        epilogue(k)
    if stamps:
        k("s_waitcnt vmcnt(0)")
        stamp(k, 3)
        stamp_store(k, 4)
    k.lab("L_k2_end")
    k("s_endpgm")
    nv = 256 + 254
    return k, descriptor("k2_gemm1_kernel", nv, 256), f"; @launch kernel=k2_gemm1_kernel grid=(256,1,1) block=(256,1,1) lds={STAGE*RING + 4096}"
```

```python
from dsl import *
from k1 import XN_OFF, A2_OFF, PHIQ_OFF, KVP_OFF, ZP_OFF, XCH_OFF
import k2
from k2 import V_TOK, WPHI_OFF, S_WAVE, S_J, S_R

A2_TT = 144 * 1024
LOG2E = 0x3fb8aa3b
POL = ''
QB = [16, 96, 176, 200]
XR = [40, 48, 56, 64]
ER = [120, 128, 136, 144]
ST = [72, 76, 80, 84]
WP0, WP1, SEL0, SEL1, ONES = 224, 228, 232, 236, 240
S_L2E = 74
S_SRD = 8
S_SRD2 = 12


def h_setup(k):
    k(f"s_add_u32 s8, s62, {A2_OFF}")
    k("s_addc_u32 s9, s63, 0")
    k(f"s_mov_b32 s10, {128 * A2_TT}")
    k("s_mov_b32 s11, 0x00020000")
    k(f"s_lshl_b32 s52, s{S_R}, 4")
    k(f"s_lshl_b32 s53, s{S_WAVE}, 2")
    k("s_add_u32 s52, s52, s53")
    k(f"s_mul_i32 s53, s{S_J}, 7")
    k("s_lshr_b32 s53, s53, 1")
    k("s_add_u32 s53, s53, 32")
    k("s_lshl_b32 s53, s53, 10")
    k(f"s_mul_i32 s54, s52, {A2_TT}")
    k("s_add_u32 s54, s54, s53")


def h_tiles(k, tiles):
    def compute(H, srcs):
        for u in range(7):
            G, U = srcs[u]
            for jj in range(4):
                k(f"v_max_f32 v{G+jj}, 0, v{G+jj}")
            k(f"v_pk_mul_f32 v[{G}:{G+1}], v[{G}:{G+1}], v[{U}:{U+1}]")
            k(f"v_pk_mul_f32 v[{G+2}:{G+3}], v[{G+2}:{G+3}], v[{U+2}:{U+3}]")
            k(f"v_cvt_pk_bf16_f32 v{H+2*u}, v{G}, v{G+1}")
            k(f"v_cvt_pk_bf16_f32 v{H+2*u+1}, v{G+2}, v{G+3}")

    def stores(H, t):
        k(f"s_bitcmp1_b32 s{S_J}, 0")
        k(f"s_cbranch_scc1 L_hodd{t}")
        k(f"buffer_store_dwordx4 v[{H}:{H+3}], v{V_TOK}, s[8:11], s54 offen{POL}")
        k(f"buffer_store_dwordx4 v[{H+4}:{H+7}], v{V_TOK}, s[8:11], s54 offen offset:1024{POL}")
        k(f"buffer_store_dwordx4 v[{H+8}:{H+11}], v{V_TOK}, s[8:11], s54 offen offset:2048{POL}")
        k(f"buffer_store_dwordx2 v[{H+12}:{H+13}], v{V_TOK}, s[8:11], s54 offen offset:3072{POL}")
        k(f"s_branch L_hdone{t}")
        k.lab(f"L_hodd{t}")
        k(f"buffer_store_dwordx2 v[{H}:{H+1}], v{V_TOK}, s[8:11], s54 offen offset:8{POL}")
        k(f"buffer_store_dwordx4 v[{H+2}:{H+5}], v{V_TOK}, s[8:11], s54 offen offset:1024{POL}")
        k(f"buffer_store_dwordx4 v[{H+6}:{H+9}], v{V_TOK}, s[8:11], s54 offen offset:2048{POL}")
        k(f"buffer_store_dwordx4 v[{H+10}:{H+13}], v{V_TOK}, s[8:11], s54 offen offset:3072{POL}")
        k.lab(f"L_hdone{t}")
        k(f"s_add_u32 s54, s54, {A2_TT}")

    for t in tiles:
        if t < 3:
            base = 16 + 80 * t
            srcs = [(base + 24 + 8 * u, base + 28 + 8 * u) for u in range(7)]
            compute(base + 24, srcs)
            stores(base + 24, t)
        else:
            H = 40
            srcs = []
            for u in range(5):
                for q in range(8):
                    k(f"v_accvgpr_read_b32 v{56+8*u+q}, a{24+8*u+q}")
                srcs.append((56 + 8 * u, 60 + 8 * u))
            for u in range(5, 7):
                for q in range(8):
                    k(f"v_accvgpr_read_b32 v{136+8*(u-5)+q}, a{24+8*u+q}")
                srcs.append((136 + 8 * (u - 5), 140 + 8 * (u - 5)))
            compute(H, srcs)
            stores(H, 3)
            for q in range(24):
                k(f"v_accvgpr_read_b32 v{200+q}, a{q}")


def h_part(k):
    if k2.XOPT.get("split_tail", True):
        h_tiles(k, (2, 3))
    else:
        h_setup(k)
        h_tiles(k, (0, 1, 2, 3))


def consts(k):
    k("v_lshrrev_b32 v10, 4, v0")
    k("v_bfe_u32 v11, v0, 2, 2")
    k("v_and_b32 v12, 3, v0")
    k("v_lshl_add_u32 v13, v10, 2, v11")
    k("v_lshlrev_b32 v13, 6, v13")
    k("v_lshl_add_u32 v13, v12, 3, v13")
    k(f"v_add_u32 v13, {WPHI_OFF}, v13")
    for ft, W in ((0, WP0), (1, WP1)):
        for t in range(2):
            k(f"ds_read_b64_tr_b16 v[{W+2*t}:{W+2*t+1}], v13 offset:{t*1024 + ft*32}")
    k("v_and_b32 v12, 15, v0")
    k("v_lshlrev_b32 v11, 2, v10")
    k("v_sub_u32 v12, v12, v11")
    k("v_mov_b32 v14, 0x3f80")
    k("v_mov_b32 v15, 0x3f800000")
    for rg, (dl, dh) in enumerate(((0, 1), (2, 3))):
        k(f"v_cmp_eq_u32 vcc, {dl}, v12")
        k.nop(2)
        k(f"v_cndmask_b32 v{SEL0+rg}, 0, v14, vcc")
        k(f"v_cmp_eq_u32 vcc, {dh}, v12")
        k.nop(2)
        k(f"v_cndmask_b32 v{SEL0+rg}, v{SEL0+rg}, v15, vcc")
    k(f"v_mov_b32 v{SEL0+2}, 0")
    k(f"v_mov_b32 v{SEL0+3}, 0")
    k(f"v_mov_b32 v{SEL1}, 0")
    k(f"v_mov_b32 v{SEL1+1}, 0")
    k(f"v_mov_b32 v{SEL1+2}, v{SEL0}")
    k(f"v_mov_b32 v{SEL1+3}, v{SEL0+1}")
    for q in range(4):
        k(f"v_mov_b32 v{ONES+q}, 0x3f803f80")
    k(f"s_mov_b32 s{S_L2E}, {LOG2E}")
    k(f"s_mov_b32 s{S_L2E+1}, {LOG2E}")
    k(f"s_mov_b32 s{S_L2E+2}, {LOG2E | 0x80000000}")
    k(f"s_mov_b32 s{S_L2E+3}, {LOG2E | 0x80000000}")
    k("s_waitcnt lgkmcnt(0)")


def features(k, o, proj_only=False):
    for t in range(4):
        b = QB[t] + o
        for q in range(4):
            k(f"v_cvt_pk_bf16_f32 v{b+q}, v{b+2*q}, v{b+2*q+1}")
    k.nop(1)
    for t in range(4):
        b = QB[t] + o
        X = XR[t]
        k(f"v_mfma_f32_16x16x32_bf16 v[{X}:{X+3}], v[{WP0}:{WP0+3}], v[{b}:{b+3}], 0")
        k(f"v_mfma_f32_16x16x32_bf16 v[{X+4}:{X+7}], v[{WP1}:{WP1+3}], v[{b}:{b+3}], 0")
    k.nop(2)
    if proj_only:
        k.nop(6)
        for t in range(4):
            X = XR[t]
            for q in range(4):
                k(f"v_cvt_pk_bf16_f32 v{X+q}, v{X+2*q}, v{X+2*q+1}")
        return
    for t in range(4):
        X, a, b = XR[t], ST[t], ST[t] + 1
        if t == 0:
            k.nop(2)
        k(f"v_max3_f32 v{a}, v{X}, v{X+1}, v{X+2}")
        k(f"v_max3_f32 v{b}, -v{X}, -v{X+1}, -v{X+2}")
        k(f"v_max3_f32 v{a}, v{a}, v{X+3}, v{X+3}")
        k(f"v_max3_f32 v{b}, v{b}, -v{X+3}, -v{X+3}")
        if t == 0:
            k.nop(2)
    for t in range(4):
        X, a, b = XR[t], ST[t], ST[t] + 1
        k(f"v_max3_f32 v{a}, v{a}, v{X+4}, v{X+5}")
        k(f"v_max3_f32 v{b}, v{b}, -v{X+4}, -v{X+5}")
        k(f"v_max3_f32 v{a}, v{a}, v{X+6}, v{X+7}")
        k(f"v_max3_f32 v{b}, v{b}, -v{X+6}, -v{X+7}")
    for t in range(4):
        a, b = ST[t], ST[t] + 1
        k(f"v_permlane16_swap_b32 v{a}, v{b}")
    for t in range(4):
        a, b, c = ST[t], ST[t] + 1, ST[t] + 2
        k(f"v_max_f32 v{a}, v{a}, v{b}")
        k(f"v_mov_b32 v{c}, v{a}")
    for t in range(4):
        a, c = ST[t], ST[t] + 2
        if t == 3:
            k.nop(1)
        k(f"v_permlane32_swap_b32 v{a}, v{c}")
    for t in range(4):
        a, b, c = ST[t], ST[t] + 1, ST[t] + 2
        k(f"v_max_f32 v{a}, v{a}, v{c}")
        k(f"v_mov_b32 v{c}, v{a}")
    for t in range(4):
        a, c = ST[t], ST[t] + 2
        if t == 3:
            k.nop(1)
        k(f"v_permlane16_swap_b32 v{a}, v{c}")
    for t in range(4):
        a, c = ST[t], ST[t] + 2
        k(f"v_mul_f32 v{a}, s{S_L2E+2}, v{a}")
        k(f"v_mul_f32 v{c}, s{S_L2E+2}, v{c}")
    for t in range(4):
        X, E, a, c = XR[t], ER[t], ST[t], ST[t] + 2
        for q in range(0, 8, 2):
            k(f"v_pk_fma_f32 v[{E+q}:{E+q+1}], v[{X+q}:{X+q+1}], s[{S_L2E+2}:{S_L2E+3}], v[{c}:{c+1}] op_sel_hi:[1,1,0]")
        for q in range(0, 8, 2):
            k(f"v_pk_fma_f32 v[{X+q}:{X+q+1}], v[{X+q}:{X+q+1}], s[{S_L2E}:{S_L2E+1}], v[{a}:{a+1}] op_sel_hi:[1,1,0]")
    for t in range(4):
        X, E = XR[t], ER[t]
        for q in range(8):
            k(f"v_exp_f32 v{X+q}, v{X+q}")
            k(f"v_exp_f32 v{E+q}, v{E+q}")
    for t in range(4):
        X, E = XR[t], ER[t]
        for q in range(4):
            k(f"v_cvt_pk_bf16_f32 v{X+q}, v{X+2*q}, v{X+2*q+1}")
        for q in range(4):
            k(f"v_cvt_pk_bf16_f32 v{E+q}, v{E+2*q}, v{E+2*q+1}")


def q_part(k):
    features(k, 0, proj_only=True)
    k(f"s_add_u32 s12, s62, {PHIQ_OFF}")
    k("s_addc_u32 s13, s63, 0")
    k(f"s_mov_b32 s14, {4 << 20}")
    k("s_mov_b32 s15, 0x00020000")
    k(f"s_lshl_b32 s53, s{S_J}, 17")
    k("s_lshl_b32 s55, s52, 10")
    k("s_add_u32 s53, s53, s55")
    for t in range(4):
        X = XR[t]
        k(f"buffer_store_dwordx4 v[{X}:{X+3}], v{V_TOK}, s[12:15], s53 offen offset:{1024*t}{POL}")
    k.nop(2)


def KV(s, ft, dt):
    i = s * 4 + ft * 2 + dt
    return [16, 96, 176][i // 4] + 4 * (i % 4) if i < 8 else None


def tileaddr(i):
    return QB[i // 4] + 4 * (i % 4)


def k_part(k):
    features(k, 8)
    first = True
    for p in range(2):
        t0, t1 = 2 * p, 2 * p + 1
        TT = {t0: 72, t1: 152}
        for t in (t0, t1):
            X, E, T = XR[t], ER[t], TT[t]
            for s, src in ((0, X), (1, E)):
                o = T + 12 * s
                k(f"v_mfma_f32_16x16x32_bf16 v[{o+8}:{o+11}], v[{src}:{src+3}], v[{ONES}:{ONES+3}], 0")
                k(f"v_mfma_f32_16x16x32_bf16 v[{o}:{o+3}], v[{src}:{src+3}], v[{SEL0}:{SEL0+3}], 0")
                k(f"v_mfma_f32_16x16x32_bf16 v[{o+4}:{o+7}], v[{src}:{src+3}], v[{SEL1}:{SEL1+3}], 0")
        VF = 244
        for dt in range(2):
            a0 = QB[t0] + 16 + 4 * dt
            a1 = QB[t1] + 16 + 4 * dt
            k(f"v_cvt_pk_bf16_f32 v{VF+4*dt}, v{a0}, v{a0+1}")
            k(f"v_cvt_pk_bf16_f32 v{VF+4*dt+1}, v{a0+2}, v{a0+3}")
            k(f"v_cvt_pk_bf16_f32 v{VF+4*dt+2}, v{a1}, v{a1+1}")
            k(f"v_cvt_pk_bf16_f32 v{VF+4*dt+3}, v{a1+2}, v{a1+3}")
        for t in (t0, t1):
            T = TT[t]
            for s in range(2):
                o = T + 12 * s
                for q in range(4):
                    k(f"v_rcp_f32 v{o+8+q}, v{o+8+q}")
        k.nop(1)
        PK = XR[t0]
        for ti, t in enumerate((t0, t1)):
            T = TT[t]
            for s in range(2):
                o = T + 12 * s
                for ft in range(2):
                    a = o + 4 * ft
                    k(f"v_pk_mul_f32 v[{a}:{a+1}], v[{a}:{a+1}], v[{o+8}:{o+9}]")
                    k(f"v_pk_mul_f32 v[{a+2}:{a+3}], v[{a+2}:{a+3}], v[{o+10}:{o+11}]")
        for ti, t in enumerate((t0, t1)):
            T = TT[t]
            for s in range(2):
                o = T + 12 * s
                for ft in range(2):
                    a = o + 4 * ft
                    d = PK + 8 * s + 4 * ft + 2 * ti
                    k(f"v_cvt_pk_bf16_f32 v{d}, v{a}, v{a+1}")
                    k(f"v_cvt_pk_bf16_f32 v{d+1}, v{a+2}, v{a+3}")
        k.nop(2)
        for s in range(2):
            for ft in range(2):
                A = PK + 8 * s + 4 * ft
                for dt in range(2):
                    c = tileaddr(s * 4 + ft * 2 + dt)
                    src = "0" if p == 0 else f"v[{c}:{c+3}]"
                    k(f"v_mfma_f32_16x16x32_bf16 v[{c}:{c+3}], v[{A}:{A+3}], v[{VF+4*dt}:{VF+4*dt+3}], {src}")
                c = tileaddr(8 + s * 2 + ft)
                src = "0" if p == 0 else f"v[{c}:{c+3}]"
                k(f"v_mfma_f32_16x16x32_bf16 v[{c}:{c+3}], v[{A}:{A+3}], v[{ONES}:{ONES+3}], {src}")
    k.nop(8)
    k(f"s_mul_i32 s53, s{S_WAVE}, 12288")
    k(f"v_add_u32 v10, s53, v{V_TOK}")
    for i in range(12):
        c = tileaddr(i)
        k(f"ds_write_b128 v10, v[{c}:{c+3}] offset:{i*1024}")
    k("s_waitcnt lgkmcnt(0)")
    k("s_barrier")
    k(f"s_lshr_b32 s53, s{S_WAVE}, 1")
    k("s_lshl_b32 s53, s53, 2")
    k(f"s_and_b32 s55, s{S_WAVE}, 1")
    k("s_add_u32 s53, s53, s55")
    k("s_lshl_b32 s53, s53, 10")
    k(f"v_add_u32 v10, s53, v{V_TOK}")
    k(f"s_add_u32 s53, s{S_WAVE}, 8")
    k("s_lshl_b32 s53, s53, 10")
    k(f"v_add_u32 v11, s53, v{V_TOK}")
    R = 40
    for ww in range(4):
        k(f"ds_read_b128 v[{R+12*ww}:{R+12*ww+3}], v10 offset:{ww*12288}")
        k(f"ds_read_b128 v[{R+12*ww+4}:{R+12*ww+7}], v10 offset:{ww*12288+2048}")
        k(f"ds_read_b128 v[{R+12*ww+8}:{R+12*ww+11}], v11 offset:{ww*12288}")
    k(f"s_lshl_b32 s53, s{S_J}, 3")
    k(f"s_add_u32 s53, s53, s{S_R}")
    k(f"s_add_u32 s8, s62, {KVP_OFF}")
    k("s_addc_u32 s9, s63, 0")
    k(f"s_mov_b32 s10, {1 << 20}")
    k("s_mov_b32 s11, 0x00020000")
    k(f"s_add_u32 s12, s62, {ZP_OFF}")
    k("s_addc_u32 s13, s63, 0")
    k(f"s_mov_b32 s14, {64 << 10}")
    k("s_mov_b32 s15, 0x00020000")
    k("s_lshl_b32 s55, s53, 12")
    k(f"s_lshl_b32 s56, s{S_WAVE}, 10")
    k("s_add_u32 s55, s55, s56")
    k("s_lshl_b32 s56, s53, 8")
    k(f"s_lshl_b32 s57, s{S_WAVE}, 6")
    k("s_add_u32 s56, s56, s57")
    k("v_lshrrev_b32 v12, 4, v0")
    k("v_lshlrev_b32 v12, 4, v12")
    k("s_waitcnt lgkmcnt(0)")
    for q in range(0, 12, 2):
        k(f"v_pk_add_f32 v[{R+q}:{R+q+1}], v[{R+q}:{R+q+1}], v[{R+12+q}:{R+13+q}]")
        k(f"v_pk_add_f32 v[{R+24+q}:{R+25+q}], v[{R+24+q}:{R+25+q}], v[{R+36+q}:{R+37+q}]")
    for q in range(0, 12, 2):
        k(f"v_pk_add_f32 v[{R+q}:{R+q+1}], v[{R+q}:{R+q+1}], v[{R+24+q}:{R+25+q}]")
    for q in range(4):
        k(f"v_cvt_pk_bf16_f32 v{R+q}, v{R+2*q}, v{R+2*q+1}")
    k(f"buffer_store_dwordx4 v[{R}:{R+3}], v{V_TOK}, s[8:11], s55 offen{POL}")
    k("s_mov_b32 exec_lo, 0x00010001")
    k("s_mov_b32 exec_hi, 0x00010001")
    k(f"buffer_store_dwordx4 v[{R+8}:{R+11}], v12, s[12:15], s56 offen")
    k("s_mov_b64 exec, -1")


OPT = dict(pf=True, sent=True)


def prefetch_w2(k):
    if not OPT["pf"]:
        k.nop(8)
        return
    k("s_load_dwordx2 s[12:13], s[0:1], 56")
    k("s_load_dwordx2 s[16:17], s[0:1], 24")
    k("s_lshl_b32 s52, s2, 2")
    k(f"s_add_u32 s52, s52, s{S_WAVE}")
    k("v_lshlrev_b32 v10, 7, v0")
    k("v_and_b32 v12, 0x7ff, v10")
    k("s_mov_b32 s14, 7340032")
    k("s_mov_b32 s15, 0x00020000")
    k("s_mov_b32 s18, 2097152")
    k("s_mov_b32 s19, 0x00020000")
    k(f"s_mul_i32 s53, s52, {56 * 128}")
    k("s_lshl_b32 s54, s52, 11")
    k("s_waitcnt lgkmcnt(0)")
    k("buffer_load_dword v11, v10, s[12:15], s53 offen")
    k("buffer_load_dword v13, v12, s[16:19], s54 offen")


def sentinel_stores(k):
    if not OPT["sent"]:
        return
    k(f"s_add_u32 s20, s62, {XCH_OFF}")
    k("s_addc_u32 s21, s63, 0")
    k(f"s_mov_b32 s22, {8 << 20}")
    k("s_mov_b32 s23, 0x00020000")
    k("s_lshl_b32 s55, s2, 2")
    k(f"s_add_u32 s55, s55, s{S_WAVE}")
    k("s_lshl_b32 s55, s55, 13")
    k("s_add_u32 s56, s55, 4096")
    for q in range(4):
        k(f"v_mov_b32 v{252+q}, -1")
    for h in range(2):
        for q in range(4):
            k(f"buffer_store_dwordx4 v[252:255], v{V_TOK}, s[20:23], s{55 + h} offen offset:{1024 * q}")


def epilogue(k):
    k("s_waitcnt lgkmcnt(0)")
    k("s_barrier")
    k.nop(8)
    h_part(k)
    consts(k)
    q_part(k)
    k_part(k)
```

```python
from dsl import *
from k1 import srd, XN_OFF, A2_OFF, PHIQ_OFF, KVP_OFF, ZP_OFF

STAGE = 20480
RING = 5
NS = 4
ROT = True
XOPT = dict(bar=True, halfwait=False, side=True, nosalu=False, lds=True, dma=True, tok=True, ldsfrac=1)
PD = RING - 2
NB = 10
DBG_OFF = 64 << 20
WPHI_OFF = STAGE * RING

V_TOK = 1
V_DMA = 2
V_AQ0, V_AQ1, V_AG = 7, 8, 9
ACC_V0 = 16
A_TOK = 80
A_WF = A_TOK + 16 * NS
NAGPR = A_WF + 4 * NB

S_XN = 8
S_W = 12
S_SOFF = 32
S_SSTR = 37
S_TOFF = 42
S_RING = 43
S_RLIM = 44
S_RD = 45
S_CNT = 46
S_WAVE = 47
S_J = 48
S_R = 49
S_DELTA = 50
S_T0 = 51
S_IDX, S_WB, S_ROT, S_P = 70, 71, 72, 73
S_NEG = 66
S_POS = 67
S_C1 = 68
S_C2 = 69


def acc(n, t):
    if t < 3:
        return vr(ACC_V0 + 80 * t + 4 * n, 4)
    return ar(4 * n, 4)


def tok(setn, t):
    return ar(A_TOK + 16 * setn + 4 * t, 4)


def wf(n):
    return A_WF + 4 * (n % NB)


def frag_reads(n):
    b = wf(n)
    out = []
    for t in range(2):
        if n < 6:
            m, hf = n >> 1, n & 1
            a = V_AQ1 if hf else V_AQ0
            off = t * 3072 + m * 64
        else:
            u, isu = (n - 6) >> 1, (n - 6) & 1
            a = V_AG
            off = 6144 + isu * 7168 + t * 3584 + u * 32
        out.append(f"ds_read_b64_tr_b16 {ar(b + 2 * t, 2)}, v{a} offset:{off}")
    return out


def mfma(n, t, setn):
    w = ar(wf(n), 4)
    x = tok(setn, t)
    c = acc(n, t)
    if n in (4, 5):
        return f"v_mfma_f32_16x16x32_bf16 {c}, {x}, {w}, {c}"
    return f"v_mfma_f32_16x16x32_bf16 {c}, {w}, {x}, {c}"


def dma(i):
    return [f"s_add_u32 m0, s{S_RING}, {i * 1024}",
            f"s_mul_i32 s{S_SOFF + i}, s{S_P}, s{S_SSTR + i}",
            f"buffer_load_dwordx4 v{V_DMA + i}, s[{S_W + 4 * i}:{S_W + 4 * i + 3}], s{S_SOFF + i} offen{XOPT.get('wpol', '')} lds"]


ORDER = "lead"
NLEAD = 2


def p_adv():
    if ORDER == "win":
        return [[f"s_lshl_b32 s{S_TOFF}, s{S_P}, 12",
                 f"s_add_u32 s{S_IDX}, s{S_IDX}, 1",
                 f"s_and_b32 s{S_IDX}, s{S_IDX}, 7"],
                [f"s_cmp_eq_u32 s{S_IDX}, s{S_ROT}",
                 f"s_cselect_b32 s{S_T0}, 8, 0",
                 f"s_add_u32 s{S_WB}, s{S_WB}, s{S_T0}",
                 f"s_add_u32 s{S_P}, s{S_WB}, s{S_IDX}"]]
    return [[f"s_lshl_b32 s{S_TOFF}, s{S_P}, 12",
             f"s_add_u32 s{S_WB}, s{S_WB}, 1",
             f"s_sub_u32 s{S_T0}, s{S_WB}, s{S_ROT}",
             f"s_and_b32 s{S_T0}, s{S_T0}, 7"],
            [f"s_cmp_lt_u32 s{S_T0}, {NLEAD}",
             f"s_cselect_b32 s{S_T0}, 0, 24",
             f"s_add_u32 s{S_P}, s{S_WB}, s{S_T0}",
             f"s_and_b32 s{S_P}, s{S_P}, 31",
             f"s_cmp_ge_u32 s{S_WB}, 32",
             f"s_cselect_b32 s{S_P}, s{S_WB}, s{S_P}"]]


def ring_adv():
    return [f"s_cmp_eq_u32 s{S_RING}, s{S_RLIM}",
            f"s_cselect_b32 s{S_T0}, s{S_NEG}, s{S_POS}",
            f"s_add_u32 s{S_RING}, s{S_RING}, s{S_T0}"]


def tokload(setn, t):
    return [f"buffer_load_dwordx4 {tok(setn, t)}, v{V_TOK}, s[{S_XN}:{S_XN + 3}], s{S_TOFF} offen offset:{1024 * t}{XOPT.get('tpol', ' sc1')}"]


FINE = False
PSTAMP = False

def pst(k, i):
    if PSTAMP:
        k('s_memrealtime s[98:99]')
        k('s_waitcnt lgkmcnt(0)')
        k(f's_mov_b32 s{80+i}, s98')

def prologue(k, D):
    k("s_cmp_ge_u32 s2, 256")
    k("s_cbranch_scc1 L_k2_end")
    k("s_load_dwordx2 s[4:5], s[0:1], 8")
    k("s_load_dwordx2 s[6:7], s[0:1], 40")
    k("s_load_dwordx2 s[60:61], s[0:1], 48")
    k("s_load_dwordx2 s[62:63], s[0:1], 80")
    k("s_load_dwordx2 s[64:65], s[0:1], 16")
    k("s_load_dwordx2 s[56:57], s[0:1], 0")
    k("s_load_dwordx2 s[76:77], s[0:1], 72")
    k("v_lshrrev_b32 v10, 6, v0")
    k("v_and_b32 v0, 63, v0")
    k("s_and_b32 s51, s2, 7")
    k("v_readfirstlane_b32 s47, v10")
    k("s_lshr_b32 s52, s2, 3")
    k("s_and_b32 s53, s52, 3")
    k("s_lshl_b32 s48, s51, 2")
    k("s_add_u32 s48, s48, s53")
    k("s_lshr_b32 s49, s52, 2")
    k(f"v_lshlrev_b32 v{V_TOK}, 4, v0")
    k("s_waitcnt lgkmcnt(0)")
    k("s_mov_b32 s58, 4194304")
    k("s_mov_b32 s59, 0x00020000")
    k("v_and_b32 v10, 7, v0")
    k("v_lshlrev_b32 v10, 11, v10")
    k("v_lshrrev_b32 v11, 3, v0")
    k("v_lshl_add_u32 v10, v11, 4, v10")
    k("s_lshl_b32 s51, s47, 9")
    k("v_add_u32 v10, s51, v10")
    k("s_lshl_b32 s51, s49, 8")
    k("s_lshl_b32 s52, s48, 3")
    k("s_add_u32 s51, s51, s52")
    k("s_lshl_b32 s51, s51, 11")
    for i in range(4):
        k(f"buffer_load_dwordx4 v[{16+4*i}:{19+4*i}], v10, s[56:59], s51 offen offset:{128*i}")
    if XOPT.get("nonce", True):
        k("s_mov_b32 s78, 256")
        k("s_mov_b32 s79, 0x00020000")
        k("v_mov_b32 v13, 252")
        k("s_or_b32 s51, s2, s47")
        k("s_cmp_eq_u32 s51, 0")
        k("s_cbranch_scc0 L_k2_nonce0")
        k("s_memrealtime s[86:87]")
        k("s_waitcnt lgkmcnt(0)")
        k("s_or_b32 s86, s86, 1")
        k("v_mov_b32 v14, s86")
        k("s_mov_b64 exec, 1")
        k("buffer_store_dword v14, v13, s[76:79], 0 offen sc1")
        k("s_mov_b64 exec, -1")
        k.lab("L_k2_nonce0")
    if XOPT.get("ipf", True):
        k("s_getpc_b64 s[84:85]")
        k.lab("L_k2_pc")
        k("s_sub_u32 s84, s84, L_k2_pc-k2_gemm1_kernel")
        k("s_subb_u32 s85, s85, 0")
        k("s_lshr_b32 s51, s2, 3")
        k("s_lshl_b32 s51, s51, 10")
        k("v_and_b32 v12, 7, v0")
        k("v_lshlrev_b32 v12, 7, v12")
        k("v_add_u32 v12, s51, v12")
        k("v_min_u32 v12, L_code_end-k2_gemm1_kernel-4, v12")
        k("global_load_dword a247, v12, s[84:85]")
    if XOPT.get("tlb", True):
        k("s_mov_b32 s78, 256")
        k("s_mov_b32 s79, 0x00020000")
        k("v_mov_b32 v12, 0")
        k("buffer_load_dword a250, v12, s[76:79], 0 offen offset:252")
        k(f"s_add_u32 s80, s62, {XN_OFF}")
        k("s_addc_u32 s81, s63, 0")
        k("s_mov_b32 s82, 4194304")
        k("s_mov_b32 s83, 0x00020000")
        k("s_lshl_b32 s51, s49, 19")
        k("buffer_load_dword a251, v12, s[80:83], s51 offen")
    k("s_lshl_b32 s51, s49, 2")
    k("s_add_u32 s51, s51, s47")
    k("s_lshl_b32 s51, s51, 17")
    k(f"s_add_u32 s{S_XN}, s62, s51")
    k(f"s_addc_u32 s{S_XN+1}, s63, 0")
    k(f"s_mov_b32 s{S_XN+2}, 131072")
    k(f"s_mov_b32 s{S_XN+3}, 0x00020000")
    if ROT:
        k(f"s_and_b32 s51, s{S_J}, 3")
        k("s_lshl_b32 s51, s51, 1")
        k(f"s_add_u32 s51, s51, s{S_R}")
        k(f"s_and_b32 s{S_ROT}, s51, 7")
    else:
        k(f"s_mov_b32 s{S_ROT}, 0")
    k(f"s_mov_b32 s{S_IDX}, s{S_ROT}")
    k(f"s_mov_b32 s{S_WB}, 0")
    if ORDER == "win":
        k(f"s_mov_b32 s{S_P}, s{S_ROT}")
    else:
        k(f"s_sub_u32 s51, 0, s{S_ROT}")
        k("s_and_b32 s51, s51, 7")
        k(f"s_cmp_lt_u32 s51, {NLEAD}")
        k(f"s_cselect_b32 s{S_P}, 0, 24")
    k(f"s_mov_b32 s{S_C1}, 7340032")
    k(f"s_mov_b32 s{S_C2}, {32*7168}")
    k(f"s_mov_b32 s{S_NEG}, {(-STAGE*(RING-1)) & 0xffffffff}")
    k(f"s_mov_b32 s{S_POS}, {STAGE}")
    k("s_mul_i32 s54, s47, 5")
    k("s_mul_i32 s55, s48, 224")
    k("s_lshl_b32 s56, s48, 6")
    k(f"s_lshl_b32 s{S_RING}, s54, 10")
    k(f"s_add_u32 s{S_RLIM}, s{S_RING}, {STAGE*(RING-1)}")
    k(f"s_mov_b32 s{S_RD}, 0")
    for i in range(5):
        S = S_W + 4 * i
        k(f"s_add_u32 s51, s54, {i}")
        k("s_cmp_lt_u32 s51, 13")
        k(f"s_cselect_b32 s{S}, s6, s60")
        k(f"s_cselect_b32 s{S+1}, s7, s61")
        k("s_cselect_b32 s52, 6, 13")
        k("s_cmp_lt_u32 s51, 6")
        k(f"s_cselect_b32 s{S}, s4, s{S}")
        k(f"s_cselect_b32 s{S+1}, s5, s{S+1}")
        k(f"s_cselect_b32 s{S+2}, 6291456, s{S_C1}")
        k(f"s_mov_b32 s{S+3}, 0x00020000")
        k("s_cselect_b32 s52, 0, s52")
        k(f"s_cselect_b32 s{S_SSTR+i}, {32*6144}, s{S_C2}")
        k("s_sub_u32 s53, s51, s52")
        k("s_lshl_b32 s53, s53, 6")
        k("v_add_u32 v10, s53, v0")
        k("s_cmp_lt_u32 s51, 6")
        k(f"s_cbranch_scc1 L_k2_q{i}")
        k("v_mul_u32_u24 v11, 4682, v10")
        k("v_lshrrev_b32 v11, 16, v11")
        k("v_mul_u32_u24 v12, 14, v11")
        k("v_sub_u32 v12, v10, v12")
        k("v_mul_u32_u24 v11, 7168, v11")
        k("v_lshl_add_u32 v11, v12, 4, v11")
        k(f"v_add_u32 v{V_DMA+i}, s55, v11")
        k(f"s_branch L_k2_qd{i}")
        k.lab(f"L_k2_q{i}")
        k("v_mul_u32_u24 v12, 5462, v10")
        k("v_lshrrev_b32 v12, 16, v12")
        k("v_mul_u32_u24 v13, 12, v12")
        k("v_sub_u32 v13, v10, v13")
        k("v_lshrrev_b32 v14, 2, v13")
        k("v_and_b32 v13, 3, v13")
        k("v_lshrrev_b32 v15, 1, v12")
        k("v_and_b32 v15, 2, v15")
        k("v_xor_b32 v13, v13, v15")
        k("v_mul_u32_u24 v12, 6144, v12")
        k("v_lshl_add_u32 v12, v14, 11, v12")
        k("v_lshl_add_u32 v12, v13, 4, v12")
        k(f"v_add_u32 v{V_DMA+i}, s56, v12")
        k.lab(f"L_k2_qd{i}")
        a, b, c = dma(i)
        k(a); k(b); k(c)

    def adv():
        for g in p_adv():
            for x in g:
                k(x)
        for x in ring_adv():
            k(x)

    def wgroup(st):
        for i in range(5):
            a, b, c = dma(i)
            k(a); k(b); k(c)
        adv()
        k(f"s_mov_b32 s{95 - st}, s{S_TOFF}")

    adv()
    k(f"s_mov_b32 s95, s{S_TOFF}")
    EARLY = XOPT.get("early1", True)
    if EARLY:
        wgroup(1)
    layernorm(k, (5 if EARLY else 0) + 5 + (2 if XOPT.get('tlb', True) else 0) + (1 if XOPT.get('ipf', True) else 0))
    if XOPT.get('wpf', True):
        w1_prefetch(k)
    if FINE: stamp(k, 2)
    k("v_lshrrev_b32 v10, 4, v0")
    k("v_bfe_u32 v11, v0, 2, 2")
    k("v_and_b32 v12, 3, v0")
    k("v_lshl_add_u32 v13, v10, 2, v11")
    k(f"v_mul_u32_u24 v{V_AG}, 224, v13")
    k(f"v_lshl_add_u32 v{V_AG}, v12, 3, v{V_AG}")
    k(f"v_mul_u32_u24 v{V_AQ0}, 192, v13")
    k("v_and_b32 v14, 1, v12")
    k(f"v_lshl_add_u32 v{V_AQ0}, v14, 3, v{V_AQ0}")
    k("v_lshrrev_b32 v14, 1, v12")
    k(f"v_lshl_add_u32 v{V_AQ0}, v14, 4, v{V_AQ0}")
    k("v_and_b32 v14, 1, v10")
    k(f"v_lshl_add_u32 v{V_AQ1}, v14, 5, 0")
    k(f"v_xor_b32 v15, 32, v{V_AQ1}")
    k(f"v_add_u32 v15, v15, v{V_AQ0}")
    k(f"v_add_u32 v{V_AQ0}, v{V_AQ1}, v{V_AQ0}")
    k(f"v_mov_b32 v{V_AQ1}, v15")
    for i in range(ACC_V0, 256):
        k(f"v_mov_b32 v{i}, 0")
    for i in range(80):
        k(f"v_accvgpr_write_b32 a{i}, 0")
    side_jobs_setup(k)
    if XOPT["side"] == "pro":
        k("s_mov_b64 s[56:57], s[76:77]")
        side_jobs_setup2(k)
        side_jobs_body(k)
        k("s_mov_b64 s[76:77], s[56:57]")
        k("s_mov_b32 s78, 256")
        k("s_lshl_b32 s51, s49, 5")
        k("v_mov_b32 v10, s51")
    def wrest():
        for st in range(2 if EARLY else 1, RING - 1):
            wgroup(st)
        k("s_lshl_b32 s51, s48, 11")
        k("s_add_u32 s56, s64, s51")
        k("s_addc_u32 s57, s65, 0")
        k("s_mov_b32 s58, 2048")
        k("s_mov_b32 s59, 0x00020000")
        k(f"s_mov_b32 m0, {WPHI_OFF}")
        k("s_nop 0")
        k(f"buffer_load_dwordx4 v{V_TOK}, s[56:59], 0 offen lds")
        k(f"buffer_load_dwordx4 v{V_TOK}, s[56:59], 0 offen offset:1024 lds")

    if XOPT.get("pollfirst", True):
        k("s_cmp_eq_u32 s47, 0")
        k("s_cbranch_scc1 L_k2_dopoll")
        save = list(k.L)
        wrest()
        body = k.L[len(save):]
        k("s_branch L_k2_nopoll")
        k.lab("L_k2_dopoll")
        k("s_mov_b32 s51, 200000")
        k.lab("L_k2_poll")
        k("buffer_load_dword v11, v10, s[76:79], 0 offen sc1")
        k("s_waitcnt vmcnt(0)")
        if XOPT.get("nonce", True):
            k("v_cmp_ne_u32 vcc, s88, v11")
            k.nop(1)
            k("s_cmp_eq_u64 vcc, 0")
        else:
            k("v_readfirstlane_b32 s52, v11")
            k.nop(1)
            k("s_cmp_ge_u32 s52, 32")
        k("s_cbranch_scc1 L_k2_polled")
        k("s_sub_u32 s51, s51, 1")
        k("s_cmp_eq_u32 s51, 0")
        k("s_cbranch_scc1 L_k2_polled")
        k(f"s_sleep {POLLS}")
        k("s_branch L_k2_poll")
        k.lab("L_k2_polled")
        pst(k, 5)
        k("s_barrier")
        if EARLY and not PSTAMP:
            for st in range(2):
                k(f"s_mov_b32 s{S_T0+1}, s{S_TOFF}")
                k(f"s_mov_b32 s{S_TOFF}, s{95 - st}")
                for t in range(4):
                    k(tokload(st, t)[0])
                k(f"s_mov_b32 s{S_TOFF}, s{S_T0+1}")
            for ln in body:
                k.L.append(ln)
            k(f"s_mov_b32 s{S_TOFF}, s93")
            for t in range(4):
                k(tokload(2, t)[0])
            k(f"s_mov_b32 s{S_TOFF}, s92")
            side_jobs_setup2(k)
            k("s_waitcnt vmcnt(20)")
            k("s_branch L_k2_join")
        else:
            for ln in body:
                k.L.append(ln)
            k("s_branch L_k2_go")
    else:
        wrest()
        k("s_cmp_eq_u32 s47, 0")
        k("s_cbranch_scc0 L_k2_nopoll")
        k("s_mov_b32 s51, 200000")
        if BACKOFF:
            k(f"s_sleep {BACKOFF}")
        k.lab("L_k2_poll")
        k("buffer_load_dword v11, v10, s[76:79], 0 offen sc1")
        k("s_waitcnt vmcnt(0)")
        if XOPT.get("nonce", True):
            k("v_cmp_ne_u32 vcc, s88, v11")
            k.nop(1)
            k("s_cmp_eq_u64 vcc, 0")
        else:
            k("v_readfirstlane_b32 s52, v11")
            k.nop(1)
            k("s_cmp_ge_u32 s52, 32")
        k("s_cbranch_scc1 L_k2_nopoll")
        k("s_sub_u32 s51, s51, 1")
        k("s_cmp_eq_u32 s51, 0")
        k("s_cbranch_scc1 L_k2_nopoll")
        k(f"s_sleep {POLLS}")
        k("s_branch L_k2_poll")

    k.lab("L_k2_nopoll")
    if not XOPT.get("pollfirst", True):
        pst(k, 5)
    k("s_barrier")
    k.lab("L_k2_go")
    if PSTAMP:
        k(f"s_add_u32 s56, s62, {(60 << 20)}")
        k("s_addc_u32 s57, s63, 0")
        k("s_mov_b32 s58, 65536")
        k("s_mov_b32 s59, 0x00020000")
        k("s_lshl_b32 s51, s2, 8")
        k("v_mov_b32 v10, s51")
        k("s_cmp_eq_u32 s47, 0")
        k("s_cbranch_scc0 L_k2_nops")
        k("s_mov_b64 exec, 1")
        for i in range(6):
            k(f"v_mov_b32 v11, s{80+i}")
            k(f"buffer_store_dword v11, v10, s[56:59], 0 offen offset:{128 + 4*i}")
        k("s_mov_b64 exec, -1")
        k.lab("L_k2_nops")
    for st in range(RING - 2):
        k(f"s_mov_b32 s{S_TOFF}, s{95 - st}")
        for t in range(4):
            k(tokload(st, t)[0])
    k(f"s_mov_b32 s{S_TOFF}, s{95 - (RING - 2)}")
    if XOPT["side"] != "pro":
        side_jobs_setup2(k)
    k(f"s_waitcnt vmcnt({8 if XOPT.get('early1', True) and not PSTAMP else 0})")
    k.lab("L_k2_join")
    k("s_barrier")
    for n in range(D):
        for x in frag_reads(n):
            k(x)


def layernorm_twopass(k, RED):
    from k1 import xreduce_add
    k("v_pk_add_f32 v[64:65], v[32:33], v[34:35]")
    k("v_pk_add_f32 v[66:67], v[36:37], v[38:39]")
    for i in range(4, 16, 2):
        k(f"v_pk_add_f32 v[64:65], v[64:65], v[{32+2*i}:{33+2*i}]")
        k(f"v_pk_add_f32 v[66:67], v[66:67], v[{34+2*i}:{35+2*i}]")
    k("v_and_b32 v68, 7, v0")
    k("v_lshlrev_b32 v68, 4, v68")
    k(f"v_add_u32 v68, {RED}, v68")
    k("s_lshl_b32 s52, s47, 2")
    k("v_add_u32 v69, s52, v68")

    def reduce(off):
        k("v_pk_add_f32 v[64:65], v[64:65], v[66:67]")
        k("v_add_f32 v64, v64, v65")
        k.nop(2)
        k("v_add_f32_dpp v64, v64, v64 row_ror:8 row_mask:0xf bank_mask:0xf")
        xreduce_add(k, 64, 65)
        k(f"ds_write_b32 v69, v64 offset:{off}")
        k("s_waitcnt lgkmcnt(0)")
        k("s_barrier")
        k(f"ds_read_b128 v[64:67], v68 offset:{off}")
        k("s_waitcnt lgkmcnt(0)")
        k("v_pk_add_f32 v[64:65], v[64:65], v[66:67]")
        k("v_add_f32 v64, v64, v65")

    reduce(0)
    k("v_mul_f32 v64, 0xba800000, v64")
    for i in range(16):
        k(f"v_pk_add_f32 v[{32+2*i}:{33+2*i}], v[{32+2*i}:{33+2*i}], v[64:65] op_sel_hi:[1,0]")
    k("v_pk_mul_f32 v[64:65], v[32:33], v[32:33]")
    k("v_pk_mul_f32 v[66:67], v[34:35], v[34:35]")
    for i in range(2, 16, 2):
        k(f"v_pk_fma_f32 v[64:65], v[{32+2*i}:{33+2*i}], v[{32+2*i}:{33+2*i}], v[64:65]")
        k(f"v_pk_fma_f32 v[66:67], v[{34+2*i}:{35+2*i}], v[{34+2*i}:{35+2*i}], v[66:67]")
    reduce(128)
    k("v_mov_b32 v65, 0x3727c5ac")
    k("v_fmac_f32 v65, 0x3a800000, v64")
    k("v_rsq_f32 v64, v65")
    k.nop(1)
    for i in range(16):
        k(f"v_pk_mul_f32 v[{32+2*i}:{33+2*i}], v[{32+2*i}:{33+2*i}], v[64:65] op_sel_hi:[1,0]")
    for i in range(16):
        k(f"v_cvt_pk_bf16_f32 v{16+i}, v{32+2*i}, v{33+2*i}")


def layernorm(k, nyounger):
    from k1 import xreduce_add
    RED = WPHI_OFF + 2048
    pst(k, 0)
    k(f"s_waitcnt vmcnt({nyounger})")
    pst(k, 1)
    k("s_mov_b32 s51, 0xffff0000")
    for i in range(16):
        k(f"v_lshlrev_b32 v{32+2*i}, 16, v{16+i}")
        k(f"v_and_b32 v{33+2*i}, s51, v{16+i}")
    if XOPT.get("onepass", True):
        k("v_pk_add_f32 v[64:65], v[32:33], v[34:35]")
        k("v_pk_mul_f32 v[66:67], v[32:33], v[32:33]")
        k("v_pk_fma_f32 v[66:67], v[34:35], v[34:35], v[66:67]")
        for i in range(2, 16):
            k(f"v_pk_add_f32 v[64:65], v[64:65], v[{32+2*i}:{33+2*i}]")
            k(f"v_pk_fma_f32 v[66:67], v[{32+2*i}:{33+2*i}], v[{32+2*i}:{33+2*i}], v[66:67]")
        k("v_and_b32 v68, 7, v0")
        k("v_lshlrev_b32 v68, 5, v68")
        k(f"v_add_u32 v68, {RED}, v68")
        k("s_lshl_b32 s52, s47, 3")
        k("v_add_u32 v69, s52, v68")
        k("v_add_f32 v64, v64, v65")
        k("v_add_f32 v65, v66, v67")
        k.nop(1)
        k("v_add_f32_dpp v64, v64, v64 row_ror:8 row_mask:0xf bank_mask:0xf")
        k("v_add_f32_dpp v65, v65, v65 row_ror:8 row_mask:0xf bank_mask:0xf")
        k("v_mov_b32 v66, v64")
        k("v_mov_b32 v67, v65")
        k.nop(1)
        k("v_permlane16_swap_b32 v64, v66")
        k("v_permlane16_swap_b32 v65, v67")
        k.nop(1)
        k("v_add_f32 v64, v64, v66")
        k("v_add_f32 v65, v65, v67")
        k("v_mov_b32 v66, v64")
        k("v_mov_b32 v67, v65")
        k.nop(1)
        k("v_permlane32_swap_b32 v64, v66")
        k("v_permlane32_swap_b32 v65, v67")
        k.nop(1)
        k("v_add_f32 v64, v64, v66")
        k("v_add_f32 v65, v65, v67")
        k("ds_write_b64 v69, v[64:65]")
        k("s_waitcnt lgkmcnt(0)")
        k("s_barrier")
        k("ds_read_b128 v[64:67], v68")
        k("ds_read_b128 v[72:75], v68 offset:16")
        k("s_waitcnt lgkmcnt(0)")
        k("v_pk_add_f32 v[64:65], v[64:65], v[66:67]")
        k("v_pk_add_f32 v[72:73], v[72:73], v[74:75]")
        k("v_pk_add_f32 v[64:65], v[64:65], v[72:73]")
        k("v_mul_f32 v64, 0x3a800000, v64")
        k("v_mul_f32 v66, v64, v64")
        k("v_mov_b32 v67, 0x3a800000")
        k("v_fma_f32 v65, v65, v67, -v66")
        k("v_max_f32 v65, 0, v65")
        k("v_add_f32 v65, 0x3727c5ac, v65")
        k("v_rsq_f32 v66, v65")
        k.nop(1)
        k("v_mul_f32 v64, v64, v66")
        k("v_mov_b32 v67, v66")
        k("v_sub_f32 v64, 0, v64")
        for i in range(16):
            k(f"v_pk_fma_f32 v[{32+2*i}:{33+2*i}], v[{32+2*i}:{33+2*i}], v[66:67], v[64:65] op_sel_hi:[1,1,0]")
        for i in range(16):
            k(f"v_cvt_pk_bf16_f32 v{16+i}, v{32+2*i}, v{33+2*i}")
    else:
        layernorm_twopass(k, RED)
    pst(k, 2)
    k("v_lshrrev_b32 v70, 5, v0")
    k("v_lshlrev_b32 v70, 12, v70")
    k("v_bfe_u32 v71, v0, 3, 1")
    k("v_lshl_add_u32 v70, v71, 9, v70")
    k("v_bfe_u32 v71, v0, 4, 1")
    k("v_lshl_add_u32 v70, v71, 3, v70")
    k("v_and_b32 v71, 7, v0")
    k("v_lshl_add_u32 v70, v71, 4, v70")
    k(f"s_add_u32 s56, s62, {XN_OFF}")
    k("s_addc_u32 s57, s63, 0")
    k("s_mov_b32 s58, 4194304")
    k("s_mov_b32 s59, 0x00020000")
    k("s_lshl_b32 s51, s49, 2")
    k("s_lshr_b32 s52, s48, 3")
    k("s_add_u32 s51, s51, s52")
    k("s_lshl_b32 s51, s51, 17")
    k("s_lshl_b32 s52, s47, 15")
    k("s_add_u32 s51, s51, s52")
    k("s_bfe_u32 s52, s48, 0x20001")
    k("s_lshl_b32 s52, s52, 10")
    k("s_add_u32 s51, s51, s52")
    k("s_and_b32 s52, s48, 1")
    k("s_lshl_b32 s52, s52, 7")
    k("s_add_u32 s51, s51, s52")
    for i in range(4):
        b = 16 + 4 * i
        k(f"buffer_store_dwordx2 v[{b}:{b+1}], v70, s[56:59], s51 offen sc1")
        k(f"buffer_store_dwordx2 v[{b+2}:{b+3}], v70, s[56:59], s51 offen offset:256 sc1")
        if i < 3:
            k("s_add_u32 s51, s51, 8192")


NCLR = 0
BACKOFF = 20
POLLS = 8

def w1_prefetch(k):
    k("s_lshr_b32 s51, s2, 3")
    k("s_lshl_b32 s51, s51, 5")
    k("s_lshl_b32 s52, s47, 3")
    k("s_add_u32 s51, s51, s52")
    k("s_and_b32 s52, s2, 7")
    k("v_mul_u32_u24 v72, 10923, v0")
    k("v_lshrrev_b32 v72, 16, v72")
    k("v_mul_u32_u24 v73, 6, v72")
    k("v_sub_u32 v73, v0, v73")
    k("v_mul_u32_u24 v72, 6144, v72")
    k("v_lshrrev_b32 v74, 1, v73")
    k("v_lshl_add_u32 v72, v74, 11, v72")
    k("v_and_b32 v73, 1, v73")
    k("v_lshl_add_u32 v72, v73, 7, v72")
    k("s_mul_i32 s53, s51, 6144")
    k("s_lshl_b32 s54, s52, 8")
    k("s_add_u32 s53, s53, s54")
    k("s_mov_b32 s56, s4"); k("s_mov_b32 s57, s5"); k("s_mov_b32 s58, 6291456"); k("s_mov_b32 s59, 0x00020000")
    k("v_cmp_gt_u32 vcc, 48, v0")
    k("s_and_saveexec_b64 s[86:87], vcc")
    k("buffer_load_dword a248, v72, s[56:59], s53 offen")
    k("s_mov_b64 exec, s[86:87]")
    k("v_mul_u32_u24 v72, 9363, v0")
    k("v_lshrrev_b32 v72, 16, v72")
    k("v_mul_u32_u24 v73, 7, v72")
    k("v_sub_u32 v73, v0, v73")
    k("v_mul_u32_u24 v72, 7168, v72")
    k("v_lshl_add_u32 v72, v73, 7, v72")
    k("s_mul_i32 s53, s51, 7168")
    k("s_mul_i32 s54, s52, 896")
    k("s_add_u32 s53, s53, s54")
    k("v_cmp_gt_u32 vcc, 56, v0")
    k("s_and_saveexec_b64 s[86:87], vcc")
    k("s_mov_b32 s56, s6"); k("s_mov_b32 s57, s7"); k("s_mov_b32 s58, 7340032")
    k("buffer_load_dword a249, v72, s[56:59], s53 offen")
    k("s_mov_b32 s56, s60"); k("s_mov_b32 s57, s61")
    k("buffer_load_dword a250, v72, s[56:59], s53 offen")
    k("s_mov_b64 exec, s[86:87]")


def ln_publish(k):
    from k1 import FLG_OFF
    NFL = FLG_OFF + 49152
    if not XOPT.get("nonce", True):
        k("s_mov_b32 s78, 256")
        k("s_mov_b32 s79, 0x00020000")
        k("s_lshl_b32 s51, s49, 5")
        k("v_mov_b32 v10, s51")
        k("v_mov_b32 v11, 1")
    k("s_cmp_lt_u32 s2, 8")
    k("s_cbranch_scc0 L_k2_noclr")
    k(f"s_add_u32 s56, s62, {FLG_OFF + 32768}")
    k("s_addc_u32 s57, s63, 0")
    k("s_mov_b32 s58, 8192")
    k("s_mov_b32 s59, 0x00020000")
    k("s_lshl_b32 s51, s2, 10")
    k("v_mov_b32 v12, s51")
    k("v_mov_b32 v13, 0")
    k("buffer_store_dword v13, v12, s[56:59], 0 offen")
    k.lab("L_k2_noclr")
    pst(k, 3)
    if XOPT.get("nonce", True):
        k("s_cmp_eq_u32 s47, 0")
        k("s_cbranch_scc0 L_k2_tagdone")
        k("v_mov_b32 v10, 252")
        k("s_mov_b32 s51, 200000")
        k.lab("L_k2_tag")
        k("buffer_load_dword v11, v10, s[76:79], 0 offen sc1")
        k("s_waitcnt vmcnt(0)")
        k("v_readfirstlane_b32 s88, v11")
        k.nop(1)
        k("s_cmp_lg_u32 s88, 0")
        k("s_cbranch_scc1 L_k2_tagdone")
        k("s_sub_u32 s51, s51, 1")
        k("s_cmp_eq_u32 s51, 0")
        k("s_cbranch_scc0 L_k2_tag")
        k.lab("L_k2_tagdone")
    k("s_waitcnt vmcnt(0)")
    pst(k, 4)
    k("s_barrier")
    k("s_cmp_eq_u32 s47, 0")
    k("s_cbranch_scc0 L_k2_nopub")
    if XOPT.get("nonce", True):
        k(f"s_add_u32 s76, s62, {NFL}")
        k("s_addc_u32 s77, s63, 0")
        k("s_mov_b32 s78, 8192")
        k(f"s_lshl_b32 s51, s49, 10")
        k(f"s_lshl_b32 s52, s48, 2")
        k("s_add_u32 s52, s52, s51")
        k("v_mov_b32 v10, s52")
        k("v_mov_b32 v11, s88")
        k("s_mov_b64 exec, 1")
        k("buffer_store_dword v11, v10, s[76:79], 0 offen sc1")
        k("s_mov_b64 exec, -1")
        k("v_and_b32 v10, 31, v0")
        k("v_lshlrev_b32 v10, 2, v10")
        k("v_add_u32 v10, s51, v10")
    else:
        k("s_mov_b64 exec, 1")
        k("buffer_atomic_add v11, v10, s[76:79], 0 offen")
        k("s_mov_b64 exec, -1")
    k.lab("L_k2_nopub")


def side_jobs_setup(k):
    ln_publish(k)


def side_jobs_setup2(k):
    from k1 import XCH_OFF
    k("s_load_dwordx2 s[76:77], s[0:1], 56")
    k("s_load_dwordx2 s[80:81], s[0:1], 24")
    k("s_lshl_b32 s52, s2, 2")
    k(f"s_add_u32 s52, s52, s{S_WAVE}")
    k("v_lshlrev_b32 v10, 7, v0")
    k("v_and_b32 v11, 0x7ff, v10")
    k("s_mov_b32 s78, 7340032")
    k("s_mov_b32 s79, 0x00020000")
    k("s_mov_b32 s82, 2097152")
    k("s_mov_b32 s83, 0x00020000")
    k(f"s_mul_i32 s74, s52, {56 * 128}")
    k("s_lshl_b32 s75, s52, 11")
    k(f"s_add_u32 s84, s62, {XCH_OFF}")
    k("s_addc_u32 s85, s63, 0")
    k(f"s_mov_b32 s86, {4 << 20}")
    k("s_mov_b32 s87, 0x00020000")
    k("s_lshl_b32 s88, s52, 12")
    k("s_lshr_b32 s89, s2, 3")
    k("s_mul_i32 s52, s89, 43")
    k("s_lshr_b32 s52, s52, 8")
    k("s_mul_i32 s52, s52, 6")
    k("s_sub_u32 s89, s89, s52")
    k("s_add_u32 s89, s89, 1")
    for q in range(4):
        k(f"v_mov_b32 v{12+q}, -1")
    k("s_waitcnt lgkmcnt(0)")


def side_jobs_body(k):
    k("buffer_load_dword a252, v10, s[76:79], s74 offen")
    k("buffer_load_dword a253, v11, s[80:83], s75 offen")
    for q in range(4):
        k(f"buffer_store_dwordx4 v[12:15], v{V_TOK}, s[84:87], s88 offen offset:{1024 * q} sc1")


def side_jobs(k):
    k(f"s_cmp_eq_u32 s{S_CNT}, s89")
    k("s_cbranch_scc0 L_k2_noside")
    side_jobs_body(k)
    k.lab("L_k2_noside")


DH = 6


def step_half(k, setn, tail, tiles, second, nside):
    D = DH
    fill = {m: [] for m in range(40)}
    last = (tail == 3)
    for n in range(20):
        nn = n + D
        if last and nn >= 20:
            continue
        rd = frag_reads(nn % 20)
        fill[2 * n].append(rd[0])
        fill[2 * n + 1].append(rd[1])
    if not second:
        if tail == 0:
            for t in range(4):
                fill[3 + 4 * t].append(tokload((setn + RING - 2) % NS, t)[0])
            if XOPT["side"] == "tail":
                fill[21].append("buffer_load_dword a252, v10, s[76:79], s74 offen")
                fill[25].append("buffer_load_dword a253, v11, s[80:83], s75 offen")
        if tail == 1 and XOPT["side"] == "tail":
            for q in range(4):
                fill[5 + 8 * q].append(f"buffer_store_dwordx4 v[12:15], v{V_TOK}, s[84:87], s88 offen offset:{1024 * q} sc1")
    if not last:
        cur, nxt = (28 + tail) % RING, (29 + tail) % RING
        delta = ((nxt - cur) * STAGE) & 0xffffffff
        fill[1].append(f"v_add_u32 v{V_AQ0}, {delta}, v{V_AQ0}")
        fill[3].append(f"v_add_u32 v{V_AQ1}, {delta}, v{V_AQ1}")
        fill[2 * (19 - D) + 3].append(f"v_add_u32 v{V_AG}, {delta}, v{V_AG}")
    for n in range(20):
        if last and n + D > 20:
            k(f"s_waitcnt lgkmcnt({2 * (19 - n)})")
        else:
            k(f"s_waitcnt lgkmcnt({2 * (D - 1)})")
        for i, t in enumerate(tiles if n % 2 == 0 or not XOPT.get("snake", False) else tiles[::-1]):
            k(mfma(n, t, setn))
            for x in fill[2 * n + i]:
                k(x)


def step(k, setn, D, sched=None, tail=None, tiles=(0, 1, 2, 3), second=False):
    nside = [2, 4, 0, 0] if XOPT["side"] == "tail" else [0, 0, 0, 0]
    if second:
        pass
    elif tail is None and setn == 1 and XOPT.get("early1", True):
        k("s_waitcnt vmcnt(13)")
    elif tail is None or tail == 0:
        k(f"s_waitcnt vmcnt({9 * (RING - 3)})")
    elif tail == 1:
        k(f"s_waitcnt vmcnt({9 + 4 + nside[0]})")
    elif tail == 2:
        k(f"s_waitcnt vmcnt({4 + nside[0] + nside[1]})")
    else:
        k(f"s_waitcnt vmcnt({nside[0] + nside[1] + (4 if XOPT.get('tlb', True) else 0)})")
    if XOPT["bar"] and not second:
        k("s_barrier")
    if len(tiles) != 4:
        return step_half(k, setn, tail, tiles, second, nside)
    fill = {m: [] for m in range(80)}
    for n in range(20):
        nn = n + D
        if tail == 3 and nn >= 20:
            continue
        rd = frag_reads(nn % 20)
        fill[4 * n + 0].append(rd[0])
        fill[4 * n + 2].append(rd[1])
    for i in range(5 if tail is None else 0):
        a, b, c = dma(i)
        m = 4 * (2 * i + 1)
        fill[m - 1].append(b)
        fill[m + 1].append(a)
        fill[m + 3].append(c)
    if tail is None or tail == 0:
        for t in range(4):
            fill[4 * (2 + 2 * t) + 1 if tail == 0 else 4 * (11 + 2 * t) + 1].append(tokload((setn + RING - 2) % NS, t)[0])
    if tail is None:
        pa = p_adv()
        fill[73] += pa[0]; fill[75] += pa[1]
        ra = ring_adv()
        fill[77] += ra
    if tail == 0 and XOPT["side"] == "tail":
        fill[45].append("buffer_load_dword a252, v10, s[76:79], s74 offen")
        fill[53].append("buffer_load_dword a253, v11, s[80:83], s75 offen")
    if tail == 2 and XOPT.get("tlb", True):
        from k1 import A2_OFF, PHIQ_OFF, KVP_OFF
        fill[1] += ["v_mov_b32 v12, 0", "s_mov_b32 s12, s62", "s_mov_b32 s13, s63", f"s_mov_b32 s14, {64 << 20}", "s_mov_b32 s15, 0x00020000"]
        fill[5] += [f"s_lshl_b32 s16, s{S_R}, 4", f"s_lshl_b32 s17, s{S_WAVE}, 2", "s_add_u32 s16, s16, s17",
                    f"s_mul_i32 s16, s16, {144 * 1024}", f"s_add_u32 s16, s16, {A2_OFF}"]
        fill[9] += ["buffer_load_dword a250, v12, s[12:15], s16 offen"]
        fill[13] += [f"s_add_u32 s16, s16, {3 * 144 * 1024}"]
        fill[17] += ["buffer_load_dword a250, v12, s[12:15], s16 offen"]
        fill[21] += [f"s_lshl_b32 s16, s{S_J}, 18", f"s_add_u32 s16, s16, {PHIQ_OFF}", f"s_lshl_b32 s17, s{S_R}, 15", "s_add_u32 s16, s16, s17"]
        fill[25] += ["buffer_load_dword a251, v12, s[12:15], s16 offen"]
        fill[29] += [f"s_lshl_b32 s16, s{S_J}, 16", f"s_add_u32 s16, s16, {KVP_OFF}"]
        fill[33] += ["buffer_load_dword a251, v12, s[12:15], s16 offen"]
    if tail == 1 and XOPT["side"] == "tail":
        for q in range(4):
            fill[9 + 16 * q].append(f"buffer_store_dwordx4 v[12:15], v{V_TOK}, s[84:87], s88 offen offset:{1024 * q} sc1")
    fill[31].append(f"s_cmp_eq_u32 s{S_RD}, {STAGE*(RING-1)}")
    fill[31].append(f"s_cselect_b32 s{S_DELTA}, s{S_NEG}, s{S_POS}")
    fill[35].append(f"s_add_u32 s{S_RD}, s{S_RD}, s{S_DELTA}")
    fill[37].append(f"v_add_u32 v{V_AQ0}, s{S_DELTA}, v{V_AQ0}")
    fill[39].append(f"v_add_u32 v{V_AQ1}, s{S_DELTA}, v{V_AQ1}")
    g = 20 - D
    fill[4 * (19 - D) + 3].append(f"v_add_u32 v{V_AG}, s{S_DELTA}, v{V_AG}")
    for n in range(20):
        if tail == 3 and n + D > 20:
            k(f"s_waitcnt lgkmcnt({2 * (19 - n)})")
        elif XOPT["halfwait"]:
            if n % 2 == 0:
                k(f"s_waitcnt lgkmcnt({2 * (D - 2)})")
        else:
            k(f"s_waitcnt lgkmcnt({2 * (D - 1)})")
        for tt_ in range(4):
            m = 4 * n + tt_
            t = (3 - tt_) if (XOPT.get("snake", False) and n % 2 == 1) else tt_
            k(mfma(n, t, setn))
            for x in fill[m]:
                if x.startswith("ds_read") and (not XOPT["lds"] or (XOPT["ldsfrac"] == 2 and n % 2 == 1)): continue
                if x.endswith(" lds") and not XOPT["dma"]: continue
                if x.startswith("buffer_load_dwordx4 a") and not XOPT["tok"]: continue
                k(x)


def debug_epilogue(k):
    k("s_waitcnt vmcnt(0) lgkmcnt(0)")
    k.nop(16)
    k("s_lshl_b32 s51, s2, 2")
    k("s_add_u32 s51, s51, s47")
    k("s_mul_i32 s51, s51, 81920")
    k(f"s_add_u32 s8, s62, {DBG_OFF}")
    k("s_addc_u32 s9, s63, 0")
    k("s_add_u32 s8, s8, s51")
    k("s_addc_u32 s9, s9, 0")
    k("s_mov_b32 s10, 81920")
    k("s_mov_b32 s11, 0x00020000")
    k("s_mov_b32 s52, 0")
    for n in range(20):
        for t in range(4):
            k(f"buffer_store_dwordx4 {acc(n, t)}, v{V_TOK}, s[8:11], s52 offen")
            k("s_add_u32 s52, s52, 1024")


STAMP_OFF = 60 << 20
def stamp(k, i):
    k("s_memtime s[100:101]")
    k("s_memrealtime s[98:99]")
    k("s_waitcnt lgkmcnt(0)")
    k(f"s_mov_b32 s{90+2*i}, s100")
    k(f"s_mov_b32 s{91+2*i}, s98")

def stamp_store(k, n, wsreg=62, kid=0):
    k(f"s_add_u32 s8, s{wsreg}, {STAMP_OFF + kid * 65536}")
    k(f"s_addc_u32 s9, s{wsreg+1}, 0")
    k("s_mov_b32 s10, 65536")
    k("s_mov_b32 s11, 0x00020000")
    k("s_lshl_b32 s51, s2, 8")
    k("v_mov_b32 v10, s51")
    k("v_cmp_eq_u32 vcc, 0, v0")
    k(f"s_and_saveexec_b64 s[52:53], vcc")
    k("s_cmp_eq_u32 s47, 0")
    k("s_cbranch_scc0 L_nostamp")
    for i in range(n):
        k(f"v_mov_b32 v11, s{90+2*i}")
        k(f"v_mov_b32 v12, s{91+2*i}")
        k(f"buffer_store_dword v11, v10, s[8:11], 0 offen offset:{8*i}")
        k(f"buffer_store_dword v12, v10, s[8:11], 0 offen offset:{8*i+4}")
    k.lab("L_nostamp")
    k("s_mov_b64 exec, s[52:53]")

def tail_split(k, D):
    import k2e
    first = True
    for s in range(4):
        if s == 0:
            for n in (4, 5):
                for x in frag_reads(n):
                    k(x)
        step(k, s, D, tail=s, tiles=(0, 1))
    k.nop(8)
    k2e.h_setup(k)
    k2e.h_tiles(k, (0, 1))
    cur, tgt = 31 % RING, 28 % RING
    delta = ((tgt - cur) * STAGE) & 0xffffffff
    for r in (V_AQ0, V_AQ1, V_AG):
        k(f"v_add_u32 v{r}, {delta}, v{r}")
    for n in range(DH):
        for x in frag_reads(n):
            k(x)
    for s in range(4):
        step(k, s, D, tail=s, tiles=(2, 3), second=True)


def gen_k2(D=4, debug=False, epilogue=None, stamps=False, stepfn=None):
    k = Kern("k2_gemm1_kernel")
    if stamps:
        stamp(k, 0)
    prologue(k, D)
    if stamps and FINE:
        stamp(k, 4)
        stamp_store(k, 5)
        k("s_endpgm")
    if stamps:
        stamp(k, 1)
        k("s_nop 0")
        for n in range(D):
            pass
    k(f"s_mov_b32 s{S_CNT}, 0")
    k.lab("L_k2_loop")
    if XOPT['side'] is True:
        side_jobs(k)
    for s in range(NS):
        (stepfn or step)(k, s, D)
    k(f"s_add_u32 s{S_CNT}, s{S_CNT}, 1")
    k(f"s_cmp_lt_u32 s{S_CNT}, {32 // NS - 1}")
    k("s_cbranch_scc1 L_k2_loop")
    if XOPT.get("split_tail", True):
        assert DH == 6 and D == 4
        tail_split(k, D)
    else:
        for s in range(NS):
            step(k, s, D, tail=s)
    if stamps:
        stamp(k, 2)
    if debug:
        debug_epilogue(k)
    elif epilogue:
        epilogue(k)
    if stamps:
        k("s_waitcnt vmcnt(0)")
        stamp(k, 3)
        stamp_store(k, 4)
    k.lab("L_k2_end")
    k("s_endpgm")
    nv = 256 + 254
    return k, descriptor("k2_gemm1_kernel", nv, 256), f"; @launch kernel=k2_gemm1_kernel grid=(256,1,1) block=(256,1,1) lds={STAGE*RING + 4096}"
```

```python
from dsl import *
from k1 import XN_OFF, A2_OFF, PHIQ_OFF, KVP_OFF, ZP_OFF, XCH_OFF
import k2
from k2 import V_TOK, WPHI_OFF, S_WAVE, S_J, S_R

A2_TT = 144 * 1024
LOG2E = 0x3fb8aa3b
POL = ''
POL2 = None

def pol2():
    return POL if POL2 is None else POL2
QB = [16, 96, 176, 200]
XR = [40, 48, 56, 64]
ER = [120, 128, 136, 144]
ST = [72, 76, 80, 84]
WP0, WP1, SEL0, SEL1, ONES = 224, 228, 232, 236, 240
S_L2E = 74
S_SRD = 8
S_SRD2 = 12


def h_setup(k):
    k(f"s_add_u32 s8, s62, {A2_OFF}")
    k("s_addc_u32 s9, s63, 0")
    k(f"s_mov_b32 s10, {128 * A2_TT}")
    k("s_mov_b32 s11, 0x00020000")
    k(f"s_lshl_b32 s52, s{S_R}, 4")
    k(f"s_lshl_b32 s53, s{S_WAVE}, 2")
    k("s_add_u32 s52, s52, s53")
    k(f"s_mul_i32 s53, s{S_J}, 7")
    k("s_lshr_b32 s53, s53, 1")
    k("s_add_u32 s53, s53, 32")
    k("s_lshl_b32 s53, s53, 10")
    k(f"s_mul_i32 s54, s52, {A2_TT}")
    k("s_add_u32 s54, s54, s53")


def h_tiles(k, tiles):
    def compute(H, srcs):
        for u in range(7):
            G, U = srcs[u]
            for jj in range(4):
                k(f"v_max_f32 v{G+jj}, 0, v{G+jj}")
            k(f"v_pk_mul_f32 v[{G}:{G+1}], v[{G}:{G+1}], v[{U}:{U+1}]")
            k(f"v_pk_mul_f32 v[{G+2}:{G+3}], v[{G+2}:{G+3}], v[{U+2}:{U+3}]")
            k(f"v_cvt_pk_bf16_f32 v{H+2*u}, v{G}, v{G+1}")
            k(f"v_cvt_pk_bf16_f32 v{H+2*u+1}, v{G+2}, v{G+3}")

    def stores(H, t):
        k(f"s_bitcmp1_b32 s{S_J}, 0")
        k(f"s_cbranch_scc1 L_hodd{t}")
        k(f"buffer_store_dwordx4 v[{H}:{H+3}], v{V_TOK}, s[8:11], s54 offen{POL}")
        k(f"buffer_store_dwordx4 v[{H+4}:{H+7}], v{V_TOK}, s[8:11], s54 offen offset:1024{POL}")
        k(f"buffer_store_dwordx4 v[{H+8}:{H+11}], v{V_TOK}, s[8:11], s54 offen offset:2048{POL}")
        k(f"buffer_store_dwordx2 v[{H+12}:{H+13}], v{V_TOK}, s[8:11], s54 offen offset:3072{POL}")
        k(f"s_branch L_hdone{t}")
        k.lab(f"L_hodd{t}")
        k(f"buffer_store_dwordx2 v[{H}:{H+1}], v{V_TOK}, s[8:11], s54 offen offset:8{POL}")
        k(f"buffer_store_dwordx4 v[{H+2}:{H+5}], v{V_TOK}, s[8:11], s54 offen offset:1024{POL}")
        k(f"buffer_store_dwordx4 v[{H+6}:{H+9}], v{V_TOK}, s[8:11], s54 offen offset:2048{POL}")
        k(f"buffer_store_dwordx4 v[{H+10}:{H+13}], v{V_TOK}, s[8:11], s54 offen offset:3072{POL}")
        k.lab(f"L_hdone{t}")
        k(f"s_add_u32 s54, s54, {A2_TT}")

    for t in tiles:
        if t < 3:
            base = 16 + 80 * t
            srcs = [(base + 24 + 8 * u, base + 28 + 8 * u) for u in range(7)]
            compute(base + 24, srcs)
            stores(base + 24, t)
        else:
            H = 40
            srcs = []
            for u in range(5):
                for q in range(8):
                    k(f"v_accvgpr_read_b32 v{56+8*u+q}, a{24+8*u+q}")
                srcs.append((56 + 8 * u, 60 + 8 * u))
            for u in range(5, 7):
                for q in range(8):
                    k(f"v_accvgpr_read_b32 v{136+8*(u-5)+q}, a{24+8*u+q}")
                srcs.append((136 + 8 * (u - 5), 140 + 8 * (u - 5)))
            compute(H, srcs)
            stores(H, 3)
            for q in range(24):
                k(f"v_accvgpr_read_b32 v{200+q}, a{q}")


def h_part(k):
    if k2.XOPT.get("split_tail", True):
        h_tiles(k, (2, 3))
    else:
        h_setup(k)
        h_tiles(k, (0, 1, 2, 3))


def consts(k):
    k("v_lshrrev_b32 v10, 4, v0")
    k("v_bfe_u32 v11, v0, 2, 2")
    k("v_and_b32 v12, 3, v0")
    k("v_lshl_add_u32 v13, v10, 2, v11")
    k("v_lshlrev_b32 v13, 6, v13")
    k("v_lshl_add_u32 v13, v12, 3, v13")
    k(f"v_add_u32 v13, {WPHI_OFF}, v13")
    for ft, W in ((0, WP0), (1, WP1)):
        for t in range(2):
            k(f"ds_read_b64_tr_b16 v[{W+2*t}:{W+2*t+1}], v13 offset:{t*1024 + ft*32}")
    k("v_and_b32 v12, 15, v0")
    k("v_lshlrev_b32 v11, 2, v10")
    k("v_sub_u32 v12, v12, v11")
    k("v_mov_b32 v14, 0x3f80")
    k("v_mov_b32 v15, 0x3f800000")
    for rg, (dl, dh) in enumerate(((0, 1), (2, 3))):
        k(f"v_cmp_eq_u32 vcc, {dl}, v12")
        k.nop(2)
        k(f"v_cndmask_b32 v{SEL0+rg}, 0, v14, vcc")
        k(f"v_cmp_eq_u32 vcc, {dh}, v12")
        k.nop(2)
        k(f"v_cndmask_b32 v{SEL0+rg}, v{SEL0+rg}, v15, vcc")
    k(f"v_mov_b32 v{SEL0+2}, 0")
    k(f"v_mov_b32 v{SEL0+3}, 0")
    k(f"v_mov_b32 v{SEL1}, 0")
    k(f"v_mov_b32 v{SEL1+1}, 0")
    k(f"v_mov_b32 v{SEL1+2}, v{SEL0}")
    k(f"v_mov_b32 v{SEL1+3}, v{SEL0+1}")
    for q in range(4):
        k(f"v_mov_b32 v{ONES+q}, 0x3f803f80")
    k(f"s_mov_b32 s{S_L2E}, {LOG2E}")
    k(f"s_mov_b32 s{S_L2E+1}, {LOG2E}")
    k(f"s_mov_b32 s{S_L2E+2}, {LOG2E | 0x80000000}")
    k(f"s_mov_b32 s{S_L2E+3}, {LOG2E | 0x80000000}")
    k("s_waitcnt lgkmcnt(0)")


def features(k, o, proj_only=False):
    for t in range(4):
        b = QB[t] + o
        for q in range(4):
            k(f"v_cvt_pk_bf16_f32 v{b+q}, v{b+2*q}, v{b+2*q+1}")
    k.nop(1)
    for t in range(4):
        b = QB[t] + o
        X = XR[t]
        k(f"v_mfma_f32_16x16x32_bf16 v[{X}:{X+3}], v[{WP0}:{WP0+3}], v[{b}:{b+3}], 0")
        k(f"v_mfma_f32_16x16x32_bf16 v[{X+4}:{X+7}], v[{WP1}:{WP1+3}], v[{b}:{b+3}], 0")
    k.nop(2)
    if proj_only:
        k.nop(6)
        for t in range(4):
            X = XR[t]
            for q in range(4):
                k(f"v_cvt_pk_bf16_f32 v{X+q}, v{X+2*q}, v{X+2*q+1}")
        return
    for t in range(4):
        X, a, b = XR[t], ST[t], ST[t] + 1
        if t == 0:
            k.nop(2)
        k(f"v_max3_f32 v{a}, v{X}, v{X+1}, v{X+2}")
        k(f"v_max3_f32 v{b}, -v{X}, -v{X+1}, -v{X+2}")
        k(f"v_max3_f32 v{a}, v{a}, v{X+3}, v{X+3}")
        k(f"v_max3_f32 v{b}, v{b}, -v{X+3}, -v{X+3}")
        if t == 0:
            k.nop(2)
    for t in range(4):
        X, a, b = XR[t], ST[t], ST[t] + 1
        k(f"v_max3_f32 v{a}, v{a}, v{X+4}, v{X+5}")
        k(f"v_max3_f32 v{b}, v{b}, -v{X+4}, -v{X+5}")
        k(f"v_max3_f32 v{a}, v{a}, v{X+6}, v{X+7}")
        k(f"v_max3_f32 v{b}, v{b}, -v{X+6}, -v{X+7}")
    for t in range(4):
        a, b = ST[t], ST[t] + 1
        k(f"v_permlane16_swap_b32 v{a}, v{b}")
    for t in range(4):
        a, b, c = ST[t], ST[t] + 1, ST[t] + 2
        k(f"v_max_f32 v{a}, v{a}, v{b}")
        k(f"v_mov_b32 v{c}, v{a}")
    for t in range(4):
        a, c = ST[t], ST[t] + 2
        if t == 3:
            k.nop(1)
        k(f"v_permlane32_swap_b32 v{a}, v{c}")
    for t in range(4):
        a, b, c = ST[t], ST[t] + 1, ST[t] + 2
        k(f"v_max_f32 v{a}, v{a}, v{c}")
        k(f"v_mov_b32 v{c}, v{a}")
    for t in range(4):
        a, c = ST[t], ST[t] + 2
        if t == 3:
            k.nop(1)
        k(f"v_permlane16_swap_b32 v{a}, v{c}")
    for t in range(4):
        a, c = ST[t], ST[t] + 2
        k(f"v_mul_f32 v{a}, s{S_L2E+2}, v{a}")
        k(f"v_mul_f32 v{c}, s{S_L2E+2}, v{c}")
    for t in range(4):
        X, E, a, c = XR[t], ER[t], ST[t], ST[t] + 2
        for q in range(0, 8, 2):
            k(f"v_pk_fma_f32 v[{E+q}:{E+q+1}], v[{X+q}:{X+q+1}], s[{S_L2E+2}:{S_L2E+3}], v[{c}:{c+1}] op_sel_hi:[1,1,0]")
        for q in range(0, 8, 2):
            k(f"v_pk_fma_f32 v[{X+q}:{X+q+1}], v[{X+q}:{X+q+1}], s[{S_L2E}:{S_L2E+1}], v[{a}:{a+1}] op_sel_hi:[1,1,0]")
    for t in range(4):
        X, E = XR[t], ER[t]
        for q in range(8):
            k(f"v_exp_f32 v{X+q}, v{X+q}")
            k(f"v_exp_f32 v{E+q}, v{E+q}")
    for t in range(4):
        X, E = XR[t], ER[t]
        for q in range(4):
            k(f"v_cvt_pk_bf16_f32 v{X+q}, v{X+2*q}, v{X+2*q+1}")
        for q in range(4):
            k(f"v_cvt_pk_bf16_f32 v{E+q}, v{E+2*q}, v{E+2*q+1}")


def q_part(k):
    features(k, 0, proj_only=True)
    k(f"s_add_u32 s12, s62, {PHIQ_OFF}")
    k("s_addc_u32 s13, s63, 0")
    k(f"s_mov_b32 s14, {4 << 20}")
    k("s_mov_b32 s15, 0x00020000")
    k(f"s_lshl_b32 s53, s{S_J}, 17")
    k("s_lshl_b32 s55, s52, 10")
    k("s_add_u32 s53, s53, s55")
    for t in range(4):
        X = XR[t]
        k(f"buffer_store_dwordx4 v[{X}:{X+3}], v{V_TOK}, s[12:15], s53 offen offset:{1024*t}{pol2()}")
    k.nop(2)


def KV(s, ft, dt):
    i = s * 4 + ft * 2 + dt
    return [16, 96, 176][i // 4] + 4 * (i % 4) if i < 8 else None


def tileaddr(i):
    return QB[i // 4] + 4 * (i % 4)


def k_part(k):
    features(k, 8)
    first = True
    for p in range(2):
        t0, t1 = 2 * p, 2 * p + 1
        TT = {t0: 72, t1: 152}
        for t in (t0, t1):
            X, E, T = XR[t], ER[t], TT[t]
            for s, src in ((0, X), (1, E)):
                o = T + 12 * s
                k(f"v_mfma_f32_16x16x32_bf16 v[{o+8}:{o+11}], v[{src}:{src+3}], v[{ONES}:{ONES+3}], 0")
                k(f"v_mfma_f32_16x16x32_bf16 v[{o}:{o+3}], v[{src}:{src+3}], v[{SEL0}:{SEL0+3}], 0")
                k(f"v_mfma_f32_16x16x32_bf16 v[{o+4}:{o+7}], v[{src}:{src+3}], v[{SEL1}:{SEL1+3}], 0")
        VF = 244
        for dt in range(2):
            a0 = QB[t0] + 16 + 4 * dt
            a1 = QB[t1] + 16 + 4 * dt
            k(f"v_cvt_pk_bf16_f32 v{VF+4*dt}, v{a0}, v{a0+1}")
            k(f"v_cvt_pk_bf16_f32 v{VF+4*dt+1}, v{a0+2}, v{a0+3}")
            k(f"v_cvt_pk_bf16_f32 v{VF+4*dt+2}, v{a1}, v{a1+1}")
            k(f"v_cvt_pk_bf16_f32 v{VF+4*dt+3}, v{a1+2}, v{a1+3}")
        for t in (t0, t1):
            T = TT[t]
            for s in range(2):
                o = T + 12 * s
                for q in range(4):
                    k(f"v_rcp_f32 v{o+8+q}, v{o+8+q}")
        k.nop(1)
        PK = XR[t0]
        for ti, t in enumerate((t0, t1)):
            T = TT[t]
            for s in range(2):
                o = T + 12 * s
                for ft in range(2):
                    a = o + 4 * ft
                    k(f"v_pk_mul_f32 v[{a}:{a+1}], v[{a}:{a+1}], v[{o+8}:{o+9}]")
                    k(f"v_pk_mul_f32 v[{a+2}:{a+3}], v[{a+2}:{a+3}], v[{o+10}:{o+11}]")
        for ti, t in enumerate((t0, t1)):
            T = TT[t]
            for s in range(2):
                o = T + 12 * s
                for ft in range(2):
                    a = o + 4 * ft
                    d = PK + 8 * s + 4 * ft + 2 * ti
                    k(f"v_cvt_pk_bf16_f32 v{d}, v{a}, v{a+1}")
                    k(f"v_cvt_pk_bf16_f32 v{d+1}, v{a+2}, v{a+3}")
        k.nop(2)
        for s in range(2):
            for ft in range(2):
                A = PK + 8 * s + 4 * ft
                for dt in range(2):
                    c = tileaddr(s * 4 + ft * 2 + dt)
                    src = "0" if p == 0 else f"v[{c}:{c+3}]"
                    k(f"v_mfma_f32_16x16x32_bf16 v[{c}:{c+3}], v[{A}:{A+3}], v[{VF+4*dt}:{VF+4*dt+3}], {src}")
                c = tileaddr(8 + s * 2 + ft)
                src = "0" if p == 0 else f"v[{c}:{c+3}]"
                k(f"v_mfma_f32_16x16x32_bf16 v[{c}:{c+3}], v[{A}:{A+3}], v[{ONES}:{ONES+3}], {src}")
    k.nop(8)
    k(f"s_mul_i32 s53, s{S_WAVE}, 12288")
    k(f"v_add_u32 v10, s53, v{V_TOK}")
    for i in range(12):
        c = tileaddr(i)
        k(f"ds_write_b128 v10, v[{c}:{c+3}] offset:{i*1024}")
    k("s_waitcnt lgkmcnt(0)")
    k("s_barrier")
    k(f"s_lshr_b32 s53, s{S_WAVE}, 1")
    k("s_lshl_b32 s53, s53, 2")
    k(f"s_and_b32 s55, s{S_WAVE}, 1")
    k("s_add_u32 s53, s53, s55")
    k("s_lshl_b32 s53, s53, 10")
    k(f"v_add_u32 v10, s53, v{V_TOK}")
    k(f"s_add_u32 s53, s{S_WAVE}, 8")
    k("s_lshl_b32 s53, s53, 10")
    k(f"v_add_u32 v11, s53, v{V_TOK}")
    R = 40
    for ww in range(4):
        k(f"ds_read_b128 v[{R+12*ww}:{R+12*ww+3}], v10 offset:{ww*12288}")
        k(f"ds_read_b128 v[{R+12*ww+4}:{R+12*ww+7}], v10 offset:{ww*12288+2048}")
        k(f"ds_read_b128 v[{R+12*ww+8}:{R+12*ww+11}], v11 offset:{ww*12288}")
    k(f"s_lshl_b32 s53, s{S_J}, 3")
    k(f"s_add_u32 s53, s53, s{S_R}")
    k(f"s_add_u32 s8, s62, {KVP_OFF}")
    k("s_addc_u32 s9, s63, 0")
    k(f"s_mov_b32 s10, {1 << 20}")
    k("s_mov_b32 s11, 0x00020000")
    k(f"s_add_u32 s12, s62, {ZP_OFF}")
    k("s_addc_u32 s13, s63, 0")
    k(f"s_mov_b32 s14, {64 << 10}")
    k("s_mov_b32 s15, 0x00020000")
    k("s_lshl_b32 s55, s53, 12")
    k(f"s_lshl_b32 s56, s{S_WAVE}, 10")
    k("s_add_u32 s55, s55, s56")
    k("s_lshl_b32 s56, s53, 8")
    k(f"s_lshl_b32 s57, s{S_WAVE}, 6")
    k("s_add_u32 s56, s56, s57")
    k("v_lshrrev_b32 v12, 4, v0")
    k("v_lshlrev_b32 v12, 4, v12")
    k("s_waitcnt lgkmcnt(0)")
    for q in range(0, 12, 2):
        k(f"v_pk_add_f32 v[{R+q}:{R+q+1}], v[{R+q}:{R+q+1}], v[{R+12+q}:{R+13+q}]")
        k(f"v_pk_add_f32 v[{R+24+q}:{R+25+q}], v[{R+24+q}:{R+25+q}], v[{R+36+q}:{R+37+q}]")
    for q in range(0, 12, 2):
        k(f"v_pk_add_f32 v[{R+q}:{R+q+1}], v[{R+q}:{R+q+1}], v[{R+24+q}:{R+25+q}]")
    for q in range(4):
        k(f"v_cvt_pk_bf16_f32 v{R+q}, v{R+2*q}, v{R+2*q+1}")
    k(f"buffer_store_dwordx4 v[{R}:{R+3}], v{V_TOK}, s[8:11], s55 offen{pol2()}")
    k("s_mov_b32 exec_lo, 0x00010001")
    k("s_mov_b32 exec_hi, 0x00010001")
    k(f"buffer_store_dwordx4 v[{R+8}:{R+11}], v12, s[12:15], s56 offen")
    k("s_mov_b64 exec, -1")


OPT = dict(pf=True, sent=True)


def prefetch_w2(k):
    if not OPT["pf"]:
        k.nop(8)
        return
    k("s_load_dwordx2 s[12:13], s[0:1], 56")
    k("s_load_dwordx2 s[16:17], s[0:1], 24")
    k("s_lshl_b32 s52, s2, 2")
    k(f"s_add_u32 s52, s52, s{S_WAVE}")
    k("v_lshlrev_b32 v10, 7, v0")
    k("v_and_b32 v12, 0x7ff, v10")
    k("s_mov_b32 s14, 7340032")
    k("s_mov_b32 s15, 0x00020000")
    k("s_mov_b32 s18, 2097152")
    k("s_mov_b32 s19, 0x00020000")
    k(f"s_mul_i32 s53, s52, {56 * 128}")
    k("s_lshl_b32 s54, s52, 11")
    k("s_waitcnt lgkmcnt(0)")
    k("buffer_load_dword v11, v10, s[12:15], s53 offen")
    k("buffer_load_dword v13, v12, s[16:19], s54 offen")


def sentinel_stores(k):
    if not OPT["sent"]:
        return
    k(f"s_add_u32 s20, s62, {XCH_OFF}")
    k("s_addc_u32 s21, s63, 0")
    k(f"s_mov_b32 s22, {8 << 20}")
    k("s_mov_b32 s23, 0x00020000")
    k("s_lshl_b32 s55, s2, 2")
    k(f"s_add_u32 s55, s55, s{S_WAVE}")
    k("s_lshl_b32 s55, s55, 13")
    k("s_add_u32 s56, s55, 4096")
    for q in range(4):
        k(f"v_mov_b32 v{252+q}, -1")
    for h in range(2):
        for q in range(4):
            k(f"buffer_store_dwordx4 v[252:255], v{V_TOK}, s[20:23], s{55 + h} offen offset:{1024 * q}")


def epilogue(k):
    k("s_waitcnt lgkmcnt(0)")
    k("s_barrier")
    k.nop(8)
    h_part(k)
    consts(k)
    q_part(k)
    k_part(k)
```

```python
import sys
from build import *
import k1, k2, k2e, k3j as k3
stamps = "--stamps" in sys.argv
k2.XOPT['side'] = 'tail'
k3.OPT.update(order='lead4', nlead=1)
k1.POL = k2e.POL = ' sc1'
k2.BACKOFF, k2.POLLS = 0, 2
k2.ORDER = 'win'
k2.XOPT['split_tail'] = False
k2.XOPT['onepass'] = False
k2e.POL2 = ''
k3.OPT['opol'] = ' nt'
k2.XOPT.update(tlb=False, wpf=False, snake=True, ipf=True, nonce=True, pollfirst=True, early1=False)
k3.OPT['hprio'] = 'none'
k2.PSTAMP = '--pst' in sys.argv
for a in sys.argv:
    if a.startswith('--opol='):
        k3.OPT['opol'] = ' ' + a[7:]
    if a.startswith('--bo='):
        k2.BACKOFF, k2.POLLS = map(int, a[5:].split(','))
    if a.startswith('--pol='):
        k1.POL = k2e.POL = ' ' + a[6:].replace('+', ' ')
out = [a for a in sys.argv[1:] if not a.startswith("--")]
out = out[0] if out else "parallel_sum__linear_kernel_hedgehog__glu_gated_reglu__prompt.s"
ok = assemble([k2.gen_k2(stamps=stamps, epilogue=k2e.epilogue), k3.gen_k3(stamps=stamps)], out)
print("hazards ok:", ok, "->", out)
```

```python
from dsl import *
from k1 import srd, XN_OFF, A2_OFF, PHIQ_OFF, KVP_OFF, ZP_OFF

STAGE = 20480
RING = 5
NS = 4
ROT = True
XOPT = dict(bar=True, halfwait=False, side=True, nosalu=False, lds=True, dma=True, tok=True, ldsfrac=1)
PD = RING - 2
NB = 10
DBG_OFF = 64 << 20
WPHI_OFF = STAGE * RING

V_TOK = 1
V_DMA = 2
V_AQ0, V_AQ1, V_AG = 7, 8, 9
ACC_V0 = 16
A_TOK = 80
A_WF = A_TOK + 16 * NS
NAGPR = A_WF + 4 * NB

S_XN = 8
S_W = 12
S_SOFF = 32
S_SSTR = 37
S_TOFF = 42
S_RING = 43
S_RLIM = 44
S_RD = 45
S_CNT = 46
S_WAVE = 47
S_J = 48
S_R = 49
S_DELTA = 50
S_T0 = 51
S_IDX, S_WB, S_ROT, S_P = 70, 71, 72, 73
S_NEG = 66
S_POS = 67
S_C1 = 68
S_C2 = 69


def acc(n, t):
    if t < 3:
        return vr(ACC_V0 + 80 * t + 4 * n, 4)
    return ar(4 * n, 4)


def tok(setn, t):
    return ar(A_TOK + 16 * setn + 4 * t, 4)


def wf(n):
    return A_WF + 4 * (n % NB)


def frag_reads(n):
    b = wf(n)
    out = []
    for t in range(2):
        if n < 6:
            m, hf = n >> 1, n & 1
            a = V_AQ1 if hf else V_AQ0
            off = t * 3072 + m * 64
        else:
            u, isu = (n - 6) >> 1, (n - 6) & 1
            a = V_AG
            off = 6144 + isu * 7168 + t * 3584 + u * 32
        out.append(f"ds_read_b64_tr_b16 {ar(b + 2 * t, 2)}, v{a} offset:{off}")
    return out


def mfma(n, t, setn):
    w = ar(wf(n), 4)
    x = tok(setn, t)
    c = acc(n, t)
    if n in (4, 5):
        return f"v_mfma_f32_16x16x32_bf16 {c}, {x}, {w}, {c}"
    return f"v_mfma_f32_16x16x32_bf16 {c}, {w}, {x}, {c}"


def dma(i):
    return [f"s_add_u32 m0, s{S_RING}, {i * 1024}",
            f"s_mul_i32 s{S_SOFF + i}, s{S_P}, s{S_SSTR + i}",
            f"buffer_load_dwordx4 v{V_DMA + i}, s[{S_W + 4 * i}:{S_W + 4 * i + 3}], s{S_SOFF + i} offen{XOPT.get('wpol', '')} lds"]


ORDER = "lead"
NLEAD = 2


def p_adv():
    if ORDER == "win":
        return [[f"s_lshl_b32 s{S_TOFF}, s{S_P}, 12",
                 f"s_add_u32 s{S_IDX}, s{S_IDX}, 1",
                 f"s_and_b32 s{S_IDX}, s{S_IDX}, 7"],
                [f"s_cmp_eq_u32 s{S_IDX}, s{S_ROT}",
                 f"s_cselect_b32 s{S_T0}, 8, 0",
                 f"s_add_u32 s{S_WB}, s{S_WB}, s{S_T0}",
                 f"s_add_u32 s{S_P}, s{S_WB}, s{S_IDX}"]]
    return [[f"s_lshl_b32 s{S_TOFF}, s{S_P}, 12",
             f"s_add_u32 s{S_WB}, s{S_WB}, 1",
             f"s_sub_u32 s{S_T0}, s{S_WB}, s{S_ROT}",
             f"s_and_b32 s{S_T0}, s{S_T0}, 7"],
            [f"s_cmp_lt_u32 s{S_T0}, {NLEAD}",
             f"s_cselect_b32 s{S_T0}, 0, 24",
             f"s_add_u32 s{S_P}, s{S_WB}, s{S_T0}",
             f"s_and_b32 s{S_P}, s{S_P}, 31",
             f"s_cmp_ge_u32 s{S_WB}, 32",
             f"s_cselect_b32 s{S_P}, s{S_WB}, s{S_P}"]]


def ring_adv():
    return [f"s_cmp_eq_u32 s{S_RING}, s{S_RLIM}",
            f"s_cselect_b32 s{S_T0}, s{S_NEG}, s{S_POS}",
            f"s_add_u32 s{S_RING}, s{S_RING}, s{S_T0}"]


def tokload(setn, t):
    return [f"buffer_load_dwordx4 {tok(setn, t)}, v{V_TOK}, s[{S_XN}:{S_XN + 3}], s{S_TOFF} offen offset:{1024 * t}{XOPT.get('tpol', ' sc1')}"]


FINE = False
PSTAMP = False

def pst(k, i):
    if PSTAMP:
        k('s_memrealtime s[98:99]')
        k('s_waitcnt lgkmcnt(0)')
        k(f's_mov_b32 s{80+i}, s98')

def prologue(k, D):
    k("s_cmp_ge_u32 s2, 256")
    k("s_cbranch_scc1 L_k2_end")
    k("s_load_dwordx2 s[4:5], s[0:1], 8")
    k("s_load_dwordx2 s[6:7], s[0:1], 40")
    k("s_load_dwordx2 s[60:61], s[0:1], 48")
    k("s_load_dwordx2 s[62:63], s[0:1], 80")
    k("s_load_dwordx2 s[64:65], s[0:1], 16")
    k("s_load_dwordx2 s[56:57], s[0:1], 0")
    k("s_load_dwordx2 s[76:77], s[0:1], 72")
    k("v_lshrrev_b32 v10, 6, v0")
    k("v_and_b32 v0, 63, v0")
    k("s_and_b32 s51, s2, 7")
    k("v_readfirstlane_b32 s47, v10")
    k("s_lshr_b32 s52, s2, 3")
    k("s_and_b32 s53, s52, 3")
    k("s_lshl_b32 s48, s51, 2")
    k("s_add_u32 s48, s48, s53")
    k("s_lshr_b32 s49, s52, 2")
    k(f"v_lshlrev_b32 v{V_TOK}, 4, v0")
    k("s_waitcnt lgkmcnt(0)")
    k("s_mov_b32 s58, 4194304")
    k("s_mov_b32 s59, 0x00020000")
    k("v_and_b32 v10, 7, v0")
    k("v_lshlrev_b32 v10, 11, v10")
    k("v_lshrrev_b32 v11, 3, v0")
    k("v_lshl_add_u32 v10, v11, 4, v10")
    k("s_lshl_b32 s51, s47, 9")
    k("v_add_u32 v10, s51, v10")
    k("s_lshl_b32 s51, s49, 8")
    k("s_lshl_b32 s52, s48, 3")
    k("s_add_u32 s51, s51, s52")
    k("s_lshl_b32 s51, s51, 11")
    for i in range(4):
        k(f"buffer_load_dwordx4 v[{16+4*i}:{19+4*i}], v10, s[56:59], s51 offen offset:{128*i}")
    if XOPT.get("nonce", True):
        k("s_mov_b32 s78, 256")
        k("s_mov_b32 s79, 0x00020000")
        k("v_mov_b32 v13, 252")
        k("s_or_b32 s51, s2, s47")
        k("s_cmp_eq_u32 s51, 0")
        k("s_cbranch_scc0 L_k2_nonce0")
        k("s_memrealtime s[86:87]")
        k("s_waitcnt lgkmcnt(0)")
        k("s_or_b32 s86, s86, 1")
        k("v_mov_b32 v14, s86")
        k("s_mov_b64 exec, 1")
        k("buffer_store_dword v14, v13, s[76:79], 0 offen sc1")
        k("s_mov_b64 exec, -1")
        k.lab("L_k2_nonce0")
    if XOPT.get("ipf", True):
        k("s_getpc_b64 s[84:85]")
        k.lab("L_k2_pc")
        k("s_sub_u32 s84, s84, L_k2_pc-k2_gemm1_kernel")
        k("s_subb_u32 s85, s85, 0")
        k("s_lshr_b32 s51, s2, 3")
        k("s_lshl_b32 s51, s51, 10")
        k("v_and_b32 v12, 7, v0")
        k("v_lshlrev_b32 v12, 7, v12")
        k("v_add_u32 v12, s51, v12")
        k("v_min_u32 v12, L_code_end-k2_gemm1_kernel-4, v12")
        k("global_load_dword a247, v12, s[84:85]")
    if XOPT.get("tlb", True):
        k("s_mov_b32 s78, 256")
        k("s_mov_b32 s79, 0x00020000")
        k("v_mov_b32 v12, 0")
        k("buffer_load_dword a250, v12, s[76:79], 0 offen offset:252")
        k(f"s_add_u32 s80, s62, {XN_OFF}")
        k("s_addc_u32 s81, s63, 0")
        k("s_mov_b32 s82, 4194304")
        k("s_mov_b32 s83, 0x00020000")
        k("s_lshl_b32 s51, s49, 19")
        k("buffer_load_dword a251, v12, s[80:83], s51 offen")
    k("s_lshl_b32 s51, s49, 2")
    k("s_add_u32 s51, s51, s47")
    k("s_lshl_b32 s51, s51, 17")
    k(f"s_add_u32 s{S_XN}, s62, s51")
    k(f"s_addc_u32 s{S_XN+1}, s63, 0")
    k(f"s_mov_b32 s{S_XN+2}, 131072")
    k(f"s_mov_b32 s{S_XN+3}, 0x00020000")
    if ROT:
        k(f"s_and_b32 s51, s{S_J}, 3")
        k("s_lshl_b32 s51, s51, 1")
        k(f"s_add_u32 s51, s51, s{S_R}")
        k(f"s_and_b32 s{S_ROT}, s51, 7")
    else:
        k(f"s_mov_b32 s{S_ROT}, 0")
    k(f"s_mov_b32 s{S_IDX}, s{S_ROT}")
    k(f"s_mov_b32 s{S_WB}, 0")
    if ORDER == "win":
        k(f"s_mov_b32 s{S_P}, s{S_ROT}")
    else:
        k(f"s_sub_u32 s51, 0, s{S_ROT}")
        k("s_and_b32 s51, s51, 7")
        k(f"s_cmp_lt_u32 s51, {NLEAD}")
        k(f"s_cselect_b32 s{S_P}, 0, 24")
    k(f"s_mov_b32 s{S_C1}, 7340032")
    k(f"s_mov_b32 s{S_C2}, {32*7168}")
    k(f"s_mov_b32 s{S_NEG}, {(-STAGE*(RING-1)) & 0xffffffff}")
    k(f"s_mov_b32 s{S_POS}, {STAGE}")
    k("s_mul_i32 s54, s47, 5")
    k("s_mul_i32 s55, s48, 224")
    k("s_lshl_b32 s56, s48, 6")
    k(f"s_lshl_b32 s{S_RING}, s54, 10")
    k(f"s_add_u32 s{S_RLIM}, s{S_RING}, {STAGE*(RING-1)}")
    k(f"s_mov_b32 s{S_RD}, 0")
    for i in range(5):
        S = S_W + 4 * i
        k(f"s_add_u32 s51, s54, {i}")
        k("s_cmp_lt_u32 s51, 13")
        k(f"s_cselect_b32 s{S}, s6, s60")
        k(f"s_cselect_b32 s{S+1}, s7, s61")
        k("s_cselect_b32 s52, 6, 13")
        k("s_cmp_lt_u32 s51, 6")
        k(f"s_cselect_b32 s{S}, s4, s{S}")
        k(f"s_cselect_b32 s{S+1}, s5, s{S+1}")
        k(f"s_cselect_b32 s{S+2}, 6291456, s{S_C1}")
        k(f"s_mov_b32 s{S+3}, 0x00020000")
        k("s_cselect_b32 s52, 0, s52")
        k(f"s_cselect_b32 s{S_SSTR+i}, {32*6144}, s{S_C2}")
        k("s_sub_u32 s53, s51, s52")
        k("s_lshl_b32 s53, s53, 6")
        k("v_add_u32 v10, s53, v0")
        k("s_cmp_lt_u32 s51, 6")
        k(f"s_cbranch_scc1 L_k2_q{i}")
        k("v_mul_u32_u24 v11, 4682, v10")
        k("v_lshrrev_b32 v11, 16, v11")
        k("v_mul_u32_u24 v12, 14, v11")
        k("v_sub_u32 v12, v10, v12")
        k("v_mul_u32_u24 v11, 7168, v11")
        k("v_lshl_add_u32 v11, v12, 4, v11")
        k(f"v_add_u32 v{V_DMA+i}, s55, v11")
        k(f"s_branch L_k2_qd{i}")
        k.lab(f"L_k2_q{i}")
        k("v_mul_u32_u24 v12, 5462, v10")
        k("v_lshrrev_b32 v12, 16, v12")
        k("v_mul_u32_u24 v13, 12, v12")
        k("v_sub_u32 v13, v10, v13")
        k("v_lshrrev_b32 v14, 2, v13")
        k("v_and_b32 v13, 3, v13")
        k("v_lshrrev_b32 v15, 1, v12")
        k("v_and_b32 v15, 2, v15")
        k("v_xor_b32 v13, v13, v15")
        k("v_mul_u32_u24 v12, 6144, v12")
        k("v_lshl_add_u32 v12, v14, 11, v12")
        k("v_lshl_add_u32 v12, v13, 4, v12")
        k(f"v_add_u32 v{V_DMA+i}, s56, v12")
        k.lab(f"L_k2_qd{i}")
        a, b, c = dma(i)
        k(a); k(b); k(c)

    def adv():
        for g in p_adv():
            for x in g:
                k(x)
        for x in ring_adv():
            k(x)

    def wgroup(st):
        for i in range(5):
            a, b, c = dma(i)
            k(a); k(b); k(c)
        adv()
        k(f"s_mov_b32 s{95 - st}, s{S_TOFF}")

    adv()
    k(f"s_mov_b32 s95, s{S_TOFF}")
    EARLY = XOPT.get("early1", True)
    if EARLY:
        wgroup(1)
    layernorm(k, (5 if EARLY else 0) + 5 + (2 if XOPT.get('tlb', True) else 0) + (1 if XOPT.get('ipf', True) else 0))
    if XOPT.get('wpf', True):
        w1_prefetch(k)
    if FINE: stamp(k, 2)
    k("v_lshrrev_b32 v10, 4, v0")
    k("v_bfe_u32 v11, v0, 2, 2")
    k("v_and_b32 v12, 3, v0")
    k("v_lshl_add_u32 v13, v10, 2, v11")
    k(f"v_mul_u32_u24 v{V_AG}, 224, v13")
    k(f"v_lshl_add_u32 v{V_AG}, v12, 3, v{V_AG}")
    k(f"v_mul_u32_u24 v{V_AQ0}, 192, v13")
    k("v_and_b32 v14, 1, v12")
    k(f"v_lshl_add_u32 v{V_AQ0}, v14, 3, v{V_AQ0}")
    k("v_lshrrev_b32 v14, 1, v12")
    k(f"v_lshl_add_u32 v{V_AQ0}, v14, 4, v{V_AQ0}")
    k("v_and_b32 v14, 1, v10")
    k(f"v_lshl_add_u32 v{V_AQ1}, v14, 5, 0")
    k(f"v_xor_b32 v15, 32, v{V_AQ1}")
    k(f"v_add_u32 v15, v15, v{V_AQ0}")
    k(f"v_add_u32 v{V_AQ0}, v{V_AQ1}, v{V_AQ0}")
    k(f"v_mov_b32 v{V_AQ1}, v15")
    for i in range(ACC_V0, 256):
        k(f"v_mov_b32 v{i}, 0")
    for i in range(80):
        k(f"v_accvgpr_write_b32 a{i}, 0")
    side_jobs_setup(k)
    if XOPT["side"] == "pro":
        k("s_mov_b64 s[56:57], s[76:77]")
        side_jobs_setup2(k)
        side_jobs_body(k)
        k("s_mov_b64 s[76:77], s[56:57]")
        k("s_mov_b32 s78, 256")
        k("s_lshl_b32 s51, s49, 5")
        k("v_mov_b32 v10, s51")
    W1PRE = XOPT.get("w1pre", True) and not EARLY and not PSTAMP

    def wphi():
        k("s_lshl_b32 s51, s48, 11")
        k("s_add_u32 s56, s64, s51")
        k("s_addc_u32 s57, s65, 0")
        k("s_mov_b32 s58, 2048")
        k("s_mov_b32 s59, 0x00020000")
        k(f"s_mov_b32 m0, {WPHI_OFF}")
        k("s_nop 0")
        k(f"buffer_load_dwordx4 v{V_TOK}, s[56:59], 0 offen lds")
        k(f"buffer_load_dwordx4 v{V_TOK}, s[56:59], 0 offen offset:1024 lds")

    def wrest():
        for st in range(2 if (EARLY or W1PRE) else 1, RING - 1):
            wgroup(st)
        wphi()

    if XOPT.get("pollfirst", True):
        if W1PRE:
            wgroup(1)
        k("s_cmp_eq_u32 s47, 0")
        k("s_cbranch_scc1 L_k2_dopoll")
        save = list(k.L)
        wrest()
        body = k.L[len(save):]
        k("s_branch L_k2_nopoll")
        k.lab("L_k2_dopoll")
        k("s_mov_b32 s51, 200000")
        k.lab("L_k2_poll")
        k("buffer_load_dword v11, v10, s[76:79], 0 offen sc1")
        k("s_waitcnt vmcnt(0)")
        if XOPT.get("nonce", True):
            k("v_cmp_ne_u32 vcc, s88, v11")
            k.nop(1)
            k("s_cmp_eq_u64 vcc, 0")
        else:
            k("v_readfirstlane_b32 s52, v11")
            k.nop(1)
            k("s_cmp_ge_u32 s52, 32")
        k("s_cbranch_scc1 L_k2_polled")
        k("s_sub_u32 s51, s51, 1")
        k("s_cmp_eq_u32 s51, 0")
        k("s_cbranch_scc1 L_k2_polled")
        k(f"s_sleep {POLLS}")
        k("s_branch L_k2_poll")
        k.lab("L_k2_polled")
        pst(k, 5)
        k("s_barrier")
        if W1PRE:
            k(f"s_mov_b32 s{S_TOFF}, s95")
            for t in range(4):
                k(tokload(0, t)[0])
            for ln in body:
                k.L.append(ln)
            for st in (1, 2):
                k(f"s_mov_b32 s{S_TOFF}, s{95 - st}")
                for t in range(4):
                    k(tokload(st, t)[0])
            k(f"s_mov_b32 s{S_TOFF}, s92")
            side_jobs_setup2(k)
            k("s_waitcnt vmcnt(20)")
            k("s_branch L_k2_join")
        elif EARLY and not PSTAMP:
            for st in range(2):
                k(f"s_mov_b32 s{S_TOFF}, s{95 - st}")
                for t in range(4):
                    k(tokload(st, t)[0])
            for ln in body:
                k.L.append(ln)
            k(f"s_mov_b32 s{S_TOFF}, s93")
            for t in range(4):
                k(tokload(2, t)[0])
            k(f"s_mov_b32 s{S_TOFF}, s92")
            side_jobs_setup2(k)
            k("s_waitcnt vmcnt(20)")
            k("s_branch L_k2_join")
        else:
            for ln in body:
                k.L.append(ln)
            k("s_branch L_k2_go")
    else:
        wrest()
        k("s_cmp_eq_u32 s47, 0")
        k("s_cbranch_scc0 L_k2_nopoll")
        k("s_mov_b32 s51, 200000")
        if BACKOFF:
            k(f"s_sleep {BACKOFF}")
        k.lab("L_k2_poll")
        k("buffer_load_dword v11, v10, s[76:79], 0 offen sc1")
        k("s_waitcnt vmcnt(0)")
        if XOPT.get("nonce", True):
            k("v_cmp_ne_u32 vcc, s88, v11")
            k.nop(1)
            k("s_cmp_eq_u64 vcc, 0")
        else:
            k("v_readfirstlane_b32 s52, v11")
            k.nop(1)
            k("s_cmp_ge_u32 s52, 32")
        k("s_cbranch_scc1 L_k2_nopoll")
        k("s_sub_u32 s51, s51, 1")
        k("s_cmp_eq_u32 s51, 0")
        k("s_cbranch_scc1 L_k2_nopoll")
        k(f"s_sleep {POLLS}")
        k("s_branch L_k2_poll")

    k.lab("L_k2_nopoll")
    if not XOPT.get("pollfirst", True):
        pst(k, 5)
    k("s_barrier")
    k.lab("L_k2_go")
    if PSTAMP:
        k(f"s_add_u32 s56, s62, {(60 << 20)}")
        k("s_addc_u32 s57, s63, 0")
        k("s_mov_b32 s58, 65536")
        k("s_mov_b32 s59, 0x00020000")
        k("s_lshl_b32 s51, s2, 8")
        k("v_mov_b32 v10, s51")
        k("s_cmp_eq_u32 s47, 0")
        k("s_cbranch_scc0 L_k2_nops")
        k("s_mov_b64 exec, 1")
        for i in range(6):
            k(f"v_mov_b32 v11, s{80+i}")
            k(f"buffer_store_dword v11, v10, s[56:59], 0 offen offset:{128 + 4*i}")
        k("s_mov_b64 exec, -1")
        k.lab("L_k2_nops")
    for st in range(RING - 2):
        k(f"s_mov_b32 s{S_TOFF}, s{95 - st}")
        for t in range(4):
            k(tokload(st, t)[0])
    k(f"s_mov_b32 s{S_TOFF}, s{95 - (RING - 2)}")
    if XOPT["side"] != "pro":
        side_jobs_setup2(k)
    k(f"s_waitcnt vmcnt({8 if (XOPT.get('early1', True) or XOPT.get('w1pre', True)) and not PSTAMP else 0})")
    k.lab("L_k2_join")
    k("s_barrier")
    for n in range(D):
        for x in frag_reads(n):
            k(x)


def layernorm_twopass(k, RED):
    from k1 import xreduce_add
    k("v_pk_add_f32 v[64:65], v[32:33], v[34:35]")
    k("v_pk_add_f32 v[66:67], v[36:37], v[38:39]")
    for i in range(4, 16, 2):
        k(f"v_pk_add_f32 v[64:65], v[64:65], v[{32+2*i}:{33+2*i}]")
        k(f"v_pk_add_f32 v[66:67], v[66:67], v[{34+2*i}:{35+2*i}]")
    k("v_and_b32 v68, 7, v0")
    k("v_lshlrev_b32 v68, 4, v68")
    k(f"v_add_u32 v68, {RED}, v68")
    k("s_lshl_b32 s52, s47, 2")
    k("v_add_u32 v69, s52, v68")

    def reduce(off):
        k("v_pk_add_f32 v[64:65], v[64:65], v[66:67]")
        k("v_add_f32 v64, v64, v65")
        k.nop(2)
        k("v_add_f32_dpp v64, v64, v64 row_ror:8 row_mask:0xf bank_mask:0xf")
        xreduce_add(k, 64, 65)
        k(f"ds_write_b32 v69, v64 offset:{off}")
        k("s_waitcnt lgkmcnt(0)")
        k("s_barrier")
        k(f"ds_read_b128 v[64:67], v68 offset:{off}")
        k("s_waitcnt lgkmcnt(0)")
        k("v_pk_add_f32 v[64:65], v[64:65], v[66:67]")
        k("v_add_f32 v64, v64, v65")

    reduce(0)
    k("v_mul_f32 v64, 0xba800000, v64")
    for i in range(16):
        k(f"v_pk_add_f32 v[{32+2*i}:{33+2*i}], v[{32+2*i}:{33+2*i}], v[64:65] op_sel_hi:[1,0]")
    k("v_pk_mul_f32 v[64:65], v[32:33], v[32:33]")
    k("v_pk_mul_f32 v[66:67], v[34:35], v[34:35]")
    for i in range(2, 16, 2):
        k(f"v_pk_fma_f32 v[64:65], v[{32+2*i}:{33+2*i}], v[{32+2*i}:{33+2*i}], v[64:65]")
        k(f"v_pk_fma_f32 v[66:67], v[{34+2*i}:{35+2*i}], v[{34+2*i}:{35+2*i}], v[66:67]")
    reduce(128)
    k("v_mov_b32 v65, 0x3727c5ac")
    k("v_fmac_f32 v65, 0x3a800000, v64")
    k("v_rsq_f32 v64, v65")
    k.nop(1)
    for i in range(16):
        k(f"v_pk_mul_f32 v[{32+2*i}:{33+2*i}], v[{32+2*i}:{33+2*i}], v[64:65] op_sel_hi:[1,0]")
    for i in range(16):
        k(f"v_cvt_pk_bf16_f32 v{16+i}, v{32+2*i}, v{33+2*i}")


def layernorm(k, nyounger):
    from k1 import xreduce_add
    RED = WPHI_OFF + 2048
    pst(k, 0)
    k(f"s_waitcnt vmcnt({nyounger})")
    pst(k, 1)
    k("s_mov_b32 s51, 0xffff0000")
    for i in range(16):
        k(f"v_lshlrev_b32 v{32+2*i}, 16, v{16+i}")
        k(f"v_and_b32 v{33+2*i}, s51, v{16+i}")
    if XOPT.get("onepass", True):
        k("v_pk_add_f32 v[64:65], v[32:33], v[34:35]")
        k("v_pk_mul_f32 v[66:67], v[32:33], v[32:33]")
        k("v_pk_fma_f32 v[66:67], v[34:35], v[34:35], v[66:67]")
        for i in range(2, 16):
            k(f"v_pk_add_f32 v[64:65], v[64:65], v[{32+2*i}:{33+2*i}]")
            k(f"v_pk_fma_f32 v[66:67], v[{32+2*i}:{33+2*i}], v[{32+2*i}:{33+2*i}], v[66:67]")
        k("v_and_b32 v68, 7, v0")
        k("v_lshlrev_b32 v68, 5, v68")
        k(f"v_add_u32 v68, {RED}, v68")
        k("s_lshl_b32 s52, s47, 3")
        k("v_add_u32 v69, s52, v68")
        k("v_add_f32 v64, v64, v65")
        k("v_add_f32 v65, v66, v67")
        k.nop(1)
        k("v_add_f32_dpp v64, v64, v64 row_ror:8 row_mask:0xf bank_mask:0xf")
        k("v_add_f32_dpp v65, v65, v65 row_ror:8 row_mask:0xf bank_mask:0xf")
        k("v_mov_b32 v66, v64")
        k("v_mov_b32 v67, v65")
        k.nop(1)
        k("v_permlane16_swap_b32 v64, v66")
        k("v_permlane16_swap_b32 v65, v67")
        k.nop(1)
        k("v_add_f32 v64, v64, v66")
        k("v_add_f32 v65, v65, v67")
        k("v_mov_b32 v66, v64")
        k("v_mov_b32 v67, v65")
        k.nop(1)
        k("v_permlane32_swap_b32 v64, v66")
        k("v_permlane32_swap_b32 v65, v67")
        k.nop(1)
        k("v_add_f32 v64, v64, v66")
        k("v_add_f32 v65, v65, v67")
        k("ds_write_b64 v69, v[64:65]")
        k("s_waitcnt lgkmcnt(0)")
        k("s_barrier")
        k("ds_read_b128 v[64:67], v68")
        k("ds_read_b128 v[72:75], v68 offset:16")
        k("s_waitcnt lgkmcnt(0)")
        k("v_pk_add_f32 v[64:65], v[64:65], v[66:67]")
        k("v_pk_add_f32 v[72:73], v[72:73], v[74:75]")
        k("v_pk_add_f32 v[64:65], v[64:65], v[72:73]")
        k("v_mul_f32 v64, 0x3a800000, v64")
        k("v_mul_f32 v66, v64, v64")
        k("v_mov_b32 v67, 0x3a800000")
        k("v_fma_f32 v65, v65, v67, -v66")
        k("v_max_f32 v65, 0, v65")
        k("v_add_f32 v65, 0x3727c5ac, v65")
        k("v_rsq_f32 v66, v65")
        k.nop(1)
        k("v_mul_f32 v64, v64, v66")
        k("v_mov_b32 v67, v66")
        k("v_sub_f32 v64, 0, v64")
        for i in range(16):
            k(f"v_pk_fma_f32 v[{32+2*i}:{33+2*i}], v[{32+2*i}:{33+2*i}], v[66:67], v[64:65] op_sel_hi:[1,1,0]")
        for i in range(16):
            k(f"v_cvt_pk_bf16_f32 v{16+i}, v{32+2*i}, v{33+2*i}")
    else:
        layernorm_twopass(k, RED)
    pst(k, 2)
    k("v_lshrrev_b32 v70, 5, v0")
    k("v_lshlrev_b32 v70, 12, v70")
    k("v_bfe_u32 v71, v0, 3, 1")
    k("v_lshl_add_u32 v70, v71, 9, v70")
    k("v_bfe_u32 v71, v0, 4, 1")
    k("v_lshl_add_u32 v70, v71, 3, v70")
    k("v_and_b32 v71, 7, v0")
    k("v_lshl_add_u32 v70, v71, 4, v70")
    k(f"s_add_u32 s56, s62, {XN_OFF}")
    k("s_addc_u32 s57, s63, 0")
    k("s_mov_b32 s58, 4194304")
    k("s_mov_b32 s59, 0x00020000")
    k("s_lshl_b32 s51, s49, 2")
    k("s_lshr_b32 s52, s48, 3")
    k("s_add_u32 s51, s51, s52")
    k("s_lshl_b32 s51, s51, 17")
    k("s_lshl_b32 s52, s47, 15")
    k("s_add_u32 s51, s51, s52")
    k("s_bfe_u32 s52, s48, 0x20001")
    k("s_lshl_b32 s52, s52, 10")
    k("s_add_u32 s51, s51, s52")
    k("s_and_b32 s52, s48, 1")
    k("s_lshl_b32 s52, s52, 7")
    k("s_add_u32 s51, s51, s52")
    for i in range(4):
        b = 16 + 4 * i
        k(f"buffer_store_dwordx2 v[{b}:{b+1}], v70, s[56:59], s51 offen sc1")
        k(f"buffer_store_dwordx2 v[{b+2}:{b+3}], v70, s[56:59], s51 offen offset:256 sc1")
        if i < 3:
            k("s_add_u32 s51, s51, 8192")


NCLR = 0
BACKOFF = 20
POLLS = 8

def w1_prefetch(k):
    k("s_lshr_b32 s51, s2, 3")
    k("s_lshl_b32 s51, s51, 5")
    k("s_lshl_b32 s52, s47, 3")
    k("s_add_u32 s51, s51, s52")
    k("s_and_b32 s52, s2, 7")
    k("v_mul_u32_u24 v72, 10923, v0")
    k("v_lshrrev_b32 v72, 16, v72")
    k("v_mul_u32_u24 v73, 6, v72")
    k("v_sub_u32 v73, v0, v73")
    k("v_mul_u32_u24 v72, 6144, v72")
    k("v_lshrrev_b32 v74, 1, v73")
    k("v_lshl_add_u32 v72, v74, 11, v72")
    k("v_and_b32 v73, 1, v73")
    k("v_lshl_add_u32 v72, v73, 7, v72")
    k("s_mul_i32 s53, s51, 6144")
    k("s_lshl_b32 s54, s52, 8")
    k("s_add_u32 s53, s53, s54")
    k("s_mov_b32 s56, s4"); k("s_mov_b32 s57, s5"); k("s_mov_b32 s58, 6291456"); k("s_mov_b32 s59, 0x00020000")
    k("v_cmp_gt_u32 vcc, 48, v0")
    k("s_and_saveexec_b64 s[86:87], vcc")
    k("buffer_load_dword a248, v72, s[56:59], s53 offen")
    k("s_mov_b64 exec, s[86:87]")
    k("v_mul_u32_u24 v72, 9363, v0")
    k("v_lshrrev_b32 v72, 16, v72")
    k("v_mul_u32_u24 v73, 7, v72")
    k("v_sub_u32 v73, v0, v73")
    k("v_mul_u32_u24 v72, 7168, v72")
    k("v_lshl_add_u32 v72, v73, 7, v72")
    k("s_mul_i32 s53, s51, 7168")
    k("s_mul_i32 s54, s52, 896")
    k("s_add_u32 s53, s53, s54")
    k("v_cmp_gt_u32 vcc, 56, v0")
    k("s_and_saveexec_b64 s[86:87], vcc")
    k("s_mov_b32 s56, s6"); k("s_mov_b32 s57, s7"); k("s_mov_b32 s58, 7340032")
    k("buffer_load_dword a249, v72, s[56:59], s53 offen")
    k("s_mov_b32 s56, s60"); k("s_mov_b32 s57, s61")
    k("buffer_load_dword a250, v72, s[56:59], s53 offen")
    k("s_mov_b64 exec, s[86:87]")


def ln_publish(k):
    from k1 import FLG_OFF
    NFL = FLG_OFF + 49152
    if not XOPT.get("nonce", True):
        k("s_mov_b32 s78, 256")
        k("s_mov_b32 s79, 0x00020000")
        k("s_lshl_b32 s51, s49, 5")
        k("v_mov_b32 v10, s51")
        k("v_mov_b32 v11, 1")
    k("s_cmp_lt_u32 s2, 8")
    k("s_cbranch_scc0 L_k2_noclr")
    k(f"s_add_u32 s56, s62, {FLG_OFF + 32768}")
    k("s_addc_u32 s57, s63, 0")
    k("s_mov_b32 s58, 8192")
    k("s_mov_b32 s59, 0x00020000")
    k("s_lshl_b32 s51, s2, 10")
    k("v_mov_b32 v12, s51")
    k("v_mov_b32 v13, 0")
    k("buffer_store_dword v13, v12, s[56:59], 0 offen")
    k.lab("L_k2_noclr")
    pst(k, 3)
    if XOPT.get("nonce", True):
        k("s_cmp_eq_u32 s47, 0")
        k("s_cbranch_scc0 L_k2_tagdone")
        k("v_mov_b32 v10, 252")
        k("s_mov_b32 s51, 200000")
        k.lab("L_k2_tag")
        k("buffer_load_dword v11, v10, s[76:79], 0 offen sc1")
        k("s_waitcnt vmcnt(0)")
        k("v_readfirstlane_b32 s88, v11")
        k.nop(1)
        k("s_cmp_lg_u32 s88, 0")
        k("s_cbranch_scc1 L_k2_tagdone")
        k("s_sub_u32 s51, s51, 1")
        k("s_cmp_eq_u32 s51, 0")
        k("s_cbranch_scc0 L_k2_tag")
        k.lab("L_k2_tagdone")
    k("s_waitcnt vmcnt(0)")
    pst(k, 4)
    k("s_barrier")
    k("s_cmp_eq_u32 s47, 0")
    k("s_cbranch_scc0 L_k2_nopub")
    if XOPT.get("nonce", True):
        k(f"s_add_u32 s76, s62, {NFL}")
        k("s_addc_u32 s77, s63, 0")
        k("s_mov_b32 s78, 8192")
        k(f"s_lshl_b32 s51, s49, 10")
        k(f"s_lshl_b32 s52, s48, 2")
        k("s_add_u32 s52, s52, s51")
        k("v_mov_b32 v10, s52")
        k("v_mov_b32 v11, s88")
        k("s_mov_b64 exec, 1")
        k("buffer_store_dword v11, v10, s[76:79], 0 offen sc1")
        k("s_mov_b64 exec, -1")
        k("v_and_b32 v10, 31, v0")
        k("v_lshlrev_b32 v10, 2, v10")
        k("v_add_u32 v10, s51, v10")
    else:
        k("s_mov_b64 exec, 1")
        k("buffer_atomic_add v11, v10, s[76:79], 0 offen")
        k("s_mov_b64 exec, -1")
    k.lab("L_k2_nopub")


def side_jobs_setup(k):
    ln_publish(k)


def side_jobs_setup2(k):
    from k1 import XCH_OFF
    k("s_load_dwordx2 s[76:77], s[0:1], 56")
    k("s_load_dwordx2 s[80:81], s[0:1], 24")
    k("s_lshl_b32 s52, s2, 2")
    k(f"s_add_u32 s52, s52, s{S_WAVE}")
    k("v_lshlrev_b32 v10, 7, v0")
    k("v_and_b32 v11, 0x7ff, v10")
    k("s_mov_b32 s78, 7340032")
    k("s_mov_b32 s79, 0x00020000")
    k("s_mov_b32 s82, 2097152")
    k("s_mov_b32 s83, 0x00020000")
    k(f"s_mul_i32 s74, s52, {56 * 128}")
    k("s_lshl_b32 s75, s52, 11")
    k(f"s_add_u32 s84, s62, {XCH_OFF}")
    k("s_addc_u32 s85, s63, 0")
    k(f"s_mov_b32 s86, {4 << 20}")
    k("s_mov_b32 s87, 0x00020000")
    k("s_lshl_b32 s88, s52, 12")
    k("s_lshr_b32 s89, s2, 3")
    k("s_mul_i32 s52, s89, 43")
    k("s_lshr_b32 s52, s52, 8")
    k("s_mul_i32 s52, s52, 6")
    k("s_sub_u32 s89, s89, s52")
    k("s_add_u32 s89, s89, 1")
    for q in range(4):
        k(f"v_mov_b32 v{12+q}, -1")
    k("s_waitcnt lgkmcnt(0)")


def side_jobs_body(k):
    k("buffer_load_dword a252, v10, s[76:79], s74 offen")
    k("buffer_load_dword a253, v11, s[80:83], s75 offen")
    for q in range(4):
        k(f"buffer_store_dwordx4 v[12:15], v{V_TOK}, s[84:87], s88 offen offset:{1024 * q} sc1")


def side_jobs(k):
    k(f"s_cmp_eq_u32 s{S_CNT}, s89")
    k("s_cbranch_scc0 L_k2_noside")
    side_jobs_body(k)
    k.lab("L_k2_noside")


DH = 6


def step_half(k, setn, tail, tiles, second, nside):
    D = DH
    fill = {m: [] for m in range(40)}
    last = (tail == 3)
    for n in range(20):
        nn = n + D
        if last and nn >= 20:
            continue
        rd = frag_reads(nn % 20)
        fill[2 * n].append(rd[0])
        fill[2 * n + 1].append(rd[1])
    if not second:
        if tail == 0:
            for t in range(4):
                fill[3 + 4 * t].append(tokload((setn + RING - 2) % NS, t)[0])
            if XOPT["side"] == "tail":
                fill[21].append("buffer_load_dword a252, v10, s[76:79], s74 offen")
                fill[25].append("buffer_load_dword a253, v11, s[80:83], s75 offen")
        if tail == 1 and XOPT["side"] == "tail":
            for q in range(4):
                fill[5 + 8 * q].append(f"buffer_store_dwordx4 v[12:15], v{V_TOK}, s[84:87], s88 offen offset:{1024 * q} sc1")
    if not last:
        cur, nxt = (28 + tail) % RING, (29 + tail) % RING
        delta = ((nxt - cur) * STAGE) & 0xffffffff
        fill[1].append(f"v_add_u32 v{V_AQ0}, {delta}, v{V_AQ0}")
        fill[3].append(f"v_add_u32 v{V_AQ1}, {delta}, v{V_AQ1}")
        fill[2 * (19 - D) + 3].append(f"v_add_u32 v{V_AG}, {delta}, v{V_AG}")
    for n in range(20):
        if last and n + D > 20:
            k(f"s_waitcnt lgkmcnt({2 * (19 - n)})")
        else:
            k(f"s_waitcnt lgkmcnt({2 * (D - 1)})")
        for i, t in enumerate(tiles if n % 2 == 0 or not XOPT.get("snake", False) else tiles[::-1]):
            k(mfma(n, t, setn))
            for x in fill[2 * n + i]:
                k(x)


def step(k, setn, D, sched=None, tail=None, tiles=(0, 1, 2, 3), second=False):
    nside = [2, 4, 0, 0] if XOPT["side"] == "tail" else [0, 0, 0, 0]
    if second:
        pass
    elif tail is None and setn == 1 and (XOPT.get("early1", True) or XOPT.get("w1pre", True)):
        k("s_waitcnt vmcnt(13)")
    elif tail is None or tail == 0:
        k(f"s_waitcnt vmcnt({9 * (RING - 3)})")
    elif tail == 1:
        k(f"s_waitcnt vmcnt({9 + 4 + nside[0]})")
    elif tail == 2:
        k(f"s_waitcnt vmcnt({4 + nside[0] + nside[1]})")
    else:
        k(f"s_waitcnt vmcnt({nside[0] + nside[1] + (4 if XOPT.get('tlb', True) else 0)})")
    if XOPT["bar"] and not second:
        k("s_barrier")
    if len(tiles) != 4:
        return step_half(k, setn, tail, tiles, second, nside)
    fill = {m: [] for m in range(80)}
    for n in range(20):
        nn = n + D
        if tail == 3 and nn >= 20:
            continue
        rd = frag_reads(nn % 20)
        fill[4 * n + 0].append(rd[0])
        fill[4 * n + 2].append(rd[1])
    for i in range(5 if tail is None else 0):
        a, b, c = dma(i)
        m = 4 * (2 * i + 1)
        fill[m - 1].append(b)
        fill[m + 1].append(a)
        fill[m + 3].append(c)
    if tail is None or tail == 0:
        for t in range(4):
            fill[4 * (2 + 2 * t) + 1 if tail == 0 else 4 * (11 + 2 * t) + 1].append(tokload((setn + RING - 2) % NS, t)[0])
    if tail is None:
        pa = p_adv()
        fill[73] += pa[0]; fill[75] += pa[1]
        ra = ring_adv()
        fill[77] += ra
    if tail == 0 and XOPT["side"] == "tail":
        fill[45].append("buffer_load_dword a252, v10, s[76:79], s74 offen")
        fill[53].append("buffer_load_dword a253, v11, s[80:83], s75 offen")
    if tail == 2 and XOPT.get("tlb", True):
        from k1 import A2_OFF, PHIQ_OFF, KVP_OFF
        fill[1] += ["v_mov_b32 v12, 0", "s_mov_b32 s12, s62", "s_mov_b32 s13, s63", f"s_mov_b32 s14, {64 << 20}", "s_mov_b32 s15, 0x00020000"]
        fill[5] += [f"s_lshl_b32 s16, s{S_R}, 4", f"s_lshl_b32 s17, s{S_WAVE}, 2", "s_add_u32 s16, s16, s17",
                    f"s_mul_i32 s16, s16, {144 * 1024}", f"s_add_u32 s16, s16, {A2_OFF}"]
        fill[9] += ["buffer_load_dword a250, v12, s[12:15], s16 offen"]
        fill[13] += [f"s_add_u32 s16, s16, {3 * 144 * 1024}"]
        fill[17] += ["buffer_load_dword a250, v12, s[12:15], s16 offen"]
        fill[21] += [f"s_lshl_b32 s16, s{S_J}, 18", f"s_add_u32 s16, s16, {PHIQ_OFF}", f"s_lshl_b32 s17, s{S_R}, 15", "s_add_u32 s16, s16, s17"]
        fill[25] += ["buffer_load_dword a251, v12, s[12:15], s16 offen"]
        fill[29] += [f"s_lshl_b32 s16, s{S_J}, 16", f"s_add_u32 s16, s16, {KVP_OFF}"]
        fill[33] += ["buffer_load_dword a251, v12, s[12:15], s16 offen"]
    if tail == 1 and XOPT["side"] == "tail":
        for q in range(4):
            fill[9 + 16 * q].append(f"buffer_store_dwordx4 v[12:15], v{V_TOK}, s[84:87], s88 offen offset:{1024 * q} sc1")
    fill[31].append(f"s_cmp_eq_u32 s{S_RD}, {STAGE*(RING-1)}")
    fill[31].append(f"s_cselect_b32 s{S_DELTA}, s{S_NEG}, s{S_POS}")
    fill[35].append(f"s_add_u32 s{S_RD}, s{S_RD}, s{S_DELTA}")
    fill[37].append(f"v_add_u32 v{V_AQ0}, s{S_DELTA}, v{V_AQ0}")
    fill[39].append(f"v_add_u32 v{V_AQ1}, s{S_DELTA}, v{V_AQ1}")
    g = 20 - D
    fill[4 * (19 - D) + 3].append(f"v_add_u32 v{V_AG}, s{S_DELTA}, v{V_AG}")
    for n in range(20):
        if tail == 3 and n + D > 20:
            k(f"s_waitcnt lgkmcnt({2 * (19 - n)})")
        elif XOPT["halfwait"]:
            if n % 2 == 0:
                k(f"s_waitcnt lgkmcnt({2 * (D - 2)})")
        else:
            k(f"s_waitcnt lgkmcnt({2 * (D - 1)})")
        for tt_ in range(4):
            m = 4 * n + tt_
            t = (3 - tt_) if (XOPT.get("snake", False) and n % 2 == 1) else tt_
            k(mfma(n, t, setn))
            for x in fill[m]:
                if x.startswith("ds_read") and (not XOPT["lds"] or (XOPT["ldsfrac"] == 2 and n % 2 == 1)): continue
                if x.endswith(" lds") and not XOPT["dma"]: continue
                if x.startswith("buffer_load_dwordx4 a") and not XOPT["tok"]: continue
                k(x)


def debug_epilogue(k):
    k("s_waitcnt vmcnt(0) lgkmcnt(0)")
    k.nop(16)
    k("s_lshl_b32 s51, s2, 2")
    k("s_add_u32 s51, s51, s47")
    k("s_mul_i32 s51, s51, 81920")
    k(f"s_add_u32 s8, s62, {DBG_OFF}")
    k("s_addc_u32 s9, s63, 0")
    k("s_add_u32 s8, s8, s51")
    k("s_addc_u32 s9, s9, 0")
    k("s_mov_b32 s10, 81920")
    k("s_mov_b32 s11, 0x00020000")
    k("s_mov_b32 s52, 0")
    for n in range(20):
        for t in range(4):
            k(f"buffer_store_dwordx4 {acc(n, t)}, v{V_TOK}, s[8:11], s52 offen")
            k("s_add_u32 s52, s52, 1024")


STAMP_OFF = 60 << 20
def stamp(k, i):
    k("s_memtime s[100:101]")
    k("s_memrealtime s[98:99]")
    k("s_waitcnt lgkmcnt(0)")
    k(f"s_mov_b32 s{90+2*i}, s100")
    k(f"s_mov_b32 s{91+2*i}, s98")

def stamp_store(k, n, wsreg=62, kid=0):
    k(f"s_add_u32 s8, s{wsreg}, {STAMP_OFF + kid * 65536}")
    k(f"s_addc_u32 s9, s{wsreg+1}, 0")
    k("s_mov_b32 s10, 65536")
    k("s_mov_b32 s11, 0x00020000")
    k("s_lshl_b32 s51, s2, 8")
    k("v_mov_b32 v10, s51")
    k("v_cmp_eq_u32 vcc, 0, v0")
    k(f"s_and_saveexec_b64 s[52:53], vcc")
    k("s_cmp_eq_u32 s47, 0")
    k("s_cbranch_scc0 L_nostamp")
    for i in range(n):
        k(f"v_mov_b32 v11, s{90+2*i}")
        k(f"v_mov_b32 v12, s{91+2*i}")
        k(f"buffer_store_dword v11, v10, s[8:11], 0 offen offset:{8*i}")
        k(f"buffer_store_dword v12, v10, s[8:11], 0 offen offset:{8*i+4}")
    k.lab("L_nostamp")
    k("s_mov_b64 exec, s[52:53]")

def tail_split(k, D):
    import k2e
    first = True
    for s in range(4):
        if s == 0:
            for n in (4, 5):
                for x in frag_reads(n):
                    k(x)
        step(k, s, D, tail=s, tiles=(0, 1))
    k.nop(8)
    k2e.h_setup(k)
    k2e.h_tiles(k, (0, 1))
    cur, tgt = 31 % RING, 28 % RING
    delta = ((tgt - cur) * STAGE) & 0xffffffff
    for r in (V_AQ0, V_AQ1, V_AG):
        k(f"v_add_u32 v{r}, {delta}, v{r}")
    for n in range(DH):
        for x in frag_reads(n):
            k(x)
    for s in range(4):
        step(k, s, D, tail=s, tiles=(2, 3), second=True)


def gen_k2(D=4, debug=False, epilogue=None, stamps=False, stepfn=None):
    k = Kern("k2_gemm1_kernel")
    if stamps:
        stamp(k, 0)
    prologue(k, D)
    if stamps and FINE:
        stamp(k, 4)
        stamp_store(k, 5)
        k("s_endpgm")
    if stamps:
        stamp(k, 1)
        k("s_nop 0")
        for n in range(D):
            pass
    k(f"s_mov_b32 s{S_CNT}, 0")
    k.lab("L_k2_loop")
    if XOPT['side'] is True:
        side_jobs(k)
    for s in range(NS):
        (stepfn or step)(k, s, D)
    k(f"s_add_u32 s{S_CNT}, s{S_CNT}, 1")
    k(f"s_cmp_lt_u32 s{S_CNT}, {32 // NS - 1}")
    k("s_cbranch_scc1 L_k2_loop")
    if XOPT.get("split_tail", True):
        assert DH == 6 and D == 4
        tail_split(k, D)
    else:
        for s in range(NS):
            step(k, s, D, tail=s)
    if stamps:
        stamp(k, 2)
    if debug:
        debug_epilogue(k)
    elif epilogue:
        epilogue(k)
    if stamps:
        k("s_waitcnt vmcnt(0)")
        stamp(k, 3)
        stamp_store(k, 4)
    k.lab("L_k2_end")
    k("s_endpgm")
    nv = 256 + 254
    return k, descriptor("k2_gemm1_kernel", nv, 256), f"; @launch kernel=k2_gemm1_kernel grid=(256,1,1) block=(256,1,1) lds={STAGE*RING + 4096}"
```
